```python
import torch

def _softmax(x, axis=-1):
    return torch.softmax(x, dim=axis)
def _gelu(x):
    return torch.nn.functional.gelu(x, approximate="tanh")
def _silu(x):
    return torch.nn.functional.silu(x)
def _sigmoid(x):
    return torch.sigmoid(x)
def _layernorm(x, axis=-1, eps=1e-5):
    m = x.mean(dim=axis, keepdim=True)
    v = x.var(dim=axis, keepdim=True, unbiased=False)
    return (x - m) / torch.sqrt(v + eps)
def _scatter_add(tgt, idx, src, axis=0):
    return tgt.clone().index_add_(axis, idx, src)
def _segment_sum(src, seg, n):
    out = torch.zeros((n,) + src.shape[1:], dtype=src.dtype)
    return out.index_add_(0, seg, src)
def _pad(x, pw):
    flat = tuple(v for pair in reversed(pw) for v in pair)
    return torch.nn.functional.pad(x, flat)

kernel_name = 'standalone__edge_featured_mpnn_gatedgcn__graph'

def setup_inputs():

    _w = (lambda a: (lambda t: t.to(torch.bfloat16) if t.is_floating_point() else t)(torch.as_tensor(a)))
    N, deg, D, De = 25000, 16, 128, max(0, 1)
    E = N * deg
    return {
        "x": _w((lambda *s: torch.randn(*s, dtype=torch.bfloat16) * 0.4)(N, D)),
        "e_attr": _w((lambda *s: torch.randn(*s, dtype=torch.bfloat16) * 0.8)(E, De)),
        "src": _w((lambda lo, hi, *s: torch.randint(lo, hi, s))(0, N, E).to(torch.int64)),
        "dst": _w((lambda lo, hi, *s: torch.randint(lo, hi, s))(0, N, E).to(torch.int64)),
        "w_a": _w((lambda *s: torch.randn(*s, dtype=torch.bfloat16) * 0.4)(D, D)),
        "w_b": _w((lambda *s: torch.randn(*s, dtype=torch.bfloat16) * 0.4)(D, D)),
        "w_c": _w((lambda *s: torch.randn(*s, dtype=torch.bfloat16) * 0.8)(De, D)),
        "w_u": _w((lambda *s: torch.randn(*s, dtype=torch.bfloat16) * 0.05)(D, D)),
        "w_v": _w((lambda *s: torch.randn(*s, dtype=torch.bfloat16) * 0.05)(D, D)),
    }

def reference(x, e_attr, src, dst, w_a, w_b, w_c, w_u, w_v):
    N, D = x.shape
    hv = x @ w_v
    g = x[dst] @ w_a + x[src] @ w_b + e_attr @ w_c
    eta = _sigmoid(g)
    denom = _segment_sum(eta, dst, N) + 1e-6
    eta_n = eta / denom[dst]
    agg = _segment_sum(eta_n * hv[src], dst, N)
    z = x @ w_u + agg
    relu_z = torch.where(z > 0, z, 0 * z)
    return x + relu_z
```

```python
import sys

NAME = "standalone__edge_featured_mpnn_gatedgcn__graph"
N = 25000; E = 400000
NPB = 392
NB = 64
CH = 1564
TSTRIDE = 25088*128
DUMMY_ROW = 25024
SEG = 12544
REC_OFF = 4*TSTRIDE
OFF_OFF = 5*TSTRIDE
WS_USED = OFF_OFF + 65536
LOG2E_NEG = 0xBFB8AA3B
TINY = 0x03800000
EPS = 0x358637BD
SC = " sc1"

A_W = 0
A_STG = 65536
A_REC = 131072
A_HIST = A_REC + SEG
A_SIZE = A_HIST + 256
B_AU = 0
B_ELL = 53248
ELL_ITERS = 1024
B_WAU = B_ELL + 65536
B_DEG = B_WAU + 16384
B_HIST = B_DEG + 1600
B_FLAG = B_HIST + 256
B_SLOT = B_FLAG + 64
B_SNODE = B_SLOT + 1600
B_SIZE = B_SNODE + 1600

class Asm:
    def __init__(self): self.lines = []
    def __call__(self, s):
        for l in s.split("\n"):
            l = l.strip()
            if l: self.lines.append(("" if l.endswith(":") else "    ") + l)
    def text(self): return "\n".join(self.lines) + "\n"

def vr(a, n): return f"v[{a}:{a+n-1}]"
def sr(a, n): return f"s[{a}:{a+n-1}]"

def srd(o, d, base, nbytes):
    o(f"s_mov_b32 s{d}, s{base}")
    o(f"s_and_b32 s{d+1}, s{base+1}, 0xffff")
    o(f"s_mov_b32 s{d+2}, {nbytes}")
    o(f"s_mov_b32 s{d+3}, 0x20000")

def scan64(o, v):
    for sh in (1, 2, 4, 8):
        o("s_nop 1")
        o(f"v_add_u32_dpp v{v}, v{v}, v{v} row_shr:{sh} row_mask:0xf bank_mask:0xf bound_ctrl:0")
    o("s_nop 1")
    o(f"v_add_u32_dpp v{v}, v{v}, v{v} row_bcast:15 row_mask:0xa bank_mask:0xf")
    o("s_nop 1")
    o(f"v_add_u32_dpp v{v}, v{v}, v{v} row_bcast:31 row_mask:0xc bank_mask:0xf")

def gemm_tile(o, vW, vX, aP, aQ, vWaddr, step_off, half_off, mat_off, x_wait):
    def rd(t0):
        for i, t in enumerate(range(t0, t0+4)):
            for m in range(2):
                b = vW + (i*2+m)*4
                o(f"ds_read_b64_tr_b16 {vr(b,2)}, v{vWaddr} offset:{m*mat_off + t*step_off}")
                o(f"ds_read_b64_tr_b16 {vr(b+2,2)}, v{vWaddr} offset:{m*mat_off + t*step_off + half_off}")
    def mm(t0):
        for i, t in enumerate(range(t0, t0+4)):
            o(f"s_waitcnt lgkmcnt({min(15, 12-4*i)})")
            for m, acc in enumerate((aP, aQ)):
                b = vW + (i*2+m)*4
                c = "0" if t == 0 else vr(acc, 16)
                o(f"v_mfma_f32_32x32x16_bf16 {vr(acc,16)}, {vr(b,4)}, {vr(vX+4*t,4)}, {c}")
    rd(0)
    if x_wait is not None: o(f"s_waitcnt vmcnt({x_wait})")
    mm(0)
    rd(4)
    mm(4)
    o("s_nop 15")

def encode4(o, a, d, t):
    for i in range(4):
        o(f"v_add_u32 v{t+i}, s{S_HALF}, v{a+i}")
    for i in range(1, 4):
        o(f"v_sub_u32_sdwa v{t+i}, v{t+i}, v{t+i-1} dst_sel:DWORD dst_unused:UNUSED_PAD src0_sel:DWORD src1_sel:WORD_1")
    o(f"v_perm_b32 v{d}, v{t+1}, v{t}, s{S_PERM}")
    o(f"v_perm_b32 v{d+1}, v{t+3}, v{t+2}, s{S_PERM}")

def scale_tiles(o, aP, aQ):
    for i in range(0, 16, 2):
        o(f"v_pk_fma_f32 {vr(aP+i,2)}, {vr(aP+i,2)}, {sr(S_CT,2)}, {sr(S_CT,2)} op_sel:[0,0,1] op_sel_hi:[1,0,1]")
    for i in range(0, 16, 2):
        o(f"v_pk_add_f32 {vr(aQ+i,2)}, {vr(aQ+i,2)}, {sr(S_CT,2)} op_sel:[0,1] op_sel_hi:[1,1]")

def encode_write(o, aP, aQ, vD, vA):
    for q in range(4):
        d = vD + (q & 1)*4
        encode4(o, aP+4*q, d, aP+4*q)
        encode4(o, aQ+4*q, d+2, aQ+4*q)
        if q: o(f"v_xor_b32 v{vA}, {32*(q ^ (q-1))}, v{vA}")
        o(f"ds_write_b128 v{vA}, {vr(d,4)}")

S_WG = 2
S_X, S_E, S_SRC, S_DST, S_WA, S_WB, S_WC, S_WU, S_WV, S_OUT, S_DBG, S_WS = 4, 6, 8, 10, 12, 14, 16, 18, 20, 22, 24, 26
R_X = 28; R_WS = 32; R_W = 36; R_T0 = 40; R_T1 = 44; R_T2 = 48
S_WAVE = 52
S_HALF = 53; S_PERM = 54
S_CT = 56
S_A = 58; S_B = 59; S_C = 60; S_D = 61; S_EX = 62

def prologue(o, lab_exit):
    o(f"s_cmp_ge_u32 s{S_WG}, 256")
    o(f"s_cbranch_scc1 {lab_exit}")
    o(f"s_load_dwordx16 s[4:19], s[0:1], 0")
    o(f"s_load_dwordx8 s[20:27], s[0:1], 64")
    o(f"v_lshrrev_b32 v1, 6, v0")
    o(f"v_and_b32 v2, 63, v0")
    o(f"v_readfirstlane_b32 s{S_WAVE}, v1")
    o(f"s_mov_b32 s{S_HALF}, 0x8000")
    o(f"s_mov_b32 s{S_PERM}, 0x07060302")
    o(f"s_mov_b32 s{S_CT}, {LOG2E_NEG:#x}")
    o(f"s_mov_b32 s{S_CT+1}, {TINY:#x}")
    o("s_waitcnt lgkmcnt(0)")
    srd(o, R_X, S_X, N*256)
    srd(o, R_WS, S_WS, WS_USED)

def phase_a(o):
    vDST, vSRC, vE = 4, 6, 8
    vX = 16
    vW = 48
    aP, aQ = 80, 96
    vD = 112
    srd(o, R_T0, S_DST, E*4)
    srd(o, R_T1, S_SRC, E*4)
    srd(o, R_T2, S_E, E*2)
    o(f"s_mul_i32 s{S_A}, s{S_WG}, {CH*4}")
    o(f"s_mul_i32 s{S_B}, s{S_WG}, {CH*2}")
    o(f"v_lshlrev_b32 v3, 3, v0")
    o(f"v_lshlrev_b32 v9, 2, v0")
    o(f"buffer_load_dwordx2 {vr(vDST,2)}, v3, {sr(R_T0,4)}, s{S_A} offen")
    o(f"buffer_load_dwordx2 {vr(vSRC,2)}, v3, {sr(R_T1,4)}, s{S_A} offen")
    o(f"buffer_load_dword v{vE}, v9, {sr(R_T2,4)}, s{S_B} offen")
    o(f"s_cmp_lt_u32 s{S_WAVE}, 8")
    o(f"s_cselect_b32 s{R_W}, s{S_WB}, s{S_WV}")
    o(f"s_cselect_b32 s{R_W+1}, s{S_WB+1}, s{S_WV+1}")
    o(f"s_and_b32 s{R_W+1}, s{R_W+1}, 0xffff")
    o(f"s_mov_b32 s{R_W+2}, 32768")
    o(f"s_mov_b32 s{R_W+3}, 0x20000")
    o(f"v_lshrrev_b32 v10, 4, v2")
    o(f"v_and_b32 v11, 15, v2")
    o(f"v_lshlrev_b32 v12, 2, v10")
    o(f"v_xor_b32 v11, v11, v12")
    o(f"v_lshlrev_b32 v11, 4, v11")
    o(f"v_lshl_add_u32 v11, v10, 8, v11")
    o(f"s_and_b32 s{S_C}, s{S_WAVE}, 7")
    o(f"s_lshl_b32 s{S_C}, s{S_C}, 12")
    o(f"s_lshl_b32 s{S_D}, s{S_WAVE}, 12")
    o(f"s_mov_b32 m0, s{S_D}")
    o("s_nop 0")
    for i in range(4):
        o(f"buffer_load_dwordx4 v11, {sr(R_W,4)}, s{S_C} offen offset:{i*1024} lds")
    o(f"s_lshr_b32 s{S_C}, s{S_WAVE}, 2")
    o(f"s_lshl_b32 s{S_C}, s{S_C}, 8")
    o(f"s_add_u32 s{S_C}, s{S_C}, s{S_WG}")
    o(f"s_lshl_b32 s{S_D}, s{S_C}, 13")
    o(f"v_and_b32 v12, 31, v2")
    o(f"v_lshrrev_b32 v13, 5, v2")
    o(f"v_lshlrev_b32 v14, 8, v12")
    o(f"v_lshl_add_u32 v14, v13, 4, v14")
    for t in range(8):
        o(f"buffer_load_dwordx4 {vr(vX+4*t,4)}, v14, {sr(R_X,4)}, s{S_D} offen offset:{t*32}")
    o(f"v_mov_b32 v15, 0")
    o(f"v_lshlrev_b32 v10, 2, v2")
    o(f"s_cmp_eq_u32 s{S_WAVE}, 0")
    o(f"s_cbranch_scc0 A_nozero")
    o(f"v_add_u32 v15, {A_HIST}, v10")
    o(f"v_mov_b32 v11, 0")
    o(f"ds_write_b32 v15, v11")
    o("s_waitcnt lgkmcnt(0)")
    o("A_nozero:")
    o("s_barrier")
    o(f"s_cmp_eq_u32 s{S_WG}, 255")
    o(f"s_movk_i32 s{S_A}, {CH//2}")
    o(f"s_cselect_b32 s{S_A}, {(E-255*CH)//2}, s{S_A}")
    o(f"s_mov_b32 s{S_B}, 42800")
    o(f"s_movk_i32 s{S_D}, {NPB}")
    o("s_waitcnt vmcnt(12)")
    vB, vR, vRec = 112, 114, 116
    for i in range(2):
        o(f"v_mul_u32_u24 v{vB+i}, s{S_B}, v{vDST+i}")
        o(f"v_lshrrev_b32 v{vB+i}, 24, v{vB+i}")
        o(f"v_mul_u32_u24 v15, s{S_D}, v{vB+i}")
        o(f"v_sub_u32 v15, v{vDST+i}, v15")
        o(f"v_lshlrev_b32 v15, 22, v15")
        o(f"v_lshl_or_b32 v{vRec+2*i}, v{vSRC+i}, 7, v15")
        o(f"v_lshlrev_b32 v{vB+i}, 2, v{vB+i}")
    o(f"v_lshlrev_b32 v{vRec+1}, 16, v{vE}")
    o(f"v_and_b32 v{vRec+3}, 0xffff0000, v{vE}")
    o(f"v_mov_b32 v15, 1")
    o(f"v_add_u32 v3, {A_HIST}, v{vB}")
    o(f"v_add_u32 v9, {A_HIST}, v{vB+1}")
    o(f"v_cmp_gt_u32 vcc, s{S_A}, v0")
    o(f"s_and_saveexec_b64 {sr(S_EX,2)}, vcc")
    o(f"ds_add_rtn_u32 v{vR}, v3, v15")
    o(f"ds_add_rtn_u32 v{vR+1}, v9, v15")
    o(f"s_mov_b64 exec, {sr(S_EX,2)}")
    o("s_waitcnt lgkmcnt(0)")
    o("s_barrier")
    o(f"v_add_u32 v3, {A_HIST}, v10")
    o(f"ds_read_b32 v9, v3")
    o("s_waitcnt lgkmcnt(0)")
    o(f"v_mov_b32 v11, v9")
    scan64(o, 11)
    o(f"v_sub_u32 v11, v11, v9")
    o(f"ds_bpermute_b32 v3, v{vB}, v11")
    o(f"ds_bpermute_b32 v15, v{vB+1}, v11")
    o(f"v_lshl_or_b32 v1, v9, 16, v11")
    o("s_waitcnt lgkmcnt(0)")
    o(f"v_add_u32 v3, v3, v{vR}")
    o(f"v_add_u32 v15, v15, v{vR+1}")
    o(f"v_lshlrev_b32 v3, 3, v3")
    o(f"v_lshlrev_b32 v15, 3, v15")
    o(f"v_add_u32 v3, {A_REC}, v3")
    o(f"v_add_u32 v15, {A_REC}, v15")
    o(f"s_and_saveexec_b64 {sr(S_EX,2)}, vcc")
    o(f"ds_write_b64 v3, {vr(vRec,2)}")
    o(f"ds_write_b64 v15, {vr(vRec+2,2)}")
    o(f"s_mov_b64 exec, {sr(S_EX,2)}")
    o("s_waitcnt vmcnt(8) lgkmcnt(0)")
    o("s_barrier")
    o("s_waitcnt vmcnt(0)")
    o(f"s_cmp_eq_u32 s{S_WAVE}, 0")
    o(f"s_cbranch_scc0 A_nooff")
    o(f"s_lshl_b32 s{S_B}, s{S_WG}, 8")
    o(f"s_add_u32 s{S_B}, s{S_B}, {OFF_OFF}")
    o(f"buffer_store_dword v1, v10, {sr(R_WS,4)}, s{S_B} offen{SC}")
    o("A_nooff:")
    o(f"v_lshlrev_b32 v3, 4, v0")
    o(f"v_add_u32 v9, {A_REC}, v3")
    o(f"s_mul_i32 s{S_B}, s{S_WG}, {SEG}")
    o(f"s_add_u32 s{S_B}, s{S_B}, {REC_OFF}")
    o(f"s_movk_i32 s{S_A}, {SEG//16}")
    o(f"v_cmp_gt_u32 vcc, s{S_A}, v0")
    o(f"s_and_saveexec_b64 {sr(S_EX,2)}, vcc")
    o(f"s_cbranch_execz A_norec")
    o(f"ds_read_b128 {vr(vD,4)}, v9")
    o("s_waitcnt lgkmcnt(0)")
    o(f"buffer_store_dwordx4 {vr(vD,4)}, v3, {sr(R_WS,4)}, s{S_B} offen{SC}")
    o("A_norec:")
    o(f"s_mov_b64 exec, {sr(S_EX,2)}")
    o(f"s_cmp_lt_u32 s{S_C}, 782")
    o(f"s_cbranch_scc0 A_nogemm")
    o(f"s_and_b32 s{S_A}, s{S_WAVE}, 3")
    o(f"v_bfe_u32 v3, v2, 2, 2")
    o(f"v_lshrrev_b32 v9, 5, v2")
    o(f"v_lshl_add_u32 v9, v9, 3, v3")
    o(f"v_lshlrev_b32 v9, 8, v9")
    o(f"v_xor_b32 v3, s{S_A}, v3")
    o(f"v_lshl_add_u32 v9, v3, 6, v9")
    o(f"v_bfe_u32 v3, v2, 4, 1")
    o(f"v_lshl_add_u32 v9, v3, 5, v9")
    o(f"v_and_b32 v3, 3, v2")
    o(f"v_lshl_add_u32 v9, v3, 3, v9")
    gemm_tile(o, vW, vX, aP, aQ, 9, 4096, 1024, 32768, None)
    scale_tiles(o, aP, aQ)
    o(f"s_lshl_b32 s{S_B}, s{S_WAVE}, 12")
    o(f"s_add_u32 s{S_B}, s{S_B}, {A_STG}")
    o(f"v_and_b32 v3, 7, v12")
    o(f"v_xor_b32 v3, v3, v13")
    o(f"v_lshlrev_b32 v3, 4, v3")
    o(f"v_lshl_add_u32 v3, v12, 7, v3")
    o(f"v_add_u32 v3, s{S_B}, v3")
    encode_write(o, aP, aQ, vD, 3)
    o(f"v_lshrrev_b32 v3, 3, v2")
    o(f"v_and_b32 v9, 7, v2")
    o(f"v_xor_b32 v9, v9, v3")
    o(f"v_lshlrev_b32 v9, 4, v9")
    o(f"v_lshl_add_u32 v9, v3, 7, v9")
    o(f"v_add_u32 v9, s{S_B}, v9")
    o(f"s_mul_i32 s{S_A}, s{S_A}, {TSTRIDE}")
    o(f"s_lshl_b32 s{S_B}, s{S_C}, 12")
    o(f"s_add_u32 s{S_A}, s{S_A}, s{S_B}")
    o(f"v_lshlrev_b32 v3, 4, v2")
    o("s_waitcnt lgkmcnt(0)")
    for i in range(4):
        o(f"ds_read_b128 {vr(vW+4*i,4)}, v9 offset:{i*1024}")
    for i in range(4):
        o(f"s_waitcnt lgkmcnt({3-i})")
        o(f"buffer_store_dwordx4 {vr(vW+4*i,4)}, v3, {sr(R_WS,4)}, s{S_A} offen offset:{i*1024}{SC}")
    o("s_branch A_done")
    o("A_nogemm:")
    o(f"s_cmp_eq_u32 s{S_C}, {255+768}")
    o(f"s_cbranch_scc0 A_done")
    o(f"s_cmp_eq_u32 s{S_WAVE}, 15")
    o(f"s_cbranch_scc0 A_done")
    o(f"v_lshrrev_b32 v3, 3, v2")
    o(f"s_mov_b32 s{S_A}, {TSTRIDE}")
    o(f"v_mul_lo_u32 v3, v3, s{S_A}")
    o(f"v_and_b32 v9, 7, v2")
    o(f"v_lshl_add_u32 v3, v9, 4, v3")
    o(f"v_mov_b32 v{vD}, 0x7f007f00")
    o(f"v_mov_b32 v{vD+1}, 0x7f007f00")
    o(f"v_mov_b32 v{vD+2}, 0")
    o(f"v_mov_b32 v{vD+3}, 0")
    o(f"s_mov_b32 s{S_A}, {DUMMY_ROW*128}")
    o(f"v_cmp_gt_u32 vcc, 32, v2")
    o(f"s_and_saveexec_b64 {sr(S_EX,2)}, vcc")
    o(f"buffer_store_dwordx4 {vr(vD,4)}, v3, {sr(R_WS,4)}, s{S_A} offen{SC}")
    o(f"s_mov_b64 exec, {sr(S_EX,2)}")
    o("A_done:")

S_SLICE = 64; S_BUCKET = 65; S_NODE0 = 66
R_TAB = 68; R_OUT = 72
S_CNT = 76; S_L1 = 77; S_L2 = 78; S_L3 = 79; S_NT = 80; S_EPS = 82
S_HALFI = 84; S_PP = 85
PD = 4

def finalize(o, vDen, vNum, vU, vXr, vT, vOA):
    o(f"v_pk_add_f32 {vr(vDen,2)}, {vr(vDen,2)}, {sr(S_EPS,2)}")
    o(f"v_pk_add_f32 {vr(vDen+2,2)}, {vr(vDen+2,2)}, {sr(S_EPS,2)}")
    o(f"v_lshlrev_b64 {vr(vT,2)}, 16, {vr(vU,2)}")
    for i in range(4): o(f"v_rcp_f32 v{vDen+i}, v{vDen+i}")
    o(f"v_lshlrev_b32 v{vT+4}, 16, v{vXr}")
    o(f"v_lshlrev_b32 v{vT+5}, 16, v{vXr+1}")
    o(f"v_pk_fma_f32 {vr(vT,2)}, {vr(vNum,2)}, {vr(vDen,2)}, {vr(vT,2)}")
    o(f"v_pk_fma_f32 {vr(vT+2,2)}, {vr(vNum+2,2)}, {vr(vDen+2,2)}, {vr(vU,2)}")
    o(f"v_and_b32 v{vT+6}, 0xffff0000, v{vXr}")
    o(f"v_and_b32 v{vT+7}, 0xffff0000, v{vXr+1}")
    for i in range(4):
        o(f"v_mul_f32 v{vDen+i}, 0, v{vT+i}")
    for i in range(4):
        o(f"v_cmp_lt_f32 vcc, 0, v{vT+i}")
        o("s_nop 1")
        o(f"v_cndmask_b32 v{vT+i}, v{vDen+i}, v{vT+i}, vcc")
    o(f"v_pk_add_f32 {vr(vT,2)}, {vr(vT,2)}, {vr(vT+4,2)}")
    o(f"v_pk_add_f32 {vr(vT+2,2)}, {vr(vT+2,2)}, {vr(vT+6,2)}")
    o(f"v_cvt_pk_bf16_f32 v{vT+4}, v{vT}, v{vT+2}")
    o(f"v_cvt_pk_bf16_f32 v{vT+5}, v{vT+1}, v{vT+3}")
    o(f"buffer_store_dwordx2 {vr(vT+4,2)}, v{vOA}, {sr(R_OUT,4)}, 0 offen")

def phase_b(o):
    vX = 16; vW = 48; aP, aQ = 80, 96; vD = 112
    vOFF = 4; vWC = 6
    vREC = 48
    o(f"s_and_b32 s{S_A}, s{S_WG}, 7")
    o(f"s_lshr_b32 s{S_SLICE}, s{S_A}, 1")
    o(f"s_lshr_b32 s{S_BUCKET}, s{S_WG}, 3")
    o(f"s_lshl_b32 s{S_BUCKET}, s{S_BUCKET}, 1")
    o(f"s_and_b32 s{S_A}, s{S_WG}, 1")
    o(f"s_add_u32 s{S_BUCKET}, s{S_BUCKET}, s{S_A}")
    o(f"s_mul_i32 s{S_NODE0}, s{S_BUCKET}, {NPB}")
    srd(o, R_OUT, S_OUT, N*256)
    srd(o, R_T0, S_WC, 256)
    o(f"s_mul_i32 s{S_A}, s{S_SLICE}, {TSTRIDE}")
    o(f"s_add_u32 s{R_TAB}, s{S_WS}, s{S_A}")
    o(f"s_addc_u32 s{R_TAB+1}, s{S_WS+1}, 0")
    o(f"s_and_b32 s{R_TAB+1}, s{R_TAB+1}, 0xffff")
    o(f"s_mov_b32 s{R_TAB+2}, {TSTRIDE}")
    o(f"s_mov_b32 s{R_TAB+3}, 0x20000")
    o(f"s_mov_b32 s{S_EPS}, {EPS:#x}")
    o(f"s_mov_b32 s{S_EPS+1}, {EPS:#x}")
    o(f"v_lshrrev_b32 v3, 2, v0")
    o(f"v_lshlrev_b32 v5, 8, v3")
    o(f"s_lshl_b32 s{S_A}, s{S_BUCKET}, 2")
    o(f"s_add_u32 s{S_A}, s{S_A}, {OFF_OFF}")
    o(f"buffer_load_dword v{vOFF}, v5, {sr(R_WS,4)}, s{S_A} offen{SC}")
    o(f"s_cmp_lt_u32 s{S_WAVE}, 8")
    o(f"s_cselect_b32 s{R_W}, s{S_WA}, s{S_WU}")
    o(f"s_cselect_b32 s{R_W+1}, s{S_WA+1}, s{S_WU+1}")
    o(f"s_and_b32 s{R_W+1}, s{R_W+1}, 0xffff")
    o(f"s_mov_b32 s{R_W+2}, 32768")
    o(f"s_mov_b32 s{R_W+3}, 0x20000")
    o(f"v_lshrrev_b32 v10, 2, v2")
    o(f"v_and_b32 v11, 3, v2")
    o(f"v_lshlrev_b32 v11, 4, v11")
    o(f"v_lshl_add_u32 v11, v10, 8, v11")
    o(f"s_and_b32 s{S_C}, s{S_WAVE}, 7")
    o(f"s_lshl_b32 s{S_C}, s{S_C}, 12")
    o(f"s_lshl_b32 s{S_D}, s{S_SLICE}, 6")
    o(f"s_add_u32 s{S_C}, s{S_C}, s{S_D}")
    o(f"s_lshl_b32 s{S_D}, s{S_WAVE}, 10")
    o(f"s_add_u32 s{S_D}, s{S_D}, {B_WAU}")
    o(f"s_mov_b32 m0, s{S_D}")
    o("s_nop 0")
    o(f"buffer_load_dwordx4 v11, {sr(R_W,4)}, s{S_C} offen lds")
    o(f"s_lshl_b32 s{S_C}, s{S_WAVE}, 5")
    o(f"s_add_u32 s{S_C}, s{S_C}, s{S_NODE0}")
    o(f"s_lshl_b32 s{S_C}, s{S_C}, 8")
    o(f"s_cmp_lt_u32 s{S_WAVE}, 13")
    o(f"s_cselect_b32 s{S_C}, s{S_C}, 0x40000000")
    o(f"v_and_b32 v12, 31, v2")
    o(f"v_lshrrev_b32 v13, 5, v2")
    o(f"v_lshlrev_b32 v14, 8, v12")
    o(f"v_lshl_add_u32 v14, v13, 4, v14")
    for t in range(8):
        o(f"buffer_load_dwordx4 {vr(vX+4*t,4)}, v14, {sr(R_X,4)}, s{S_C} offen offset:{t*32}")
    o(f"v_and_b32 v8, 7, v2")
    o(f"v_lshlrev_b32 v9, 3, v8")
    o(f"s_lshl_b32 s{S_D}, s{S_SLICE}, 6")
    o(f"buffer_load_dwordx2 {vr(vWC,2)}, v9, {sr(R_T0,4)}, s{S_D} offen")
    o(f"v_mov_b32 v{vD}, {DUMMY_ROW*128}")
    o(f"v_mov_b32 v{vD+1}, 0")
    o(f"v_mov_b32 v{vD+2}, {DUMMY_ROW*128}")
    o(f"v_mov_b32 v{vD+3}, 0")
    o(f"v_lshlrev_b32 v10, 4, v0")
    o(f"v_add_u32 v10, {B_ELL}, v10")
    for i in range(4):
        o(f"ds_write_b128 v10, {vr(vD,4)} offset:{i*16384}")
    o(f"v_lshlrev_b32 v10, 2, v0")
    o(f"v_add_u32 v11, {B_DEG}, v10")
    o(f"s_movk_i32 s{S_A}, {(B_SLOT-B_DEG)//4}")
    o(f"v_cmp_gt_u32 vcc, s{S_A}, v0")
    o(f"s_and_saveexec_b64 {sr(S_EX,2)}, vcc")
    o(f"ds_write_b32 v11, v{vD+1}")
    o(f"s_mov_b64 exec, {sr(S_EX,2)}")
    o("s_waitcnt vmcnt(9) lgkmcnt(0)")
    o("s_barrier")
    vCNT, vIDX, vRA = 4, 5, 11
    o(f"v_and_b32 v15, 0xffff, v{vOFF}")
    o(f"v_lshrrev_b32 v{vCNT}, 16, v{vOFF}")
    o(f"v_and_b32 v{vIDX}, 3, v0")
    o(f"v_lshlrev_b32 v{vIDX}, 1, v{vIDX}")
    o(f"v_add_u32 v15, v15, v{vIDX}")
    o(f"s_movk_i32 s{S_A}, {SEG}")
    o(f"v_mul_u32_u24 v{vRA}, s{S_A}, v3")
    o(f"v_lshl_add_u32 v{vRA}, v15, 3, v{vRA}")
    o(f"v_mov_b32 v15, 1")
    o(f"v_mov_b32 v1, {B_FLAG}")
    o(f"v_cmp_lt_u32 vcc, 48, v{vCNT}")
    o(f"s_and_saveexec_b64 {sr(S_EX,2)}, vcc")
    o(f"ds_write_b32 v1, v15")
    o(f"s_mov_b64 exec, {sr(S_EX,2)}")
    o(f"s_cmp_lt_u32 s{S_WAVE}, 13")
    o(f"s_cbranch_scc0 B_nogemm")
    o(f"v_bfe_u32 v3, v2, 2, 2")
    o(f"v_lshl_add_u32 v9, v13, 3, v3")
    o(f"v_lshlrev_b32 v9, 6, v9")
    o(f"v_bfe_u32 v3, v2, 4, 1")
    o(f"v_lshl_add_u32 v9, v3, 5, v9")
    o(f"v_and_b32 v3, 3, v2")
    o(f"v_lshl_add_u32 v9, v3, 3, v9")
    o(f"v_add_u32 v9, {B_WAU}, v9")
    gemm_tile(o, vW, vX, aP, aQ, 9, 1024, 256, 8192, 1)
    scale_tiles(o, aP, aQ)
    o(f"v_max3_f32 v3, |v{aP}|, |v{aP+1}|, |v{aP+2}|")
    for i in range(3, 15, 2):
        o(f"v_max3_f32 v3, v3, |v{aP+i}|, |v{aP+i+1}|")
    o(f"v_max_f32 v3, v3, |v{aP+15}|")
    o(f"v_pk_add_f32 {vr(vD,2)}, {vr(aP,2)}, {vr(aP+2,2)}")
    for i in range(4, 16, 2):
        o(f"v_pk_add_f32 {vr(vD,2)}, {vr(vD,2)}, {vr(aP+i,2)}")
    o(f"v_add_f32 v{vD}, v{vD}, v{vD+1}")
    o(f"v_mul_f32 v{vD}, 0, v{vD}")
    o(f"v_add_f32 v3, v3, v{vD}")
    o(f"s_mov_b32 s{S_A}, 0x42700000")
    o(f"v_cmp_nge_f32 vcc, s{S_A}, v3")
    o(f"s_and_saveexec_b64 {sr(S_EX,2)}, vcc")
    o(f"ds_write_b32 v1, v15")
    o(f"s_mov_b64 exec, {sr(S_EX,2)}")
    o(f"s_lshl_b32 s{S_B}, s{S_WAVE}, 12")
    o(f"v_and_b32 v3, 7, v12")
    o(f"v_xor_b32 v3, v3, v13")
    o(f"v_lshlrev_b32 v3, 4, v3")
    o(f"v_lshl_add_u32 v3, v12, 7, v3")
    o(f"v_add_u32 v3, s{S_B}, v3")
    encode_write(o, aP, aQ, vD, 3)
    o("B_nogemm:")
    vREC = 16; vRK = 40
    o(f"s_mov_b32 s{S_A}, {REC_OFF}")
    o(f"v_mov_b32 v3, v{vIDX}")
    for k in range(6):
        o(f"v_cmpx_gt_u32 vcc, v{vCNT}, v3")
        o(f"buffer_load_dwordx4 {vr(vREC+4*k,4)}, v{vRA}, {sr(R_WS,4)}, s{S_A} offen offset:{k*64}{SC}")
        if k < 5: o(f"v_add_u32 v3, 8, v3")
    o("s_mov_b64 exec, -1")
    o(f"v_mov_b32 v3, v{vIDX}")
    o("s_waitcnt vmcnt(0)")
    vDA = 52
    for r in range(12):
        w0 = vREC + 2*r
        o(f"v_cmpx_gt_u32 vcc, v{vCNT}, v3")
        o(f"s_cbranch_execz B_cnt_done")
        o(f"v_lshrrev_b32 v{vDA+r}, 22, v{w0}")
        o(f"v_lshlrev_b32 v{vDA+r}, 2, v{vDA+r}")
        o(f"v_add_u32 v{vDA+r}, {B_DEG}, v{vDA+r}")
        o(f"ds_add_rtn_u32 v{vRK+r}, v{vDA+r}, v15")
        if r < 11: o(f"v_add_u32 v3, {1 if r % 2 == 0 else 7}, v3")
    o("B_cnt_done:")
    o("s_mov_b64 exec, -1")
    o("s_waitcnt lgkmcnt(0)")
    o("s_barrier")
    vN_D, vBIN, vR2 = 64, 65, 66
    o(f"s_cmp_lt_u32 s{S_WAVE}, 7")
    o(f"s_cbranch_scc0 B_s5_skip")
    o(f"v_add_u32 v3, {B_DEG}, v10")
    o(f"ds_read_b32 v{vN_D}, v3")
    o(f"s_movk_i32 s{S_A}, {NPB}")
    o("s_waitcnt lgkmcnt(0)")
    o(f"v_min_u32 v{vBIN}, 63, v{vN_D}")
    o(f"v_sub_u32 v{vBIN}, 63, v{vBIN}")
    o(f"v_lshlrev_b32 v{vBIN}, 2, v{vBIN}")
    o(f"v_add_u32 v3, {B_HIST}, v{vBIN}")
    o(f"v_cmpx_gt_u32 vcc, s{S_A}, v0")
    o(f"ds_add_rtn_u32 v{vR2}, v3, v15")
    o(f"v_cmpx_lt_u32 vcc, 63, v{vN_D}")
    o(f"ds_write_b32 v1, v15")
    o("s_mov_b64 exec, -1")
    o("s_waitcnt lgkmcnt(0)")
    o("B_s5_skip:")
    o("s_barrier")
    vPOS = 67
    o(f"s_cmp_lt_u32 s{S_WAVE}, 7")
    o(f"s_cbranch_scc0 B_s6_skip")
    o(f"v_lshlrev_b32 v3, 2, v2")
    o(f"v_add_u32 v3, {B_HIST}, v3")
    o(f"ds_read_b32 v9, v3")
    o("s_waitcnt lgkmcnt(0)")
    o(f"v_mov_b32 v14, v9")
    scan64(o, 14)
    o(f"v_sub_u32 v14, v14, v9")
    o(f"ds_bpermute_b32 v{vPOS}, v{vBIN}, v14")
    o(f"v_lshl_or_b32 v9, v{vN_D}, 16, v0")
    o("s_waitcnt lgkmcnt(0)")
    o(f"v_add_u32 v{vPOS}, v{vPOS}, v{vR2}")
    o(f"v_lshlrev_b32 v3, 2, v{vPOS}")
    o(f"v_add_u32 v3, {B_SNODE}, v3")
    o(f"v_cmpx_gt_u32 vcc, s{S_A}, v0")
    o(f"ds_write_b32 v3, v9")
    o("s_mov_b64 exec, -1")
    o("s_waitcnt lgkmcnt(0)")
    o("B_s6_skip:")
    o("s_barrier")
    vL, vTB = 68, 69
    o(f"v_lshrrev_b32 v3, 2, v2")
    o(f"v_and_b32 v9, 1, v2")
    o(f"v_mul_u32_u24 v9, 15, v9")
    o(f"v_xor_b32 v3, v3, v9")
    o(f"v_and_b32 v9, 3, v2")
    o(f"v_lshl_add_u32 v3, v9, 4, v3")
    o(f"v_cmp_gt_u32 vcc, 49, v3")
    o(f"v_min_u32 v3, 48, v3")
    o(f"v_lshlrev_b32 v3, 5, v3")
    o(f"v_add_u32 v3, {B_SNODE}, v3")
    o(f"ds_read_b32 v{vL}, v3")
    o(f"ds_read_b32 v9, v1")
    o("s_waitcnt lgkmcnt(0)")
    o(f"v_lshrrev_b32 v{vL}, 16, v{vL}")
    o(f"v_cndmask_b32 v{vL}, 0, v{vL}, vcc")
    o(f"v_readfirstlane_b32 s{S_B}, v9")
    o(f"v_mov_b32 v{vTB}, v{vL}")
    scan64(o, vTB)
    o("s_nop 0")
    o(f"v_readlane_b32 s{S_A}, v{vTB}, 63")
    o(f"v_sub_u32 v{vTB}, v{vTB}, v{vL}")
    o(f"s_cmp_gt_u32 s{S_A}, {ELL_ITERS-8}")
    o(f"s_cbranch_scc1 B_slow")
    o(f"s_cmp_lg_u32 s{S_B}, 0")
    o(f"s_cbranch_scc1 B_slow")
    o(f"s_lshl_b32 s{S_A}, s{S_WAVE}, 2")
    o(f"v_readlane_b32 s{S_CNT}, v{vL}, s{S_A}")
    o(f"v_readlane_b32 s{S_C}, v{vTB}, s{S_A}")
    o(f"s_add_u32 s{S_A}, s{S_A}, 1")
    o(f"v_readlane_b32 s{S_L1}, v{vL}, s{S_A}")
    o(f"s_add_u32 s{S_A}, s{S_A}, 1")
    o(f"v_readlane_b32 s{S_L2}, v{vL}, s{S_A}")
    o(f"s_add_u32 s{S_A}, s{S_A}, 1")
    o(f"v_readlane_b32 s{S_L3}, v{vL}, s{S_A}")
    o(f"s_cmp_lt_u32 s{S_WAVE}, 7")
    o(f"s_cbranch_scc0 B_s7_skip")
    o(f"v_lshrrev_b32 v3, 7, v{vPOS}")
    o(f"v_bfe_u32 v9, v{vPOS}, 3, 4")
    o(f"v_and_b32 v14, 1, v3")
    o(f"v_mul_u32_u24 v14, 15, v14")
    o(f"v_xor_b32 v9, v9, v14")
    o(f"v_lshl_add_u32 v3, v9, 2, v3")
    o(f"v_lshlrev_b32 v3, 2, v3")
    o(f"ds_bpermute_b32 v9, v3, v{vTB}")
    o(f"v_and_b32 v14, 7, v{vPOS}")
    o(f"v_lshlrev_b32 v14, 3, v14")
    o(f"v_add_u32 v14, {B_ELL}, v14")
    o(f"v_add_u32 v3, {B_SLOT}, v10")
    o(f"s_movk_i32 s{S_A}, {NPB}")
    o("s_waitcnt lgkmcnt(0)")
    o(f"v_lshl_add_u32 v9, v9, 6, v14")
    o(f"v_cmpx_gt_u32 vcc, s{S_A}, v0")
    o(f"ds_write_b32 v3, v9")
    o("s_mov_b64 exec, -1")
    o("s_waitcnt lgkmcnt(0)")
    o("B_s7_skip:")
    o("s_barrier")
    o(f"v_mov_b32 v3, v{vIDX}")
    for r in range(12):
        o(f"v_cmpx_gt_u32 vcc, v{vCNT}, v3")
        o(f"s_cbranch_execz B_s8a_done")
        o(f"ds_read_b32 v{vDA+r}, v{vDA+r} offset:{B_SLOT-B_DEG}")
        o(f"v_and_b32 v{vREC+2*r}, 0x3fffff, v{vREC+2*r}")
        if r < 11: o(f"v_add_u32 v3, {1 if r % 2 == 0 else 7}, v3")
    o("B_s8a_done:")
    o("s_mov_b64 exec, -1")
    o(f"v_mov_b32 v3, v{vIDX}")
    o("s_waitcnt lgkmcnt(0)")
    for r in range(12):
        o(f"v_cmpx_gt_u32 vcc, v{vCNT}, v3")
        o(f"s_cbranch_execz B_s8b_done")
        o(f"v_lshl_add_u32 v{vDA+r}, v{vRK+r}, 6, v{vDA+r}")
        o(f"ds_write_b64 v{vDA+r}, {vr(vREC+2*r,2)}")
        if r < 11: o(f"v_add_u32 v3, {1 if r % 2 == 0 else 7}, v3")
    o("B_s8b_done:")
    o("s_mov_b64 exec, -1")
    vWX = 70
    vEA = 74
    vDen = 78; vNum = 82
    vU = 86
    vNQ = 88
    vXQ = 92
    vT = 100
    vLO = 108
    vLA = 109
    vOB = 110
    vOA = 111
    vAU = 112
    vDK = 16
    vRKk = vDK + 4*PD
    def wc_setup():
        o(f"v_lshlrev_b32 v{vWX}, 16, v{vWC}")
        o(f"v_lshlrev_b32 v{vWX+1}, 16, v{vWC+1}")
        o(f"v_and_b32 v{vWX+2}, 0xffff0000, v{vWC}")
        o(f"v_and_b32 v{vWX+3}, 0xffff0000, v{vWC+1}")
        for i in range(4): o(f"v_mul_f32 v{vWX+i}, s{S_CT}, v{vWX+i}")
        o(f"v_lshlrev_b32 v{vLO}, 4, v8")
        o(f"s_lshl_b32 s{S_A}, s{S_NODE0}, 8")
        o(f"s_lshl_b32 s{S_B}, s{S_SLICE}, 6")
        o(f"s_add_u32 s{S_A}, s{S_A}, s{S_B}")
        o(f"v_lshl_add_u32 v{vOB}, v8, 3, s{S_A}")
    wc_setup()
    o(f"v_lshrrev_b32 v3, 3, v2")
    o(f"v_lshlrev_b32 v9, 2, v3")
    o(f"s_lshl_b32 s{S_A}, s{S_WAVE}, 5")
    o(f"s_sub_u32 s{S_B}, {31*32}, s{S_A}")
    o(f"v_add_u32 v14, s{S_A}, v9")
    o(f"v_add_u32 v9, {B_SNODE}, v9")
    o(f"v_add_u32 v14, {B_SNODE}, v14")
    o(f"v_add_u32 v13, s{S_B}, v9")
    o(f"ds_read_b32 v{vNQ}, v14")
    o(f"ds_read_b32 v{vNQ+1}, v13")
    o(f"ds_read_b32 v{vNQ+2}, v14 offset:{32*32}")
    o(f"ds_read_b32 v{vNQ+3}, v9 offset:{48*32}")
    o(f"s_lshl_b32 s{S_C}, s{S_C}, 6")
    o(f"s_add_u32 s{S_C}, s{S_C}, {B_ELL}")
    o(f"v_lshl_add_u32 v{vLA}, v3, 3, s{S_C}")
    o(f"s_cmp_eq_u32 s{S_WAVE}, 15")
    o(f"s_cselect_b32 s{S_NT}, 4, 3")
    o("s_waitcnt lgkmcnt(0)")
    for i in range(4):
        o(f"v_and_b32 v{vNQ+i}, 0xffff, v{vNQ+i}")
        o(f"v_lshl_add_u32 v3, v{vNQ+i}, 8, v{vOB}")
        o(f"buffer_load_dwordx2 {vr(vXQ+2*i,2)}, v3, {sr(R_X,4)}, 0 offen")
    o("s_barrier")
    for k in range(PD):
        o(f"ds_read_b64 {vr(vRKk+2*k,2)}, v{vLA} offset:{k*64}")
    for k in range(PD):
        o(f"s_waitcnt lgkmcnt({PD-1-k})")
        o(f"v_or_b32 v{vRKk+2*k}, v{vRKk+2*k}, v{vLO}")
        o(f"buffer_load_dwordx4 {vr(vDK+4*k,4)}, v{vRKk+2*k}, {sr(R_TAB,4)}, 0 offen{SC}")
    def au_read():
        o(f"v_and_b32 v3, 7, v{vNQ}")
        o(f"v_xor_b32 v3, v3, v8")
        o(f"v_lshlrev_b32 v3, 4, v3")
        o(f"v_lshl_add_u32 v3, v{vNQ}, 7, v3")
        o(f"ds_read_b128 {vr(vAU,4)}, v3")
    def promote():
        o(f"v_lshl_add_u32 v{vOA}, v{vNQ}, 8, v{vOB}")
        for i in range(4): o(f"v_mov_b32 v{vDen+i}, 0")
        for i in range(4): o(f"v_mov_b32 v{vNum+i}, 0")
        o("s_waitcnt lgkmcnt(0)")
        o(f"v_lshlrev_b64 {vr(vEA,2)}, 16, {vr(vAU,2)}")
        o(f"v_exp_f32 v{vEA+2}, v{vAU}")
        o(f"v_exp_f32 v{vEA+3}, v{vAU+1}")
        o(f"v_exp_f32 v{vEA}, v{vEA}")
        o(f"v_exp_f32 v{vEA+1}, v{vEA+1}")
        o(f"v_mov_b32 v{vU}, v{vAU+2}")
        o(f"v_mov_b32 v{vU+1}, v{vAU+3}")
    au_read()
    promote()
    o(f"s_waitcnt vmcnt({PD})")
    o(f"s_sub_u32 s{S_CNT}, s{S_CNT}, 1")
    o(f"s_cbranch_scc1 M_sw{PD-1}")
    o("M_loop:")
    for k in range(PD):
        D = vDK + 4*k; R = vRKk + 2*k
        o(f"M_it{k}:")
        o(f"s_waitcnt vmcnt({PD-1})")
        o(f"v_lshlrev_b64 {vr(vT,2)}, 16, {vr(D,2)}")
        o(f"v_pk_fma_f32 {vr(vT+2,2)}, {vr(R,2)}, {vr(vWX+2,2)}, {vr(D,2)} op_sel:[1,0,0] op_sel_hi:[1,1,1]")
        o(f"v_pk_fma_f32 {vr(vT,2)}, {vr(R,2)}, {vr(vWX,2)}, {vr(vT,2)} op_sel:[1,0,0] op_sel_hi:[1,1,1]")
        o(f"ds_read_b64 {vr(R,2)}, v{vLA} offset:{(k+PD)*64}")
        o(f"v_exp_f32 v{vT+2}, v{vT+2}")
        o(f"v_exp_f32 v{vT+3}, v{vT+3}")
        o(f"v_exp_f32 v{vT}, v{vT}")
        o(f"v_exp_f32 v{vT+1}, v{vT+1}")
        o(f"v_lshlrev_b64 {vr(vT+4,2)}, 16, {vr(D+2,2)}")
        o(f"v_pk_fma_f32 {vr(vT+2,2)}, {vr(vT+2,2)}, {vr(vEA+2,2)}, 1.0 op_sel_hi:[1,1,0]")
        o(f"v_pk_fma_f32 {vr(vT,2)}, {vr(vT,2)}, {vr(vEA,2)}, 1.0 op_sel_hi:[1,1,0]")
        if k == PD-1:
            o(f"v_add_u32 v{vLA}, {PD*64}, v{vLA}")
        o(f"v_rcp_f32 v{vT+2}, v{vT+2}")
        o(f"v_rcp_f32 v{vT+3}, v{vT+3}")
        o(f"v_rcp_f32 v{vT}, v{vT}")
        o(f"v_rcp_f32 v{vT+1}, v{vT+1}")
        o(f"v_pk_add_f32 {vr(vDen+2,2)}, {vr(vDen+2,2)}, {vr(vT+2,2)}")
        o(f"v_pk_fma_f32 {vr(vNum+2,2)}, {vr(vT+2,2)}, {vr(D+2,2)}, {vr(vNum+2,2)}")
        o(f"v_pk_add_f32 {vr(vDen,2)}, {vr(vDen,2)}, {vr(vT,2)}")
        o(f"v_pk_fma_f32 {vr(vNum,2)}, {vr(vT,2)}, {vr(vT+4,2)}, {vr(vNum,2)}")
        o("s_waitcnt lgkmcnt(0)")
        o(f"v_or_b32 v{R}, v{R}, v{vLO}")
        o(f"s_sub_u32 s{S_CNT}, s{S_CNT}, 1")
        o(f"buffer_load_dwordx4 {vr(D,4)}, v{R}, {sr(R_TAB,4)}, 0 offen{SC}")
        o(f"s_cbranch_scc1 M_sw{k}")
    o("s_branch M_loop")
    for k in range(PD):
        o(f"M_sw{k}:")
        o(f"s_sub_u32 s{S_NT}, s{S_NT}, 1")
        for i in range(3): o(f"v_mov_b32 v{vNQ+i}, v{vNQ+i+1}")
        au_read()
        finalize(o, vDen, vNum, vU, vXQ, vT, vOA)
        o(f"s_cmp_eq_u32 s{S_NT}, 0")
        o(f"s_cbranch_scc1 B_end")
        for i in range(6): o(f"v_mov_b32 v{vXQ+i}, v{vXQ+i+2}")
        promote()
        o(f"s_sub_u32 s{S_CNT}, s{S_L1}, 1")
        o(f"s_mov_b32 s{S_L1}, s{S_L2}")
        o(f"s_mov_b32 s{S_L2}, s{S_L3}")
        o(f"s_cbranch_scc1 M_sw{k}")
        o(f"s_branch M_it{(k+1)%PD}")
    o("B_slow:")
    wc_setup()
    vG, vI, vA2, vLOC = 16, 17, 18, 19
    vR2_, vD2, vAU2, vT2 = 20, 24, 28, 32
    vAcc = 44
    o(f"v_lshrrev_b32 v{vG}, 3, v0")
    o(f"s_mov_b32 s{S_HALFI}, 0")
    o("S_half:")
    o("s_barrier")
    for i in range(4): o(f"v_mov_b32 v{vD2+i}, 0")
    o(f"v_lshlrev_b32 v3, 4, v0")
    o(f"v_add_u32 v3, {B_ELL}, v3")
    for i in range(4): o(f"ds_write_b128 v3, {vr(vD2,4)} offset:{i*16384}")
    o("s_waitcnt lgkmcnt(0)")
    o("s_barrier")
    o(f"s_mov_b32 s{S_PP}, 0")
    o("S_piece:")
    o(f"v_add_u32 v3, s{S_PP}, v{vG}")
    o(f"v_lshlrev_b32 v5, 8, v3")
    o(f"s_lshl_b32 s{S_A}, s{S_BUCKET}, 2")
    o(f"s_add_u32 s{S_A}, s{S_A}, {OFF_OFF}")
    o(f"buffer_load_dword v4, v5, {sr(R_WS,4)}, s{S_A} offen{SC}")
    o(f"s_movk_i32 s{S_A}, {SEG}")
    o(f"v_mul_u32_u24 v{vA2}, s{S_A}, v3")
    o(f"v_mov_b32 v{vI}, 0")
    o("s_waitcnt vmcnt(0)")
    o(f"v_and_b32 v5, 0xffff, v4")
    o(f"v_lshrrev_b32 v4, 16, v4")
    o(f"v_lshl_add_u32 v{vA2}, v5, 3, v{vA2}")
    o(f"s_mov_b32 s{S_A}, {REC_OFF}")
    o(f"s_mul_i32 s{S_B}, s{S_HALFI}, 196")
    o(f"s_movk_i32 s{S_C}, 196")
    o("S_rec:")
    o(f"v_cmpx_gt_u32 vcc, v4, v{vI}")
    o(f"s_cbranch_execz S_rec_done")
    o(f"buffer_load_dwordx2 {vr(vR2_,2)}, v{vA2}, {sr(R_WS,4)}, s{S_A} offen{SC}")
    o("s_waitcnt vmcnt(0)")
    o(f"v_lshrrev_b32 v5, 22, v{vR2_}")
    o(f"v_subrev_u32 v{vLOC}, s{S_B}, v5")
    o(f"v_and_b32 v{vR2_}, 0x3fffff, v{vR2_}")
    o(f"v_or_b32 v{vR2_}, v{vR2_}, v{vLO}")
    o(f"v_and_b32 v3, 7, v5")
    o(f"v_xor_b32 v3, v3, v8")
    o(f"v_lshlrev_b32 v3, 4, v3")
    o(f"v_lshl_add_u32 v3, v5, 7, v3")
    o(f"v_lshlrev_b32 v{vAcc}, 8, v{vLOC}")
    o(f"v_lshl_add_u32 v{vAcc}, v8, 5, v{vAcc}")
    o(f"v_add_u32 v{vAcc}, {B_ELL}, v{vAcc}")
    o(f"v_cmpx_gt_u32 vcc, s{S_C}, v{vLOC}")
    o(f"s_cbranch_execz S_rec_next")
    o(f"buffer_load_dwordx4 {vr(vD2,4)}, v{vR2_}, {sr(R_TAB,4)}, 0 offen{SC}")
    o(f"ds_read_b128 {vr(vAU2,4)}, v3")
    o("s_waitcnt vmcnt(0) lgkmcnt(0)")
    T = vT2
    o(f"v_lshlrev_b64 {vr(T,2)}, 16, {vr(vD2,2)}")
    o(f"v_lshlrev_b64 {vr(T+4,2)}, 16, {vr(vD2+2,2)}")
    o(f"v_lshlrev_b64 {vr(T+6,2)}, 16, {vr(vAU2,2)}")
    o(f"v_pk_add_f32 {vr(T,2)}, {vr(T,2)}, {vr(T+6,2)}")
    o(f"v_pk_add_f32 {vr(T+2,2)}, {vr(vD2,2)}, {vr(vAU2,2)}")
    o(f"v_pk_fma_f32 {vr(T,2)}, {vr(vR2_,2)}, {vr(vWX,2)}, {vr(T,2)} op_sel:[1,0,0] op_sel_hi:[1,1,1]")
    o(f"v_pk_fma_f32 {vr(T+2,2)}, {vr(vR2_,2)}, {vr(vWX+2,2)}, {vr(T+2,2)} op_sel:[1,0,0] op_sel_hi:[1,1,1]")
    for i in range(4): o(f"v_exp_f32 v{T+i}, v{T+i}")
    o("s_nop 0")
    o(f"v_pk_add_f32 {vr(T,2)}, {vr(T,2)}, 1.0 op_sel_hi:[1,0]")
    o(f"v_pk_add_f32 {vr(T+2,2)}, {vr(T+2,2)}, 1.0 op_sel_hi:[1,0]")
    for i in range(4): o(f"v_rcp_f32 v{T+i}, v{T+i}")
    o("s_nop 0")
    o(f"v_pk_mul_f32 {vr(T+4,2)}, {vr(T+4,2)}, {vr(T,2)}")
    o(f"v_pk_mul_f32 {vr(T+6,2)}, {vr(vD2+2,2)}, {vr(T+2,2)}")
    for i in range(8): o(f"ds_add_f32 v{vAcc}, v{T+i} offset:{4*i}")
    o("S_rec_next:")
    o("s_mov_b64 exec, -1")
    o(f"v_add_u32 v{vI}, 1, v{vI}")
    o(f"v_add_u32 v{vA2}, 8, v{vA2}")
    o("s_branch S_rec")
    o("S_rec_done:")
    o("s_mov_b64 exec, -1")
    o(f"s_add_u32 s{S_PP}, s{S_PP}, 128")
    o(f"s_cmp_lt_u32 s{S_PP}, 256")
    o("s_cbranch_scc1 S_piece")
    o("s_waitcnt lgkmcnt(0)")
    o("s_barrier")
    o(f"s_mov_b32 s{S_PP}, 0")
    o("S_fin:")
    o(f"v_add_u32 v{vLOC}, s{S_PP}, v{vG}")
    o(f"v_add_u32 v5, s{S_B}, v{vLOC}")
    o(f"v_and_b32 v3, 7, v5")
    o(f"v_xor_b32 v3, v3, v8")
    o(f"v_lshlrev_b32 v3, 4, v3")
    o(f"v_lshl_add_u32 v3, v5, 7, v3")
    o(f"v_lshlrev_b32 v{vAcc}, 8, v{vLOC}")
    o(f"v_lshl_add_u32 v{vAcc}, v8, 5, v{vAcc}")
    o(f"v_add_u32 v{vAcc}, {B_ELL}, v{vAcc}")
    o(f"v_lshl_add_u32 v{vOA}, v5, 8, v{vOB}")
    o(f"v_cmpx_gt_u32 vcc, s{S_C}, v{vLOC}")
    o(f"s_cbranch_execz S_fin_next")
    o(f"buffer_load_dwordx2 {vr(vXQ,2)}, v{vOA}, {sr(R_X,4)}, 0 offen")
    o(f"ds_read_b128 {vr(vAU2,4)}, v3")
    o(f"ds_read_b128 {vr(vDen,4)}, v{vAcc}")
    o(f"ds_read_b128 {vr(vNum,4)}, v{vAcc} offset:16")
    o("s_waitcnt vmcnt(0) lgkmcnt(0)")
    finalize(o, vDen, vNum, vAU2+2, vXQ, vT, vOA)
    o("S_fin_next:")
    o("s_mov_b64 exec, -1")
    o(f"s_add_u32 s{S_PP}, s{S_PP}, 128")
    o(f"s_cmp_lt_u32 s{S_PP}, 256")
    o("s_cbranch_scc1 S_fin")
    o(f"s_add_u32 s{S_HALFI}, s{S_HALFI}, 1")
    o(f"s_cmp_lt_u32 s{S_HALFI}, 2")
    o("s_cbranch_scc1 S_half")
    o("B_end:")

def kd(name, vgpr, sgpr):
    return f""".amdhsa_kernel {name}
  .amdhsa_next_free_vgpr {vgpr}
  .amdhsa_next_free_sgpr {sgpr}
  .amdhsa_accum_offset {vgpr}
  .amdhsa_group_segment_fixed_size 0
  .amdhsa_kernarg_size 96
  .amdhsa_user_sgpr_count 2
  .amdhsa_user_sgpr_kernarg_segment_ptr 1
  .amdhsa_system_sgpr_workgroup_id_x 1
.end_amdhsa_kernel
"""

def main():
    ref = open(f"cdna_kernels/{NAME}.s.ref").read().split("\n")
    head = [l for l in ref if l.startswith(";") and "@launch" not in l and "Override launch" not in l and "grid=ceil" not in l]
    out = "\n".join(head) + "\n"
    out += f"; @launch kernel=ggcn_prep_kernel grid=(256,1,1) block=(1024,1,1) lds={A_SIZE}\n"
    out += f"; @launch kernel={NAME}_kernel grid=(256,1,1) block=(1024,1,1) lds={B_SIZE}\n"
    out += '.amdgcn_target "amdgcn-amd-amdhsa--gfx950"\n.text\n'
    o = Asm()
    for nm, body, ex in (("ggcn_prep_kernel", phase_a, "A_exit"), (f"{NAME}_kernel", phase_b, "B_exit")):
        o.lines.append(f".globl {nm}\n.p2align 8\n.type {nm},@function\n{nm}:")
        prologue(o, ex)
        body(o)
        o(f"{ex}:")
        o("s_endpgm")
    out += o.text()
    out += '.section .rodata,"a"\n.p2align 6\n' + kd("ggcn_prep_kernel", 128, 96) + ".p2align 6\n" + kd(f"{NAME}_kernel", 128, 96)
    path = sys.argv[1] if len(sys.argv) > 1 else f"cdna_kernels/{NAME}.s"
    open(path, "w").write(out)
    print("wrote", path, "A_SIZE", A_SIZE, "B_SIZE", B_SIZE)

main()
```

```python
import sys

NAME = "standalone__edge_featured_mpnn_gatedgcn__graph"
N = 25000; E = 400000
NPB = 392; CH = 1564
TSTRIDE = 25096*128
DUMMY_ROW = 25088
SEG = 12544
REC_OFF = 4*TSTRIDE
OFF_OFF = REC_OFF + 256*SEG
TF_OFF = OFF_OFF + 131072
WS_USED = TF_OFF + 2048
LOG2E_NEG = 0xBFB8AA3B; TINY = 0x03800000; EPS = 0x358637BD
SC = " sc1"
PD = 8
EARLY = 6
TEAM0 = 9
HISTA = 0; DEG = 256; HIST2 = DEG + 1600; FLAG = HIST2 + 256; SLOT = FLAG + 64; SNODE = SLOT + 1600; OFFL = SNODE + 1600
XT = OFFL + 1024; XTS = 8320
WOFF = XT + 13*XTS
RECS = WOFF + 32768
LDS_SIZE = RECS + SEG
AUX = XT; AUS = 200
ELL = AUX + 416*AUS
ELL_ITERS = 896
assert ELL + ELL_ITERS*64 <= RECS and ELL % 16 == 0 and XT % 128 == 0
F_STRUCT, F_RANGE, F_SOFT, F_OFFL, F_GO = FLAG, FLAG+4, FLAG+8, FLAG+12, FLAG+16

STAMP = None; OPT = set()
def st_reg(i): return 88 + 2*i if i < 7 else 36 + 2*(i-7)
def stamp(o, i):
    if STAMP is None: return
    o(f"s_memrealtime s[{st_reg(i)}:{st_reg(i)+1}]")
    o("s_waitcnt lgkmcnt(0)")
def stamp_flush(o, n):
    if STAMP is None: return
    o(f"s_cmp_eq_u32 s{S_WAVE}, {STAMP}")
    o(f"s_cbranch_scc0 L_stf")
    o(f"s_mov_b64 exec, 1")
    o(f"s_mov_b32 s{R_WS+2}, {64<<20}")
    o(f"s_lshl_b32 s{S_A}, s{S_WG}, 7")
    o(f"s_add_u32 s{S_A}, s{S_A}, {32<<20}")
    o(f"v_mov_b32 v0, 0")
    for i in range(n):
        o(f"v_mov_b32 v2, s{st_reg(i)}")
        o(f"v_mov_b32 v3, s{st_reg(i)+1}")
        o(f"buffer_store_dwordx2 v[2:3], v0, {sr(R_WS,4)}, s{S_A} offen offset:{8*i}")
    o(f"L_stf:")

class Asm:
    def __init__(self): self.lines = []
    def __call__(self, s):
        for l in s.split("\n"):
            l = l.strip()
            if l: self.lines.append(("" if l.endswith(":") else "    ") + l)
    def text(self): return "\n".join(self.lines) + "\n"

def vr(a, n): return f"v[{a}:{a+n-1}]"
def sr(a, n): return f"s[{a}:{a+n-1}]"

def srd(o, d, base, nbytes):
    o(f"s_mov_b32 s{d}, s{base}")
    o(f"s_and_b32 s{d+1}, s{base+1}, 0xffff")
    o(f"s_mov_b32 s{d+2}, {nbytes}")
    o(f"s_mov_b32 s{d+3}, 0x20000")

def scan64(o, v):
    for sh in (1, 2, 4, 8):
        o("s_nop 1")
        o(f"v_add_u32_dpp v{v}, v{v}, v{v} row_shr:{sh} row_mask:0xf bank_mask:0xf bound_ctrl:0")
    o("s_nop 1")
    o(f"v_add_u32_dpp v{v}, v{v}, v{v} row_bcast:15 row_mask:0xa bank_mask:0xf")
    o("s_nop 1")
    o(f"v_add_u32_dpp v{v}, v{v}, v{v} row_bcast:31 row_mask:0xc bank_mask:0xf")

def gemm_pair(o, vW, vX, aP, aQ, vWaddr, base_off):
    def rd(t):
        for m in range(2):
            b = vW + (t & 1)*8 + m*4
            o(f"ds_read_b64_tr_b16 {vr(b,2)}, v{vWaddr} offset:{base_off + m*8192 + t*1024}")
            o(f"ds_read_b64_tr_b16 {vr(b+2,2)}, v{vWaddr} offset:{base_off + m*8192 + t*1024 + 256}")
    rd(0); rd(1)
    for t in range(8):
        o(f"s_waitcnt lgkmcnt({4 if t < 7 else 0})")
        for m, acc in enumerate((aP, aQ)):
            b = vW + (t & 1)*8 + m*4
            c = "0" if t == 0 else vr(acc, 16)
            o(f"v_mfma_f32_32x32x16_bf16 {vr(acc,16)}, {vr(b,4)}, {vr(vX+4*t,4)}, {c}")
        if t + 2 < 8: rd(t+2)
    o("s_nop 15")

def encode4(o, a, d):
    for i in range(4):
        o(f"v_add_u32 v{a+i}, s{S_HALF}, v{a+i}")
    for i in range(1, 4):
        o(f"v_sub_u32_sdwa v{a+i}, v{a+i}, v{a+i-1} dst_sel:DWORD dst_unused:UNUSED_PAD src0_sel:DWORD src1_sel:WORD_1")
    o(f"v_perm_b32 v{d}, v{a+1}, v{a}, s{S_PERM}")
    o(f"v_perm_b32 v{d+1}, v{a+3}, v{a+2}, s{S_PERM}")

def scale_p(o, aP):
    for i in range(0, 16, 2):
        o(f"v_pk_fma_f32 {vr(aP+i,2)}, {vr(aP+i,2)}, {sr(S_CT,2)}, {sr(S_CT,2)} op_sel:[0,0,1] op_sel_hi:[1,0,1]")
def scale_q(o, aQ):
    for i in range(0, 16, 2):
        o(f"v_pk_add_f32 {vr(aQ+i,2)}, {vr(aQ+i,2)}, {sr(S_CT,2)} op_sel:[0,1] op_sel_hi:[1,1]")

S_WG = 2; S_NK = 3
S_X, S_E, S_SRC, S_DST, S_WA, S_WB, S_WC, S_WU, S_WV, S_OUT, S_DBG, S_WS = 4, 6, 8, 10, 12, 14, 16, 18, 20, 22, 24, 26
S_MSK = 4
R_WS = 28; R_W = 32; R_T0 = 36; R_T1 = 40; R_T2 = 44; R_X = 48; R_TAB = 52; R_OUT = 56; R_DBG = 60
S_WAVE = 64; S_HALF = 65; S_PERM = 66; S_SLICE = 67
S_CT = 68; S_EX = 70; S_EPS = 72
S_A = 74; S_B = 75; S_C = 76; S_D = 77
S_BUCKET = 78; S_NODE0 = 79
S_CNT = 80; S_L1 = 81; S_L2 = 82; S_L3 = 83; S_NT = 84; S_MODE = 85; S_NH = 86; S_SPIN = 87
S_HALFI = S_L1; S_PP = S_L2
vZ = 13

def spin_bound(o): o(f"s_mov_b32 s{S_SPIN}, 0x40000")
def spin_tail(o, lab, sleep):
    if sleep: o(f"s_sleep {sleep}")
    o(f"s_sub_u32 s{S_SPIN}, s{S_SPIN}, 1")
    o(f"s_cbranch_scc0 {lab}")

def lds_wait(o, lab, off, target, vT, sleep=1):
    spin_bound(o)
    o(f"{lab}:")
    o(f"ds_read_b32 v{vT}, v{vZ} offset:{off}")
    o("s_waitcnt lgkmcnt(0)")
    o(f"v_readfirstlane_b32 s{S_A}, v{vT}")
    o(f"s_cmp_ge_u32 s{S_A}, {target}")
    o(f"s_cbranch_scc1 {lab}_ok")
    spin_tail(o, lab, sleep)
    o(f"{lab}_ok:")

def soft_barrier(o, lab, target, vT):
    o("s_waitcnt lgkmcnt(0)")
    o("s_mov_b64 exec, 1")
    o(f"ds_add_u32 v{vZ}, v15 offset:{F_SOFT}")
    o("s_mov_b64 exec, -1")
    lds_wait(o, lab, F_SOFT, target, vT, 0)

def get_tag(o, lab):
    spin_bound(o)
    o(f"{lab}:")
    o(f"buffer_load_dwordx2 v[6:7], v{vZ}, {sr(R_DBG,4)}, 0 offen sc1")
    o("s_waitcnt vmcnt(0)")
    o(f"v_readfirstlane_b32 s{S_NK}, v6")
    o(f"v_readfirstlane_b32 s{S_NH}, v7")
    o(f"s_cmp_lg_u32 s{S_NH}, 0")
    o(f"s_cbranch_scc1 {lab}_ok")
    spin_tail(o, lab, 4)
    o(f"{lab}_ok:")

def poll_tables(o, lab):
    o(f"v_lshlrev_b32 v3, 3, v2")
    o(f"s_lshl_b32 s{S_B}, s{S_SLICE}, 9")
    o(f"s_add_u32 s{S_B}, s{S_B}, {TF_OFF}")
    spin_bound(o)
    o(f"{lab}:")
    o(f"buffer_load_dwordx2 v[6:7], v3, {sr(R_WS,4)}, s{S_B} offen sc1")
    o("s_waitcnt vmcnt(0)")
    o(f"v_xor_b32 v6, s{S_NK}, v6")
    o(f"v_xor_b32 v7, s{S_NH}, v7")
    o(f"v_or_b32 v6, v6, v7")
    o(f"v_cmp_ne_u32 vcc, 0, v6")
    o(f"s_cbranch_vccz {lab}_ok")
    spin_tail(o, lab, 2)
    o(f"{lab}_ok:")

def finalize(o, vDen, vNum, vU, vXr, vT, vOA):
    o(f"v_pk_add_f32 {vr(vDen,2)}, {vr(vDen,2)}, {sr(S_EPS,2)}")
    o(f"v_pk_add_f32 {vr(vDen+2,2)}, {vr(vDen+2,2)}, {sr(S_EPS,2)}")
    o(f"v_lshlrev_b64 {vr(vT,2)}, 16, {vr(vU,2)}")
    for i in range(4): o(f"v_rcp_f32 v{vDen+i}, v{vDen+i}")
    o(f"v_lshlrev_b32 v{vT+4}, 16, v{vXr}")
    o(f"v_lshlrev_b32 v{vT+5}, 16, v{vXr+1}")
    o(f"v_pk_fma_f32 {vr(vT,2)}, {vr(vNum,2)}, {vr(vDen,2)}, {vr(vT,2)}")
    o(f"v_pk_fma_f32 {vr(vT+2,2)}, {vr(vNum+2,2)}, {vr(vDen+2,2)}, {vr(vU,2)}")
    o(f"v_and_b32 v{vT+6}, 0xffff0000, v{vXr}")
    o(f"v_and_b32 v{vT+7}, 0xffff0000, v{vXr+1}")
    for i in range(4): o(f"v_max_f32 v{vT+i}, 0, v{vT+i}")
    o(f"v_pk_add_f32 {vr(vT,2)}, {vr(vT,2)}, {vr(vT+4,2)}")
    o(f"v_pk_add_f32 {vr(vT+2,2)}, {vr(vT+2,2)}, {vr(vT+6,2)}")
    o(f"v_cvt_pk_bf16_f32 v{vT+4}, v{vT}, v{vT+2}")
    o(f"v_cvt_pk_bf16_f32 v{vT+5}, v{vT+1}, v{vT+3}")
    o(f"buffer_store_dwordx2 {vr(vT+4,2)}, v{vOA}, {sr(R_OUT,4)}, 0 offen")

def kernel(o):
    vX = 16; vW = 48; aP = 64; aQ = 80; vD = 96; vREC = 104
    vWC = 10
    NT = 16 - TEAM0
    o(f"s_cmp_ge_u32 s{S_WG}, 256")
    o(f"s_cbranch_scc1 L_exit")
    stamp(o, 0)
    o(f"s_load_dwordx16 s[4:19], s[0:1], 0")
    o(f"s_load_dwordx8 s[20:27], s[0:1], 64")
    o(f"v_lshrrev_b32 v1, 6, v0")
    o(f"v_and_b32 v2, 63, v0")
    o(f"v_readfirstlane_b32 s{S_WAVE}, v1")
    o(f"v_lshlrev_b32 v9, 2, v0")
    o(f"v_mov_b32 v{vZ}, 0")
    o(f"s_movk_i32 s{S_A}, {SLOT//4}")
    o(f"v_cmpx_gt_u32 vcc, s{S_A}, v0")
    o(f"ds_write_b32 v9, v{vZ}")
    o("s_mov_b64 exec, -1")
    o(f"s_cmp_lt_u32 s{S_WAVE}, {TEAM0}")
    o(f"s_cbranch_scc1 L_noprio")
    o("s_setprio 3")
    o("L_noprio:")
    o(f"s_mov_b32 s{S_HALF}, 0x8000")
    o(f"s_mov_b32 s{S_PERM}, 0x07060302")
    o(f"s_mov_b32 s{S_CT}, {LOG2E_NEG:#x}")
    o(f"s_mov_b32 s{S_CT+1}, {TINY:#x}")
    o(f"s_mov_b32 s{S_EPS}, {EPS:#x}")
    o(f"s_mov_b32 s{S_EPS+1}, {EPS:#x}")
    o(f"s_bfe_u32 s{S_SLICE}, s{S_WG}, 0x20001")
    o(f"s_lshr_b32 s{S_BUCKET}, s{S_WG}, 3")
    o(f"s_and_b32 s{S_A}, s{S_WG}, 1")
    o(f"s_lshl_b32 s{S_A}, s{S_A}, 5")
    o(f"s_add_u32 s{S_BUCKET}, s{S_BUCKET}, s{S_A}")
    o(f"s_mul_i32 s{S_NODE0}, s{S_BUCKET}, {NPB}")
    o(f"v_mov_b32 v15, 1")
    o(f"v_and_b32 v1, 7, v2")
    o(f"v_lshlrev_b32 v14, 3, v1")
    o(f"v_subrev_u32 v4, {TEAM0*64}, v0")
    o(f"v_lshlrev_b32 v3, 4, v4")
    o(f"v_lshlrev_b32 v5, 3, v4")
    o(f"s_mul_i32 s{S_C}, s{S_WG}, {CH*4}")
    o(f"s_mul_i32 s{S_B}, s{S_WG}, {CH*2}")
    o("s_waitcnt lgkmcnt(0)")
    srd(o, R_T0, S_DST, E*4)
    srd(o, R_T1, S_SRC, E*4)
    srd(o, R_T2, S_E, E*2)
    vDST, vSRC, vE, vB, vR, vRec = 16, 20, 24, 28, 32, 36
    o(f"s_cmp_lt_u32 s{S_WAVE}, {TEAM0}")
    o(f"s_cbranch_scc1 L_noedge")
    o(f"buffer_load_dwordx4 {vr(vDST,4)}, v3, {sr(R_T0,4)}, s{S_C} offen")
    o(f"buffer_load_dwordx4 {vr(vSRC,4)}, v3, {sr(R_T1,4)}, s{S_C} offen")
    o(f"buffer_load_dwordx2 {vr(vE,2)}, v5, {sr(R_T2,4)}, s{S_B} offen")
    o("L_noedge:")
    srd(o, R_X, S_X, N*256)
    srd(o, R_WS, S_WS, WS_USED)
    srd(o, R_OUT, S_OUT, N*256)
    srd(o, R_DBG, S_DBG, 256)
    o(f"s_mul_i32 s{S_A}, s{S_SLICE}, {TSTRIDE}")
    o(f"s_add_u32 s{R_TAB}, s{S_WS}, s{S_A}")
    o(f"s_addc_u32 s{R_TAB+1}, s{S_WS+1}, 0")
    o(f"s_and_b32 s{R_TAB+1}, s{R_TAB+1}, 0xffff")
    o(f"s_mov_b32 s{R_TAB+2}, {TSTRIDE}")
    o(f"s_mov_b32 s{R_TAB+3}, 0x20000")
    o("s_barrier")
    o(f"s_cmp_lt_u32 s{S_WAVE}, 13")
    o(f"s_cbranch_scc1 L_nowload")
    o(f"s_cmp_eq_u32 s{S_WAVE}, 13")
    o(f"s_cbranch_scc0 L_notag")
    o(f"s_cmp_eq_u32 s{S_WG}, 0")
    o(f"s_cbranch_scc0 L_notag")
    o(f"s_memrealtime {sr(S_EX,2)}")
    o("s_waitcnt lgkmcnt(0)")
    o(f"s_lshl_b32 s{S_A}, s{S_EX}, 22")
    o(f"s_lshr_b64 {sr(S_EX,2)}, {sr(S_EX,2)}, 10")
    o(f"s_or_b32 s{S_B}, s{S_EX}, 0x80000000")
    o(f"v_mov_b32 v6, s{S_A}")
    o(f"v_mov_b32 v7, s{S_B}")
    o("s_mov_b64 exec, 1")
    o(f"buffer_store_dwordx2 v[6:7], v{vZ}, {sr(R_DBG,4)}, 0 offen sc1")
    o("s_mov_b64 exec, -1")
    o("L_notag:")
    o(f"v_lshrrev_b32 v12, 2, v2")
    o(f"v_and_b32 v3, 3, v2")
    o(f"v_lshlrev_b32 v3, 4, v3")
    o(f"v_lshl_add_u32 v12, v12, 8, v3")
    srcs = (S_NT, S_MODE, S_NH); dsts = (S_L1, S_L2, S_L3)
    for i in range(3):
        o(f"s_sub_u32 s{S_CNT}, s{S_WAVE}, {13 - 3*i}")
        if i == 2: o(f"s_min_u32 s{S_CNT}, s{S_CNT}, 7")
        o(f"s_lshl_b32 s{dsts[i]}, s{S_CNT}, 10")
        o(f"s_lshl_b32 s{S_A}, s{S_SLICE}, 1")
        o(f"s_xor_b32 s{S_A}, s{S_A}, s{S_CNT}")
        o(f"s_lshl_b32 s{S_A}, s{S_A}, 12")
        o(f"s_lshl_b32 s{S_B}, s{S_SLICE}, 6")
        o(f"s_add_u32 s{srcs[i]}, s{S_A}, s{S_B}")
    for m, P in enumerate((S_WB, S_WV, S_WA, S_WU)):
        srd(o, R_W, P, 32768)
        for i in range(3):
            o(f"s_add_u32 m0, s{dsts[i]}, {WOFF + 8192*m}")
            o("s_nop 0")
            o(f"buffer_load_dwordx4 v12, {sr(R_W,4)}, s{srcs[i]} offen lds")
    o("L_nowload:")
    srd(o, R_W, S_WC, 256)
    o(f"s_lshl_b32 s{S_B}, s{S_SLICE}, 6")
    o(f"buffer_load_dwordx2 {vr(vWC,2)}, v14, {sr(R_W,4)}, s{S_B} offen")
    o(f"s_cmp_lt_u32 s{S_WAVE}, {TEAM0}")
    o(f"s_cbranch_scc1 L_gemm")
    o(f"s_cmp_eq_u32 s{S_WG}, 255")
    o(f"s_movk_i32 s{S_C}, {CH//4}")
    o(f"s_cselect_b32 s{S_C}, {(E-255*CH)//4}, s{S_C}")
    o(f"s_mov_b32 s{S_B}, 42800")
    o(f"s_movk_i32 s{S_D}, {NPB}")
    o(f"s_cmp_lt_u32 s{S_WAVE}, 13")
    o(f"s_cbranch_scc0 L_we")
    o("s_waitcnt vmcnt(1)")
    o("L_we:")
    o("s_waitcnt vmcnt(13)")
    stamp(o, 1)
    for r in range(4):
        o(f"v_mul_u32_u24 v{vB+r}, s{S_B}, v{vDST+r}")
        o(f"v_lshrrev_b32 v{vB+r}, 24, v{vB+r}")
        o(f"v_mul_u32_u24 v3, s{S_D}, v{vB+r}")
        o(f"v_sub_u32 v3, v{vDST+r}, v3")
        o(f"v_lshlrev_b32 v3, 2, v3")
        o(f"v_lshl_or_b32 v{vRec+2*r}, v{vSRC+r}, 16, v3")
        o(f"v_lshlrev_b32 v{vB+r}, 2, v{vB+r}")
        if r & 1: o(f"v_and_b32 v{vRec+2*r+1}, 0xffff0000, v{vE+(r>>1)}")
        else:     o(f"v_lshlrev_b32 v{vRec+2*r+1}, 16, v{vE+(r>>1)}")
    o(f"v_cmpx_gt_u32 vcc, s{S_C}, v4")
    for r in range(4):
        o(f"ds_add_rtn_u32 v{vR+r}, v{vB+r}, v15 offset:{HISTA}")
    o("s_mov_b64 exec, -1")
    o(f"v_lshlrev_b32 v8, 2, v2")
    soft_barrier(o, "L_sb1", NT, 3)
    o(f"ds_read_b32 v6, v8 offset:{HISTA}")
    o("s_waitcnt lgkmcnt(0)")
    o(f"v_mov_b32 v7, v6")
    scan64(o, 7)
    o(f"v_sub_u32 v7, v7, v6")
    for r in range(4):
        o(f"ds_bpermute_b32 v{vDST+r}, v{vB+r}, v7")
    o(f"v_lshl_or_b32 v5, v6, 11, v7")
    o(f"v_mov_b32 v3, {RECS}")
    o("s_waitcnt lgkmcnt(0)")
    o(f"v_cmpx_gt_u32 vcc, s{S_C}, v4")
    for r in range(4):
        o(f"v_add_u32 v{vDST+r}, v{vDST+r}, v{vR+r}")
        o(f"v_lshl_add_u32 v{vDST+r}, v{vDST+r}, 3, v3")
        o(f"ds_write_b64 v{vDST+r}, {vr(vRec+2*r,2)}")
    o("s_mov_b64 exec, -1")
    o("s_waitcnt vmcnt(0)")
    soft_barrier(o, "L_sb2", 2*NT, 3)
    stamp(o, 2)
    o(f"s_cmp_lt_u32 s{S_WAVE}, 13")
    o(f"s_cbranch_scc1 L_gemm")
    o(f"s_cmp_eq_u32 s{S_WAVE}, 14")
    o(f"s_cbranch_scc1 L_w14")
    o(f"s_cmp_eq_u32 s{S_WAVE}, 13")
    o(f"s_cbranch_scc1 L_w13")
    o(f"v_lshlrev_b32 v4, 4, v2")
    o(f"v_add_u32 v12, {RECS}, v4")
    o(f"s_mul_i32 s{S_B}, s{S_WG}, {SEG}")
    o(f"s_add_u32 s{S_B}, s{S_B}, {REC_OFF}")
    for i in range(12):
        o(f"ds_read_b128 {vr(16+4*i,4)}, v12 offset:{i*1024}")
    o("s_mov_b64 exec, 0xffff")
    o(f"ds_read_b128 {vr(64,4)}, v12 offset:{12*1024}")
    o("s_mov_b64 exec, -1")
    for i in range(13):
        if i == 12: o("s_mov_b64 exec, 0xffff")
        if i and i % 4 == 0: o(f"s_add_u32 s{S_B}, s{S_B}, 4096")
        o(f"s_waitcnt lgkmcnt({12-i})")
        o(f"buffer_store_dwordx4 {vr(16+4*i,4)}, v4, {sr(R_WS,4)}, s{S_B} offen offset:{(i&3)*1024}{SC}")
    o("s_mov_b64 exec, -1")
    o(f"ds_write_b32 v{vZ}, v15 offset:{F_GO}")
    stamp(o, 3)
    get_tag(o, "L_ga")
    stamp(o, 4)
    o(f"v_or_b32 v6, s{S_NK}, v5")
    o(f"v_mov_b32 v7, s{S_NH}")
    o(f"v_lshlrev_b32 v3, 11, v2")
    o(f"s_lshl_b32 s{S_B}, s{S_WG}, 3")
    o(f"s_add_u32 s{S_B}, s{S_B}, {OFF_OFF}")
    o(f"buffer_store_dwordx2 v[6:7], v3, {sr(R_WS,4)}, s{S_B} offen{SC}")
    o("s_branch L_rec")
    o("L_w13:")
    o(f"s_cmp_eq_u32 s{S_BUCKET}, 63")
    o(f"s_cbranch_scc0 L_rec")
    o(f"v_lshlrev_b32 v3, 4, v2")
    o(f"v_add_u32 v3, {DUMMY_ROW*128}, v3")
    o(f"v_mov_b32 v16, 0x7f007f00")
    o(f"v_mov_b32 v17, 0x7f007f00")
    o(f"v_mov_b32 v18, 0")
    o(f"v_mov_b32 v19, 0")
    o("s_mov_b64 exec, 0xff")
    o(f"buffer_store_dwordx4 {vr(16,4)}, v3, {sr(R_TAB,4)}, 0 offen{SC}")
    o("s_mov_b64 exec, -1")
    o("s_branch L_rec")
    o("L_w14:")
    get_tag(o, "L_gb")
    o(f"v_lshlrev_b32 v3, 5, v2")
    o(f"s_lshl_b32 s{S_B}, s{S_BUCKET}, 11")
    o(f"s_add_u32 s{S_B}, s{S_B}, {OFF_OFF}")
    spin_bound(o)
    o("L_pa:")
    o(f"buffer_load_dwordx4 {vr(16,4)}, v3, {sr(R_WS,4)}, s{S_B} offen sc1")
    o(f"buffer_load_dwordx4 {vr(20,4)}, v3, {sr(R_WS,4)}, s{S_B} offen offset:16 sc1")
    o("s_waitcnt vmcnt(0)")
    for i in range(4):
        o(f"v_xor_b32 v{24+i}, s{S_NK}, v{16+2*i}")
        o(f"v_xor_b32 v{17+2*i}, s{S_NH}, v{17+2*i}")
    o(f"v_or3_b32 v6, v24, v25, v26")
    o(f"v_or_b32 v6, v6, v27")
    o(f"v_lshrrev_b32 v6, 22, v6")
    o(f"v_or3_b32 v6, v6, v17, v19")
    o(f"v_or3_b32 v6, v6, v21, v23")
    o(f"v_cmp_ne_u32 vcc, 0, v6")
    o(f"s_cbranch_vccz L_pa_ok")
    spin_tail(o, "L_pa", 6)
    o("L_pa_ok:")
    stamp(o, 3)
    o(f"v_lshlrev_b32 v3, 4, v2")
    o(f"ds_write_b128 v3, {vr(24,4)} offset:{OFFL}")
    o("s_waitcnt lgkmcnt(0)")
    o(f"ds_write_b32 v{vZ}, v15 offset:{F_OFFL}")
    o("s_branch L_rec")
    o("L_gemm:")
    o("s_setprio 0")
    o(f"v_lshrrev_b32 v12, 4, v2")
    o(f"v_lshlrev_b32 v3, 2, v12")
    o(f"v_and_b32 v4, 15, v2")
    o(f"v_xor_b32 v3, v3, v4")
    o(f"v_lshlrev_b32 v3, 4, v3")
    o(f"v_lshl_add_u32 v12, v12, 8, v3")
    o(f"s_cmp_lt_u32 s{S_WAVE}, {EARLY}")
    o(f"s_cbranch_scc1 L_go_ok")
    lds_wait(o, "L_go", F_GO, 1, 3)
    o(f"s_lshl_b32 s{S_A}, s{S_WAVE}, 5")
    o(f"s_add_u32 s{S_A}, s{S_A}, s{S_NODE0}")
    o(f"s_lshl_b32 s{S_A}, s{S_A}, 8")
    o(f"s_add_u32 s{S_B}, s{S_A}, 4096")
    o(f"s_mul_i32 s{S_C}, s{S_WAVE}, {XTS}")
    o(f"s_add_u32 s{S_C}, s{S_C}, {XT}")
    for i in range(8):
        o(f"s_add_u32 m0, s{S_C}, {16*i + (4096 if i >= 4 else 0)}")
        if i == 2: o(f"s_cmp_eq_u32 s{S_WAVE}, 12"); o("s_cbranch_scc1 L_xdone")
        else: o("s_nop 0")
        o(f"buffer_load_dwordx4 v12, {sr(R_X,4)}, s{S_B if i >= 4 else S_A} offen offset:{(i&3)*1024} lds")
    o("L_xdone:")
    if STAMP is not None and STAMP < TEAM0: stamp(o, 1)
    o(f"v_and_b32 v6, 31, v2")
    o(f"v_lshrrev_b32 v7, 5, v2")
    o(f"v_lshrrev_b32 v3, 2, v6")
    o(f"s_movk_i32 s{S_A}, 1040")
    o(f"v_mul_u32_u24 v3, s{S_A}, v3")
    o(f"v_and_b32 v12, 3, v6")
    o(f"v_lshl_add_u32 v3, v12, 8, v3")
    o(f"v_lshl_add_u32 v3, v7, 4, v3")
    o(f"v_add_u32 v3, s{S_C}, v3")
    o(f"v_xor_b32 v12, s{S_SLICE}, v12")
    for u in range(4):
        o(f"v_xor_b32 v4, {u}, v12")
        o(f"v_lshl_add_u32 v{vD+u}, v4, 6, v3")
    o(f"v_bfe_u32 v3, v2, 2, 2")
    o(f"v_lshl_add_u32 v8, v7, 3, v3")
    o(f"v_lshlrev_b32 v8, 6, v8")
    o(f"v_bfe_u32 v3, v2, 4, 1")
    o(f"v_lshl_add_u32 v8, v3, 5, v8")
    o(f"v_and_b32 v3, 3, v2")
    o(f"v_lshl_add_u32 v8, v3, 3, v8")
    o(f"v_add_u32 v8, {WOFF}, v8")
    o("s_waitcnt vmcnt(0)")
    stamp(o, 2 if STAMP is not None and STAMP < TEAM0 else 3)
    for t in range(8):
        o(f"ds_read_b128 {vr(vX+4*t,4)}, v{vD+(t>>1)} offset:{(t&1)*32}")
    lds_wait(o, "L_ww", F_SOFT, 2*NT, 3)
    gemm_pair(o, vW, vX, aP, aQ, 8, 0)
    scale_p(o, aP); scale_q(o, aQ)
    o(f"v_and_b32 v3, 7, v6")
    o(f"v_xor_b32 v3, v3, v7")
    o(f"v_lshlrev_b32 v3, 4, v3")
    o(f"v_lshl_add_u32 v3, v6, 7, v3")
    o(f"v_add_u32 v3, s{S_C}, v3")
    for q in range(4):
        d = vD + (q & 1)*4
        encode4(o, aP+4*q, d); encode4(o, aQ+4*q, d+2)
        if q: o(f"v_xor_b32 v3, {32*(q ^ (q-1))}, v3")
        o(f"ds_write_b128 v3, {vr(d,4)}")
    o(f"v_lshrrev_b32 v3, 3, v2")
    o(f"v_xor_b32 v12, v1, v3")
    o(f"v_lshlrev_b32 v12, 4, v12")
    o(f"v_lshl_add_u32 v12, v3, 7, v12")
    o(f"v_add_u32 v12, s{S_C}, v12")
    o(f"s_lshl_b32 s{S_A}, s{S_WAVE}, 5")
    o(f"s_add_u32 s{S_A}, s{S_A}, s{S_NODE0}")
    o(f"s_lshl_b32 s{S_A}, s{S_A}, 7")
    o(f"v_lshlrev_b32 v3, 4, v2")
    o("s_waitcnt lgkmcnt(0)")
    for i in range(4):
        o(f"ds_read_b128 {vr(aP+4*i,4)}, v12 offset:{i*1024}")
    o(f"s_cmp_eq_u32 s{S_WAVE}, 12")
    for i in range(4):
        o(f"s_waitcnt lgkmcnt({3-i})")
        o(f"buffer_store_dwordx4 {vr(aP+4*i,4)}, v3, {sr(R_TAB,4)}, s{S_A} offen offset:{i*1024}{SC}")
        if i == 0: o(f"s_cbranch_scc1 L_st_done")
    o("L_st_done:")
    if STAMP is not None and STAMP < TEAM0: stamp(o, 3)
    gemm_pair(o, vW, vX, aP, aQ, 8, 16384)
    scale_p(o, aP); scale_q(o, aQ)
    o(f"v_max3_f32 v3, |v{aP}|, |v{aP+1}|, |v{aP+2}|")
    for i in range(3, 15, 2):
        o(f"v_max3_f32 v3, v3, |v{aP+i}|, |v{aP+i+1}|")
    o(f"v_max_f32 v3, v3, |v{aP+15}|")
    o(f"v_pk_add_f32 {vr(vD,2)}, {vr(aP,2)}, {vr(aP+2,2)}")
    for i in range(4, 16, 2):
        o(f"v_pk_add_f32 {vr(vD,2)}, {vr(vD,2)}, {vr(aP+i,2)}")
    o(f"v_add_f32 v{vD}, v{vD}, v{vD+1}")
    o(f"v_mul_f32 v{vD}, 0, v{vD}")
    o(f"v_add_f32 v3, v3, v{vD}")
    o(f"s_mov_b32 s{S_A}, 0x42700000")
    o(f"s_cmp_eq_u32 s{S_WAVE}, 12")
    o(f"s_cselect_b32 s{S_EX}, 0xff, -1")
    o(f"v_cmp_nge_f32 vcc, s{S_A}, v3")
    o(f"s_mov_b32 s{S_EX+1}, s{S_EX}")
    o(f"s_and_b64 vcc, vcc, {sr(S_EX,2)}")
    o(f"s_cbranch_scc0 L_doexp")
    o(f"v_lshlrev_b32 v3, s{S_WAVE}, v15")
    o(f"ds_or_b32 v{vZ}, v3 offset:{F_RANGE}")
    o("s_branch L_noexp")
    o("L_doexp:")
    for i in range(16): o(f"v_exp_f32 v{aP+i}, v{aP+i}")
    o("L_noexp:")
    for q in range(4): encode4(o, aQ+4*q, vW+4*q+2)
    for q in range(4): encode4(o, aP+4*q, vW+4*q)
    o("L_rec:")
    o("s_setprio 0")
    if STAMP is not None and STAMP < 13: stamp(o, 4)
    vCNT, vIDX, vRA = 4, 5, 12
    o(f"v_and_b32 v{vIDX}, 3, v0")
    o(f"v_lshlrev_b32 v{vIDX}, 1, v{vIDX}")
    o(f"v_lshrrev_b32 v3, 2, v0")
    o(f"s_movk_i32 s{S_A}, {SEG}")
    o(f"v_mul_u32_u24 v{vRA}, s{S_A}, v3")
    o(f"v_and_b32 v14, 0xffc, v0")
    lds_wait(o, "L_wo", F_OFFL, 1, 3)
    o(f"ds_read_b32 v{vCNT}, v14 offset:{OFFL}")
    o(f"s_mov_b32 s{S_A}, {REC_OFF}")
    o("s_waitcnt lgkmcnt(0)")
    o(f"v_and_b32 v3, 0x7ff, v{vCNT}")
    o(f"v_lshrrev_b32 v{vCNT}, 11, v{vCNT}")
    o(f"v_add_u32 v3, v3, v{vIDX}")
    o(f"v_lshl_add_u32 v{vRA}, v3, 3, v{vRA}")
    o(f"v_sub_u32 v{vIDX}, v{vCNT}, v{vIDX}")
    for r in range(12):
        o(f"v_cmp_lt_i32 {sr(S_MSK+2*r,2)}, {8*(r>>1) + (r&1)}, v{vIDX}")
    for k in range(6):
        o(f"s_mov_b64 exec, {sr(S_MSK+4*k,2)}")
        o(f"buffer_load_dwordx4 {vr(vREC+4*k,4)}, v{vRA}, {sr(R_WS,4)}, s{S_A} offen offset:{k*64}{SC}")
    o("s_mov_b64 exec, -1")
    o(f"v_cmpx_lt_u32 vcc, 48, v{vCNT}")
    o(f"ds_write_b32 v{vZ}, v15 offset:{F_STRUCT}")
    o("s_mov_b64 exec, -1")
    stamp(o, 5)
    vRK = 24; vDA = 36
    o("s_waitcnt vmcnt(0)")
    for r in range(12):
        o(f"s_mov_b64 exec, {sr(S_MSK+2*r,2)}")
        o(f"v_and_b32 v{vDA+r}, 0xffff, v{vREC+2*r}")
        o(f"ds_add_rtn_u32 v{vRK+r}, v{vDA+r}, v15 offset:{DEG}")
    o("s_mov_b64 exec, -1")
    stamp(o, 6)
    o("s_waitcnt lgkmcnt(0)")
    o("s_barrier")
    stamp(o, 7)
    vN_D, vBIN, vR2, vPOS, vL, vTB = 80, 81, 82, 83, 84, 85
    o(f"s_movk_i32 s{S_D}, {NPB}")
    o(f"s_cmp_lt_u32 s{S_WAVE}, 7")
    o(f"s_cbranch_scc0 L_s5_skip")
    o(f"ds_read_b32 v{vN_D}, v9 offset:{DEG}")
    o("s_waitcnt lgkmcnt(0)")
    o(f"v_min_u32 v{vBIN}, 63, v{vN_D}")
    o(f"v_sub_u32 v{vBIN}, 63, v{vBIN}")
    o(f"v_lshlrev_b32 v{vBIN}, 2, v{vBIN}")
    o(f"v_cmpx_gt_u32 vcc, s{S_D}, v0")
    o(f"ds_add_rtn_u32 v{vR2}, v{vBIN}, v15 offset:{HIST2}")
    o(f"v_cmpx_lt_u32 vcc, 63, v{vN_D}")
    o(f"ds_write_b32 v{vZ}, v15 offset:{F_STRUCT}")
    o("s_mov_b64 exec, -1")
    o("s_waitcnt lgkmcnt(0)")
    o("s_branch L_s5_done")
    o("L_s5_skip:")
    o(f"s_cmp_eq_u32 s{S_WAVE}, 15")
    o(f"s_cbranch_scc0 L_s5_done")
    o(f"s_lshl_b32 s{S_B}, s{S_SLICE}, 6")
    o(f"s_add_u32 s{S_B}, s{S_B}, s{S_BUCKET}")
    o(f"s_lshl_b32 s{S_B}, s{S_B}, 3")
    o(f"s_add_u32 s{S_B}, s{S_B}, {TF_OFF}")
    o(f"v_mov_b32 v6, s{S_NK}")
    o(f"v_mov_b32 v7, s{S_NH}")
    o("s_mov_b64 exec, 1")
    o(f"buffer_store_dwordx2 v[6:7], v{vZ}, {sr(R_WS,4)}, s{S_B} offen sc1")
    o("s_mov_b64 exec, -1")
    o("L_s5_done:")
    o("s_barrier")
    o(f"s_cmp_lt_u32 s{S_WAVE}, 7")
    o(f"s_cbranch_scc0 L_s6_skip")
    o(f"v_lshlrev_b32 v3, 2, v2")
    o(f"ds_read_b32 v6, v3 offset:{HIST2}")
    o("s_waitcnt lgkmcnt(0)")
    o(f"v_mov_b32 v14, v6")
    scan64(o, 14)
    o(f"v_sub_u32 v14, v14, v6")
    o(f"ds_bpermute_b32 v{vPOS}, v{vBIN}, v14")
    o(f"v_lshl_or_b32 v6, v{vN_D}, 16, v0")
    o("s_waitcnt lgkmcnt(0)")
    o(f"v_add_u32 v{vPOS}, v{vPOS}, v{vR2}")
    o(f"v_lshlrev_b32 v3, 2, v{vPOS}")
    o(f"v_cmpx_gt_u32 vcc, s{S_D}, v0")
    o(f"ds_write_b32 v3, v6 offset:{SNODE}")
    o("s_mov_b64 exec, -1")
    o("L_s6_skip:")
    vWX, vEX, vDen, vNum, vNQ, vT, vLO, vLA, vOB, vOA, vAB, vAU = 86, 90, 92, 96, 100, 64, 72, 73, 74, 75, 76, 78
    o(f"v_lshrrev_b32 v3, 2, v2")
    o(f"v_and_b32 v6, 1, v2")
    o(f"v_mul_u32_u24 v6, 15, v6")
    o(f"v_xor_b32 v3, v3, v6")
    o(f"v_and_b32 v6, 3, v2")
    o(f"v_lshl_add_u32 v3, v6, 4, v3")
    o(f"v_cmp_gt_u32 vcc, 49, v3")
    o(f"v_min_u32 v3, 48, v3")
    o(f"v_lshlrev_b32 v3, 5, v3")
    o(f"v_lshlrev_b32 v{vWX}, 16, v{vWC}")
    o(f"v_lshlrev_b32 v{vWX+1}, 16, v{vWC+1}")
    o(f"v_and_b32 v{vWX+2}, 0xffff0000, v{vWC}")
    o(f"v_and_b32 v{vWX+3}, 0xffff0000, v{vWC+1}")
    for i in range(4): o(f"v_mul_f32 v{vWX+i}, s{S_CT}, v{vWX+i}")
    o(f"v_lshlrev_b32 v{vLO}, 4, v1")
    o(f"v_mul_u32_u24 v{vAB}, 24, v1")
    o(f"v_add_u32 v{vAB}, {AUX}, v{vAB}")
    o(f"s_lshl_b32 s{S_A}, s{S_NODE0}, 8")
    o(f"s_lshl_b32 s{S_B}, s{S_SLICE}, 6")
    o(f"s_add_u32 s{S_A}, s{S_A}, s{S_B}")
    o(f"v_lshl_add_u32 v{vOB}, v1, 3, s{S_A}")
    o("s_waitcnt lgkmcnt(0)")
    o("s_barrier")
    stamp(o, 8)
    o(f"ds_read_u16 v{vL}, v3 offset:{SNODE+2}")
    o(f"ds_read_b64 v[6:7], v{vZ} offset:{F_STRUCT}")
    o("s_waitcnt lgkmcnt(0)")
    o(f"v_cndmask_b32 v{vL}, 0, v{vL}, vcc")
    o(f"v_readfirstlane_b32 s{S_B}, v6")
    o(f"v_readfirstlane_b32 s{S_MODE}, v7")
    o(f"v_mov_b32 v{vTB}, v{vL}")
    scan64(o, vTB)
    o(f"s_or_b32 s{S_B}, s{S_B}, s{S_MODE}")
    o(f"v_readlane_b32 s{S_A}, v{vTB}, 63")
    o(f"v_sub_u32 v{vTB}, v{vTB}, v{vL}")
    o(f"s_cmp_gt_u32 s{S_A}, {ELL_ITERS}")
    o(f"s_cselect_b32 s{S_B}, 1, s{S_B}")
    o(f"v_lshl_or_b32 v{vTB}, v{vTB}, 8, v{vL}")
    o(f"s_cmp_lg_u32 s{S_B}, 0")
    o(f"s_cbranch_scc1 L_slow")
    o(f"s_cmp_lt_u32 s{S_WAVE}, 7")
    o(f"s_cbranch_scc0 L_s7_skip")
    o(f"v_lshrrev_b32 v3, 7, v{vPOS}")
    o(f"v_bfe_u32 v6, v{vPOS}, 3, 4")
    o(f"v_and_b32 v14, 1, v3")
    o(f"v_mul_u32_u24 v14, 15, v14")
    o(f"v_xor_b32 v6, v6, v14")
    o(f"v_lshl_add_u32 v3, v6, 2, v3")
    o(f"v_lshlrev_b32 v3, 2, v3")
    o(f"ds_bpermute_b32 v6, v3, v{vTB}")
    o(f"v_and_b32 v14, 7, v{vPOS}")
    o(f"v_lshlrev_b32 v14, 3, v14")
    o(f"v_add_u32 v14, {ELL}, v14")
    o(f"v_mov_b32 v{vD+6}, {DUMMY_ROW << 16}")
    o(f"v_mov_b32 v{vD+7}, 0")
    o("s_waitcnt lgkmcnt(0)")
    o(f"v_lshrrev_b32 v3, 8, v6")
    o(f"v_and_b32 v6, 0xff, v6")
    o(f"v_lshl_add_u32 v3, v3, 6, v14")
    o(f"v_cmpx_gt_u32 vcc, s{S_D}, v0")
    o(f"ds_write_b32 v9, v3 offset:{SLOT}")
    o(f"v_lshl_add_u32 v3, v{vN_D}, 6, v3")
    o("L_pad:")
    o(f"v_cmpx_gt_u32 vcc, v6, v{vN_D}")
    o(f"s_cbranch_execz L_pad_done")
    o(f"ds_write_b64 v3, {vr(vD+6,2)}")
    o(f"v_add_u32 v3, 64, v3")
    o(f"v_add_u32 v{vN_D}, 1, v{vN_D}")
    o("s_branch L_pad")
    o("L_pad_done:")
    o("s_mov_b64 exec, -1")
    o("L_s7_skip:")
    o(f"s_lshl_b32 s{S_A}, s{S_WAVE}, 2")
    o(f"v_readlane_b32 s{S_C}, v{vTB}, s{S_A}")
    o(f"s_add_u32 s{S_A}, s{S_A}, 1")
    o(f"v_readlane_b32 s{S_L1}, v{vL}, s{S_A}")
    o(f"s_add_u32 s{S_A}, s{S_A}, 1")
    o(f"v_readlane_b32 s{S_L2}, v{vL}, s{S_A}")
    o(f"s_add_u32 s{S_A}, s{S_A}, 1")
    o(f"v_readlane_b32 s{S_L3}, v{vL}, s{S_A}")
    o(f"s_and_b32 s{S_CNT}, s{S_C}, 0xff")
    o(f"s_lshr_b32 s{S_C}, s{S_C}, 8")
    o("s_waitcnt lgkmcnt(0)")
    o("s_barrier")
    stamp(o, 9)
    for r in range(12):
        o(f"s_mov_b64 exec, {sr(S_MSK+2*r,2)}")
        o(f"ds_read_b32 v{vDA+r}, v{vDA+r} offset:{SLOT}")
    o("s_mov_b64 exec, -1")
    o(f"v_lshrrev_b32 v3, 3, v2")
    o(f"v_lshlrev_b32 v6, 2, v3")
    o(f"s_lshl_b32 s{S_A}, s{S_WAVE}, 5")
    o(f"s_sub_u32 s{S_B}, {31*32}, s{S_A}")
    o(f"v_add_u32 v14, s{S_A}, v6")
    o(f"v_add_u32 v12, s{S_B}, v6")
    o(f"s_lshl_b32 s{S_C}, s{S_C}, 6")
    o(f"s_add_u32 s{S_C}, s{S_C}, {ELL}")
    o(f"v_lshl_add_u32 v{vLA}, v3, 3, s{S_C}")
    o("s_waitcnt lgkmcnt(0)")
    for r in range(12):
        o(f"s_mov_b64 exec, {sr(S_MSK+2*r,2)}")
        o(f"v_lshl_add_u32 v{vDA+r}, v{vRK+r}, 6, v{vDA+r}")
        o(f"ds_write_b64 v{vDA+r}, {vr(vREC+2*r,2)}")
    o("s_mov_b64 exec, -1")
    o(f"ds_read_u16 v{vNQ}, v14 offset:{SNODE}")
    o(f"ds_read_u16 v{vT}, v12 offset:{SNODE}")
    o(f"ds_read_u16 v{vNQ+1}, v14 offset:{SNODE+32*32}")
    o(f"ds_read_u16 v{vT+1}, v6 offset:{SNODE+48*32}")
    def aux_write(lab):
        o(f"s_cmp_lt_u32 s{S_WAVE}, 13")
        o(f"s_cbranch_scc0 {lab}")
        o(f"s_lshl_b32 s{S_A}, s{S_WAVE}, 5")
        o(f"v_and_b32 v3, 31, v2")
        o(f"v_add_u32 v3, s{S_A}, v3")
        o(f"s_movk_i32 s{S_A}, {AUS}")
        o(f"v_mul_u32_u24 v3, s{S_A}, v3")
        o(f"v_lshrrev_b32 v14, 5, v2")
        o(f"v_mul_u32_u24 v14, 24, v14")
        o(f"v_add3_u32 v3, v3, v14, s{S_D}")
        o(f"v_add_u32 v14, v3, v14")
        for q in range(4):
            o(f"ds_write2_b64 v3, {vr(vW+4*q,2)}, {vr(vW+4*q+2,2)} offset0:{6*q} offset1:{6*q+1}")
        o(f"ds_write2_b64 v14, {vr(vX,2)}, {vr(vX+2,2)} offset0:2 offset1:5")
        o(f"ds_write2_b64 v14, {vr(vX+4,2)}, {vr(vX+6,2)} offset0:14 offset1:17")
        o(f"{lab}:")
    o(f"s_movk_i32 s{S_D}, {AUX}")
    aux_write("L_noaux")
    stamp(o, 10)
    o(f"s_cmp_eq_u32 s{S_WAVE}, 14")
    o(f"s_cbranch_scc0 L_nopoll2")
    poll_tables(o, "L_pb")
    o("L_nopoll2:")
    o(f"s_cmp_eq_u32 s{S_WAVE}, 15")
    o(f"s_cselect_b32 s{S_NT}, 4, 3")
    o(f"s_movk_i32 s{S_A}, {AUS}")
    o(f"s_movk_i32 s{S_B}, 256")
    o(f"s_movk_i32 s{S_D}, 128")
    o("s_waitcnt lgkmcnt(0)")
    o(f"v_lshl_or_b32 v{vNQ}, v{vT}, 16, v{vNQ}")
    o(f"v_lshl_or_b32 v{vNQ+1}, v{vT+1}, 16, v{vNQ+1}")
    o("s_barrier")
    stamp(o, 11)
    vDK = 16; vRKk = 104
    assert vDK + 4*PD <= 64 and vRKk + 2*PD <= 128
    def gaddr(R): o(f"v_mad_u32_u16 v{R}, v{R}, s{S_D}, v{vLO} op_sel:[1,0,0,0]")
    for k in range(PD):
        o(f"ds_read_b64 {vr(vRKk+2*k,2)}, v{vLA} offset:{k*64}")
    for k in range(PD):
        o(f"s_waitcnt lgkmcnt({PD-1-k})")
        gaddr(vRKk+2*k)
        o(f"buffer_load_dwordx4 {vr(vDK+4*k,4)}, v{vRKk+2*k}, {sr(R_TAB,4)}, 0 offen{SC}")
    def promote():
        o(f"v_mad_u32_u16 v3, v{vNQ}, s{S_A}, v{vAB}")
        o(f"v_mad_u32_u16 v{vOA}, v{vNQ}, s{S_B}, v{vOB}")
        o(f"ds_read2_b64 {vr(vAU,4)}, v3 offset0:0 offset1:1")
        o(f"ds_read_b64 {vr(vAU+4,2)}, v3 offset:16")
        o(f"v_lshrrev_b64 {vr(vNQ,2)}, 16, {vr(vNQ,2)}")
        for i in range(0, 8, 2): o(f"v_mov_b64 {vr(vDen+i,2)}, 0")
        o("s_waitcnt lgkmcnt(0)")
        o(f"v_lshlrev_b64 {vr(vEX,2)}, 16, {vr(vAU,2)}")
    promote()
    o(f"s_sub_u32 s{S_CNT}, s{S_CNT}, 1")
    o(f"s_cbranch_scc1 M_sw{PD-1}")
    o("M_loop:")
    for k in range(PD):
        D = vDK + 4*k; R = vRKk + 2*k
        o(f"M_it{k}:")
        o(f"s_waitcnt vmcnt({PD-1})")
        o(f"v_lshlrev_b64 {vr(vT,2)}, 16, {vr(D,2)}")
        o(f"v_pk_fma_f32 {vr(vT+2,2)}, {vr(R,2)}, {vr(vWX+2,2)}, {vr(D,2)} op_sel:[1,0,0] op_sel_hi:[1,1,1]")
        o(f"v_pk_fma_f32 {vr(vT,2)}, {vr(R,2)}, {vr(vWX,2)}, {vr(vT,2)} op_sel:[1,0,0] op_sel_hi:[1,1,1]")
        o(f"ds_read_b64 {vr(R,2)}, v{vLA} offset:{(k+PD)*64}")
        o(f"v_exp_f32 v{vT+2}, v{vT+2}")
        o(f"v_exp_f32 v{vT+3}, v{vT+3}")
        o(f"v_exp_f32 v{vT}, v{vT}")
        o(f"v_exp_f32 v{vT+1}, v{vT+1}")
        o(f"v_lshlrev_b64 {vr(vT+4,2)}, 16, {vr(D+2,2)}")
        o(f"v_pk_fma_f32 {vr(vT+2,2)}, {vr(vT+2,2)}, {vr(vAU,2)}, 1.0 op_sel_hi:[1,1,0]")
        o(f"v_pk_fma_f32 {vr(vT,2)}, {vr(vT,2)}, {vr(vEX,2)}, 1.0 op_sel_hi:[1,1,0]")
        if k == PD-1:
            o(f"v_add_u32 v{vLA}, {PD*64}, v{vLA}")
        o(f"v_rcp_f32 v{vT+2}, v{vT+2}")
        o(f"v_rcp_f32 v{vT+3}, v{vT+3}")
        o(f"v_rcp_f32 v{vT}, v{vT}")
        o(f"v_rcp_f32 v{vT+1}, v{vT+1}")
        o(f"v_pk_add_f32 {vr(vDen+2,2)}, {vr(vDen+2,2)}, {vr(vT+2,2)}")
        o(f"v_pk_fma_f32 {vr(vNum+2,2)}, {vr(vT+2,2)}, {vr(D+2,2)}, {vr(vNum+2,2)}")
        o(f"v_pk_add_f32 {vr(vDen,2)}, {vr(vDen,2)}, {vr(vT,2)}")
        o(f"v_pk_fma_f32 {vr(vNum,2)}, {vr(vT,2)}, {vr(vT+4,2)}, {vr(vNum,2)}")
        o("s_waitcnt lgkmcnt(0)")
        gaddr(R)
        o(f"s_sub_u32 s{S_CNT}, s{S_CNT}, 1")
        o(f"buffer_load_dwordx4 {vr(D,4)}, v{R}, {sr(R_TAB,4)}, 0 offen{SC}")
        o(f"s_cbranch_scc1 M_sw{k}")
    o("s_branch M_loop")
    for k in range(PD):
        o(f"M_sw{k}:")
        finalize(o, vDen, vNum, vAU+2, vAU+4, vT, vOA)
        o(f"s_sub_u32 s{S_NT}, s{S_NT}, 1")
        o(f"s_cmp_eq_u32 s{S_NT}, 0")
        o(f"s_cbranch_scc1 L_end")
        promote()
        o(f"s_sub_u32 s{S_CNT}, s{S_L1}, 1")
        o(f"s_mov_b32 s{S_L1}, s{S_L2}")
        o(f"s_mov_b32 s{S_L2}, s{S_L3}")
        o(f"s_cbranch_scc1 M_sw{k}")
        o(f"s_branch M_it{(k+1)%PD}")
    o("L_slow:")
    vG, vI, vA2, vLOC, vR2_, vD2, vT2, vAcc = 16, 17, 18, 19, 20, 24, 32, 44
    o(f"s_movk_i32 s{S_D}, {AUX}")
    aux_write("S_noaux")
    o(f"s_cmp_eq_u32 s{S_WAVE}, 14")
    o(f"s_cbranch_scc0 S_nopoll")
    poll_tables(o, "L_pc")
    o("S_nopoll:")
    o(f"v_lshrrev_b32 v{vG}, 3, v0")
    o(f"s_mov_b32 s{S_HALFI}, 0")
    o(f"s_movk_i32 s{S_D}, {AUS}")
    o(f"s_movk_i32 s{S_CNT}, 128")
    o("S_half:")
    o("s_barrier")
    for i in range(4): o(f"v_mov_b32 v{vD2+i}, 0")
    o(f"v_lshlrev_b32 v3, 4, v0")
    o(f"v_add_u32 v3, {ELL}, v3")
    for i in range(3): o(f"ds_write_b128 v3, {vr(vD2,4)} offset:{i*16384}")
    o(f"s_cmp_lt_u32 s{S_WAVE}, 8")
    o(f"s_cbranch_scc0 S_nofill")
    o(f"ds_write_b128 v3, {vr(vD2,4)} offset:{3*16384}")
    o("S_nofill:")
    o("s_waitcnt lgkmcnt(0)")
    o("s_barrier")
    o(f"s_mov_b32 s{S_PP}, 0")
    o("S_piece:")
    o(f"v_add_u32 v3, s{S_PP}, v{vG}")
    o(f"v_lshlrev_b32 v5, 2, v3")
    o(f"ds_read_b32 v4, v5 offset:{OFFL}")
    o(f"s_movk_i32 s{S_A}, {SEG}")
    o(f"v_mul_u32_u24 v{vA2}, s{S_A}, v3")
    o(f"v_mov_b32 v{vI}, 0")
    o("s_waitcnt lgkmcnt(0)")
    o(f"v_and_b32 v5, 0x7ff, v4")
    o(f"v_lshrrev_b32 v4, 11, v4")
    o(f"v_lshl_add_u32 v{vA2}, v5, 3, v{vA2}")
    o(f"s_mov_b32 s{S_A}, {REC_OFF}")
    o(f"s_mul_i32 s{S_B}, s{S_HALFI}, 196")
    o(f"s_movk_i32 s{S_C}, 196")
    o("S_rec:")
    o(f"v_cmpx_gt_u32 vcc, v4, v{vI}")
    o(f"s_cbranch_execz S_rec_done")
    o(f"buffer_load_dwordx2 {vr(vR2_,2)}, v{vA2}, {sr(R_WS,4)}, s{S_A} offen{SC}")
    o("s_waitcnt vmcnt(0)")
    o(f"v_bfe_u32 v5, v{vR2_}, 2, 14")
    o(f"v_subrev_u32 v{vLOC}, s{S_B}, v5")
    o(f"v_mad_u32_u16 v{vR2_}, v{vR2_}, s{S_CNT}, v{vLO} op_sel:[1,0,0,0]")
    o(f"v_mad_u32_u24 v3, v5, s{S_D}, v{vAB}")
    o(f"v_lshlrev_b32 v{vAcc}, 8, v{vLOC}")
    o(f"v_lshl_add_u32 v{vAcc}, v1, 5, v{vAcc}")
    o(f"v_add_u32 v{vAcc}, {ELL}, v{vAcc}")
    o(f"v_cmpx_gt_u32 vcc, s{S_C}, v{vLOC}")
    o(f"s_cbranch_execz S_rec_next")
    o(f"buffer_load_dwordx4 {vr(vD2,4)}, v{vR2_}, {sr(R_TAB,4)}, 0 offen{SC}")
    o(f"ds_read_b64 {vr(vAU,2)}, v3")
    o("s_waitcnt vmcnt(0) lgkmcnt(0)")
    T = vT2
    o(f"v_lshlrev_b64 {vr(T,2)}, 16, {vr(vD2,2)}")
    o(f"v_lshlrev_b64 {vr(T+4,2)}, 16, {vr(vD2+2,2)}")
    o(f"v_lshlrev_b64 {vr(T+6,2)}, 16, {vr(vAU,2)}")
    o(f"v_lshrrev_b32 v5, 5, v5")
    o(f"v_lshrrev_b32 v5, v5, s{S_MODE}")
    o(f"v_and_b32 v5, 1, v5")
    o(f"v_cmp_eq_u32 vcc, 0, v5")
    for r in (T+6, T+7, vAU, vAU+1):
        o(f"v_log_f32 v3, v{r}")
        o("s_nop 0")
        o(f"v_cndmask_b32 v{r}, v{r}, v3, vcc")
    o(f"v_pk_add_f32 {vr(T,2)}, {vr(T,2)}, {vr(T+6,2)}")
    o(f"v_pk_add_f32 {vr(T+2,2)}, {vr(vD2,2)}, {vr(vAU,2)}")
    o(f"v_pk_fma_f32 {vr(T,2)}, {vr(vR2_,2)}, {vr(vWX,2)}, {vr(T,2)} op_sel:[1,0,0] op_sel_hi:[1,1,1]")
    o(f"v_pk_fma_f32 {vr(T+2,2)}, {vr(vR2_,2)}, {vr(vWX+2,2)}, {vr(T+2,2)} op_sel:[1,0,0] op_sel_hi:[1,1,1]")
    for i in range(4): o(f"v_exp_f32 v{T+i}, v{T+i}")
    o("s_nop 0")
    o(f"v_pk_add_f32 {vr(T,2)}, {vr(T,2)}, 1.0 op_sel_hi:[1,0]")
    o(f"v_pk_add_f32 {vr(T+2,2)}, {vr(T+2,2)}, 1.0 op_sel_hi:[1,0]")
    for i in range(4): o(f"v_rcp_f32 v{T+i}, v{T+i}")
    o("s_nop 0")
    o(f"v_pk_mul_f32 {vr(T+4,2)}, {vr(T+4,2)}, {vr(T,2)}")
    o(f"v_pk_mul_f32 {vr(T+6,2)}, {vr(vD2+2,2)}, {vr(T+2,2)}")
    for i in range(8): o(f"ds_add_f32 v{vAcc}, v{T+i} offset:{4*i}")
    o("S_rec_next:")
    o("s_mov_b64 exec, -1")
    o(f"v_add_u32 v{vI}, 1, v{vI}")
    o(f"v_add_u32 v{vA2}, 8, v{vA2}")
    o("s_branch S_rec")
    o("S_rec_done:")
    o("s_mov_b64 exec, -1")
    o(f"s_add_u32 s{S_PP}, s{S_PP}, 128")
    o(f"s_cmp_lt_u32 s{S_PP}, 256")
    o("s_cbranch_scc1 S_piece")
    o("s_waitcnt lgkmcnt(0)")
    o("s_barrier")
    o(f"s_mov_b32 s{S_PP}, 0")
    o("S_fin:")
    o(f"v_add_u32 v{vLOC}, s{S_PP}, v{vG}")
    o(f"v_add_u32 v5, s{S_B}, v{vLOC}")
    o(f"v_mad_u32_u24 v3, v5, s{S_D}, v{vAB}")
    o(f"v_lshlrev_b32 v{vAcc}, 8, v{vLOC}")
    o(f"v_lshl_add_u32 v{vAcc}, v1, 5, v{vAcc}")
    o(f"v_add_u32 v{vAcc}, {ELL}, v{vAcc}")
    o(f"v_lshl_add_u32 v{vOA}, v5, 8, v{vOB}")
    o(f"v_cmpx_gt_u32 vcc, s{S_C}, v{vLOC}")
    o(f"s_cbranch_execz S_fin_next")
    o(f"ds_read2_b64 {vr(vAU+2,4)}, v3 offset0:1 offset1:2")
    o(f"ds_read_b128 {vr(24,4)}, v{vAcc}")
    o(f"ds_read_b128 {vr(28,4)}, v{vAcc} offset:16")
    o("s_waitcnt lgkmcnt(0)")
    finalize(o, 24, 28, vAU+2, vAU+4, vT, vOA)
    o("S_fin_next:")
    o("s_mov_b64 exec, -1")
    o(f"s_add_u32 s{S_PP}, s{S_PP}, 128")
    o(f"s_cmp_lt_u32 s{S_PP}, 256")
    o("s_cbranch_scc1 S_fin")
    o(f"s_add_u32 s{S_HALFI}, s{S_HALFI}, 1")
    o(f"s_cmp_lt_u32 s{S_HALFI}, 2")
    o("s_cbranch_scc1 S_half")
    o("L_end:")
    stamp(o, 12)
    stamp_flush(o, 13)
    o("L_exit:")
    o("s_endpgm")

def main():
    global STAMP, PD, EARLY
    for a in sys.argv[2:]:
        if a.startswith("stamp="): STAMP = int(a[6:])
        elif a.startswith("pd="): PD = int(a[3:])
        elif a.startswith("early="): EARLY = int(a[6:])
        else: OPT.add(a)
    ref = open(f"cdna_kernels/{NAME}.s.ref").read().split("\n")
    head = [l for l in ref if l.startswith(";") and "@launch" not in l]
    out = "\n".join(head) + "\n"
    out += f"; @launch grid=(256,1,1) block=(1024,1,1) lds={LDS_SIZE}\n"
    out += f'.amdgcn_target "amdgcn-amd-amdhsa--gfx950"\n.text\n.globl {NAME}_kernel\n.p2align 8\n.type {NAME}_kernel,@function\n{NAME}_kernel:\n'
    o = Asm(); kernel(o); out += o.text()
    out += f""".section .rodata,"a"
.p2align 6
.amdhsa_kernel {NAME}_kernel
  .amdhsa_next_free_vgpr 128
  .amdhsa_next_free_sgpr {102 if STAMP is not None else 88}
  .amdhsa_accum_offset 128
  .amdhsa_group_segment_fixed_size 0
  .amdhsa_kernarg_size 96
  .amdhsa_user_sgpr_count 2
  .amdhsa_user_sgpr_kernarg_segment_ptr 1
  .amdhsa_system_sgpr_workgroup_id_x 1
.end_amdhsa_kernel
"""
    path = sys.argv[1] if len(sys.argv) > 1 else f"cdna_kernels/{NAME}.s"
    open(path, "w").write(out)
    print("wrote", path, "LDS", LDS_SIZE)
main()
```

```python
import sys

NAME = "standalone__edge_featured_mpnn_gatedgcn__graph"
N = 25000; E = 400000
NPB = 392; CH = 1564
TSTRIDE = 25096*128
DUMMY_ROW = 25088
SEG = 12544
REC_OFF = 4*TSTRIDE
OFF_OFF = REC_OFF + 256*SEG
TF_OFF = OFF_OFF + 131072
WS_USED = TF_OFF + 2048
LOG2E_NEG = 0xBFB8AA3B; TINY = 0x03800000; EPS = 0x358637BD
SC = " sc1"
PD = 8
EARLY = 6
TEAM0 = 9
HISTA = 0; DEG = 256; HIST2 = DEG + 1600; FLAG = HIST2 + 256; SLOT = FLAG + 64; SNODE = SLOT + 1600; OFFL = SNODE + 1600
XT = OFFL + 1024; XTS = 8320
WOFF = XT + 13*XTS
RECS = WOFF + 32768
LDS_SIZE = RECS + SEG
AUX = XT; AUS = 200
ELL = AUX + 416*AUS
ELL_ITERS = 896
assert ELL + ELL_ITERS*64 <= RECS and ELL % 16 == 0 and XT % 128 == 0
F_STRUCT, F_RANGE, F_SOFT, F_OFFL, F_GO = FLAG, FLAG+4, FLAG+8, FLAG+12, FLAG+16

STAMP = None; OPT = set()
def st_reg(i): return 88 + 2*i if i < 7 else 36 + 2*(i-7)
def stamp(o, i):
    if STAMP is None: return
    o(f"s_memrealtime s[{st_reg(i)}:{st_reg(i)+1}]")
    o("s_waitcnt lgkmcnt(0)")
def stamp_flush(o, n):
    if STAMP is None: return
    if "dbg" in OPT:
        o(f"s_cmp_eq_u32 s{S_WAVE}, {STAMP}")
        o(f"s_cbranch_scc0 L_stf")
        o(f"s_cmp_eq_u32 s{S_WG}, 77")
        o(f"s_cbranch_scc0 L_stf")
        o(f"s_mov_b64 exec, 1")
        o(f"v_mov_b32 v0, 0")
        for i in range(n):
            o(f"s_sub_u32 s{S_A}, s{st_reg(i)}, s{st_reg(0)}")
            o(f"v_mov_b32 v2, s{S_A}")
            o(f"buffer_store_dword v2, v0, {sr(R_DBG,4)}, 0 offen offset:{8+4*i}")
        o(f"L_stf:")
        return
    o(f"s_cmp_eq_u32 s{S_WAVE}, {STAMP}")
    o(f"s_cbranch_scc0 L_stf")
    o(f"s_mov_b64 exec, 1")
    o(f"s_mov_b32 s{R_WS+2}, {64<<20}")
    o(f"s_lshl_b32 s{S_A}, s{S_WG}, 7")
    o(f"s_add_u32 s{S_A}, s{S_A}, {32<<20}")
    o(f"v_mov_b32 v0, 0")
    for i in range(n):
        o(f"v_mov_b32 v2, s{st_reg(i)}")
        o(f"v_mov_b32 v3, s{st_reg(i)+1}")
        o(f"buffer_store_dwordx2 v[2:3], v0, {sr(R_WS,4)}, s{S_A} offen offset:{8*i}")
    o(f"L_stf:")

class Asm:
    def __init__(self): self.lines = []
    def __call__(self, s):
        for l in s.split("\n"):
            l = l.strip()
            if l: self.lines.append(("" if l.endswith(":") else "    ") + l)
    def text(self): return "\n".join(self.lines) + "\n"

def vr(a, n): return f"v[{a}:{a+n-1}]"
def sr(a, n): return f"s[{a}:{a+n-1}]"

def srd(o, d, base, nbytes):
    o(f"s_mov_b32 s{d}, s{base}")
    o(f"s_and_b32 s{d+1}, s{base+1}, 0xffff")
    o(f"s_mov_b32 s{d+2}, {nbytes}")
    o(f"s_mov_b32 s{d+3}, 0x20000")

def scan64(o, v):
    for sh in (1, 2, 4, 8):
        o("s_nop 1")
        o(f"v_add_u32_dpp v{v}, v{v}, v{v} row_shr:{sh} row_mask:0xf bank_mask:0xf bound_ctrl:0")
    o("s_nop 1")
    o(f"v_add_u32_dpp v{v}, v{v}, v{v} row_bcast:15 row_mask:0xa bank_mask:0xf")
    o("s_nop 1")
    o(f"v_add_u32_dpp v{v}, v{v}, v{v} row_bcast:31 row_mask:0xc bank_mask:0xf")

def gemm_pair(o, vW, vX, aP, aQ, vWaddr, base_off):
    def rd(t):
        for m in range(2):
            b = vW + (t & 1)*8 + m*4
            o(f"ds_read_b64_tr_b16 {vr(b,2)}, v{vWaddr} offset:{base_off + m*8192 + t*1024}")
            o(f"ds_read_b64_tr_b16 {vr(b+2,2)}, v{vWaddr} offset:{base_off + m*8192 + t*1024 + 256}")
    rd(0); rd(1)
    for t in range(8):
        o(f"s_waitcnt lgkmcnt({4 if t < 7 else 0})")
        for m, acc in enumerate((aP, aQ)):
            b = vW + (t & 1)*8 + m*4
            c = "0" if t == 0 else vr(acc, 16)
            o(f"v_mfma_f32_32x32x16_bf16 {vr(acc,16)}, {vr(b,4)}, {vr(vX+4*t,4)}, {c}")
        if t + 2 < 8: rd(t+2)
    o("s_nop 15")

def encode4(o, a, d):
    for i in range(4):
        o(f"v_add_u32 v{a+i}, s{S_HALF}, v{a+i}")
    for i in range(1, 4):
        o(f"v_sub_u32_sdwa v{a+i}, v{a+i}, v{a+i-1} dst_sel:DWORD dst_unused:UNUSED_PAD src0_sel:DWORD src1_sel:WORD_1")
    o(f"v_perm_b32 v{d}, v{a+1}, v{a}, s{S_PERM}")
    o(f"v_perm_b32 v{d+1}, v{a+3}, v{a+2}, s{S_PERM}")

def scale_p(o, aP):
    for i in range(0, 16, 2):
        o(f"v_pk_fma_f32 {vr(aP+i,2)}, {vr(aP+i,2)}, {sr(S_CT,2)}, {sr(S_CT,2)} op_sel:[0,0,1] op_sel_hi:[1,0,1]")
def scale_q(o, aQ):
    for i in range(0, 16, 2):
        o(f"v_pk_add_f32 {vr(aQ+i,2)}, {vr(aQ+i,2)}, {sr(S_CT,2)} op_sel:[0,1] op_sel_hi:[1,1]")

S_WG = 2; S_NK = 3
S_X, S_E, S_SRC, S_DST, S_WA, S_WB, S_WC, S_WU, S_WV, S_OUT, S_DBG, S_WS = 4, 6, 8, 10, 12, 14, 16, 18, 20, 22, 24, 26
S_MSK = 4
R_WS = 28; R_W = 32; R_T0 = 36; R_T1 = 40; R_T2 = 44; R_X = 48; R_TAB = 52; R_OUT = 56; R_DBG = 60
S_WAVE = 64; S_HALF = 65; S_PERM = 66; S_SLICE = 67
S_CT = 68; S_EX = 70; S_EPS = 72
S_A = 74; S_B = 75; S_C = 76; S_D = 77
S_BUCKET = 78; S_NODE0 = 79
S_CNT = 80; S_L1 = 81; S_L2 = 82; S_L3 = 83; S_NT = 84; S_MODE = 85; S_NH = 86; S_SPIN = 87
S_HALFI = S_L1; S_PP = S_L2
vZ = 13

def spin_bound(o): o(f"s_mov_b32 s{S_SPIN}, 0x40000")
def spin_tail(o, lab, sleep):
    if sleep: o(f"s_sleep {sleep}")
    o(f"s_sub_u32 s{S_SPIN}, s{S_SPIN}, 1")
    o(f"s_cbranch_scc0 {lab}")

def lds_wait(o, lab, off, target, vT, sleep=1):
    spin_bound(o)
    o(f"{lab}:")
    o(f"ds_read_b32 v{vT}, v{vZ} offset:{off}")
    o("s_waitcnt lgkmcnt(0)")
    o(f"v_readfirstlane_b32 s{S_A}, v{vT}")
    o(f"s_cmp_ge_u32 s{S_A}, {target}")
    o(f"s_cbranch_scc1 {lab}_ok")
    spin_tail(o, lab, sleep)
    o(f"{lab}_ok:")

def soft_barrier(o, lab, target, vT):
    o("s_waitcnt lgkmcnt(0)")
    o("s_mov_b64 exec, 1")
    o(f"ds_add_u32 v{vZ}, v15 offset:{F_SOFT}")
    o("s_mov_b64 exec, -1")
    lds_wait(o, lab, F_SOFT, target, vT, 0)

def get_tag(o, lab):
    spin_bound(o)
    o(f"{lab}:")
    o(f"buffer_load_dwordx2 v[6:7], v{vZ}, {sr(R_DBG,4)}, 0 offen sc1")
    o("s_waitcnt vmcnt(0)")
    o(f"v_readfirstlane_b32 s{S_NK}, v6")
    o(f"v_readfirstlane_b32 s{S_NH}, v7")
    o(f"s_cmp_lg_u32 s{S_NH}, 0")
    o(f"s_cbranch_scc1 {lab}_ok")
    spin_tail(o, lab, 4)
    o(f"{lab}_ok:")

def poll_tables(o, lab):
    o(f"v_lshlrev_b32 v3, 3, v2")
    o(f"s_lshl_b32 s{S_B}, s{S_SLICE}, 9")
    o(f"s_add_u32 s{S_B}, s{S_B}, {TF_OFF}")
    spin_bound(o)
    o(f"{lab}:")
    o(f"buffer_load_dwordx2 v[6:7], v3, {sr(R_WS,4)}, s{S_B} offen sc1")
    o("s_waitcnt vmcnt(0)")
    o(f"v_xor_b32 v6, s{S_NK}, v6")
    o(f"v_xor_b32 v7, s{S_NH}, v7")
    o(f"v_or_b32 v6, v6, v7")
    o(f"v_cmp_ne_u32 vcc, 0, v6")
    o(f"s_cbranch_vccz {lab}_ok")
    spin_tail(o, lab, 2)
    o(f"{lab}_ok:")

def finalize(o, vDen, vNum, vU, vXr, vT, vOA):
    o(f"v_pk_add_f32 {vr(vDen,2)}, {vr(vDen,2)}, {sr(S_EPS,2)}")
    o(f"v_pk_add_f32 {vr(vDen+2,2)}, {vr(vDen+2,2)}, {sr(S_EPS,2)}")
    o(f"v_lshlrev_b64 {vr(vT,2)}, 16, {vr(vU,2)}")
    for i in range(4): o(f"v_rcp_f32 v{vDen+i}, v{vDen+i}")
    o(f"v_lshlrev_b32 v{vT+4}, 16, v{vXr}")
    o(f"v_lshlrev_b32 v{vT+5}, 16, v{vXr+1}")
    o(f"v_pk_fma_f32 {vr(vT,2)}, {vr(vNum,2)}, {vr(vDen,2)}, {vr(vT,2)}")
    o(f"v_pk_fma_f32 {vr(vT+2,2)}, {vr(vNum+2,2)}, {vr(vDen+2,2)}, {vr(vU,2)}")
    o(f"v_and_b32 v{vT+6}, 0xffff0000, v{vXr}")
    o(f"v_and_b32 v{vT+7}, 0xffff0000, v{vXr+1}")
    for i in range(4): o(f"v_max_f32 v{vT+i}, 0, v{vT+i}")
    o(f"v_pk_add_f32 {vr(vT,2)}, {vr(vT,2)}, {vr(vT+4,2)}")
    o(f"v_pk_add_f32 {vr(vT+2,2)}, {vr(vT+2,2)}, {vr(vT+6,2)}")
    o(f"v_cvt_pk_bf16_f32 v{vT+4}, v{vT}, v{vT+2}")
    o(f"v_cvt_pk_bf16_f32 v{vT+5}, v{vT+1}, v{vT+3}")
    o(f"buffer_store_dwordx2 {vr(vT+4,2)}, v{vOA}, {sr(R_OUT,4)}, 0 offen")

def kernel(o):
    vX = 16; vW = 48; aP = 64; aQ = 80; vD = 96; vREC = 104
    vWC = 10
    NT = 16 - TEAM0
    o(f"s_cmp_ge_u32 s{S_WG}, 256")
    o(f"s_cbranch_scc1 L_exit")
    stamp(o, 0)
    o(f"s_load_dwordx16 s[4:19], s[0:1], 0")
    o(f"s_load_dwordx8 s[20:27], s[0:1], 64")
    o(f"v_lshrrev_b32 v1, 6, v0")
    o(f"v_and_b32 v2, 63, v0")
    o(f"v_readfirstlane_b32 s{S_WAVE}, v1")
    o(f"v_lshlrev_b32 v9, 2, v0")
    o(f"v_mov_b32 v{vZ}, 0")
    o(f"s_movk_i32 s{S_A}, {SLOT//4}")
    o(f"v_cmpx_gt_u32 vcc, s{S_A}, v0")
    o(f"ds_write_b32 v9, v{vZ}")
    o("s_mov_b64 exec, -1")
    o(f"s_cmp_lt_u32 s{S_WAVE}, {TEAM0}")
    o(f"s_cbranch_scc1 L_noprio")
    o("s_setprio 3")
    o("L_noprio:")
    o(f"s_mov_b32 s{S_HALF}, 0x8000")
    o(f"s_mov_b32 s{S_PERM}, 0x07060302")
    o(f"s_mov_b32 s{S_CT}, {LOG2E_NEG:#x}")
    o(f"s_mov_b32 s{S_CT+1}, {TINY:#x}")
    o(f"s_mov_b32 s{S_EPS}, {EPS:#x}")
    o(f"s_mov_b32 s{S_EPS+1}, {EPS:#x}")
    o(f"s_bfe_u32 s{S_SLICE}, s{S_WG}, 0x20001")
    o(f"s_lshr_b32 s{S_BUCKET}, s{S_WG}, 3")
    o(f"s_and_b32 s{S_A}, s{S_WG}, 1")
    o(f"s_lshl_b32 s{S_A}, s{S_A}, 5")
    o(f"s_add_u32 s{S_BUCKET}, s{S_BUCKET}, s{S_A}")
    o(f"s_mul_i32 s{S_NODE0}, s{S_BUCKET}, {NPB}")
    o(f"v_mov_b32 v15, 1")
    o(f"v_and_b32 v1, 7, v2")
    o(f"v_lshlrev_b32 v14, 3, v1")
    o(f"v_subrev_u32 v4, {TEAM0*64}, v0")
    o(f"v_lshlrev_b32 v3, 4, v4")
    o(f"v_lshlrev_b32 v5, 3, v4")
    o(f"s_mul_i32 s{S_C}, s{S_WG}, {CH*4}")
    o(f"s_mul_i32 s{S_B}, s{S_WG}, {CH*2}")
    o("s_waitcnt lgkmcnt(0)")
    srd(o, R_T0, S_DST, E*4)
    srd(o, R_T1, S_SRC, E*4)
    srd(o, R_T2, S_E, E*2)
    vDST, vSRC, vE, vB, vR, vRec = 16, 20, 24, 28, 32, 36
    o(f"s_cmp_lt_u32 s{S_WAVE}, {TEAM0}")
    o(f"s_cbranch_scc1 L_noedge")
    o(f"buffer_load_dwordx4 {vr(vDST,4)}, v3, {sr(R_T0,4)}, s{S_C} offen")
    o(f"buffer_load_dwordx4 {vr(vSRC,4)}, v3, {sr(R_T1,4)}, s{S_C} offen")
    o(f"buffer_load_dwordx2 {vr(vE,2)}, v5, {sr(R_T2,4)}, s{S_B} offen")
    o("L_noedge:")
    srd(o, R_X, S_X, N*256)
    srd(o, R_WS, S_WS, WS_USED)
    srd(o, R_OUT, S_OUT, N*256)
    srd(o, R_DBG, S_DBG, 256)
    o(f"s_mul_i32 s{S_A}, s{S_SLICE}, {TSTRIDE}")
    o(f"s_add_u32 s{R_TAB}, s{S_WS}, s{S_A}")
    o(f"s_addc_u32 s{R_TAB+1}, s{S_WS+1}, 0")
    o(f"s_and_b32 s{R_TAB+1}, s{R_TAB+1}, 0xffff")
    o(f"s_mov_b32 s{R_TAB+2}, {TSTRIDE}")
    o(f"s_mov_b32 s{R_TAB+3}, 0x20000")
    o("s_barrier")
    o(f"s_cmp_lt_u32 s{S_WAVE}, 13")
    o(f"s_cbranch_scc1 L_nowload")
    o(f"s_cmp_eq_u32 s{S_WAVE}, 13")
    o(f"s_cbranch_scc0 L_notag")
    o(f"s_cmp_eq_u32 s{S_WG}, 0")
    o(f"s_cbranch_scc0 L_notag")
    o(f"s_memrealtime {sr(S_EX,2)}")
    o("s_waitcnt lgkmcnt(0)")
    o(f"s_lshl_b32 s{S_A}, s{S_EX}, 22")
    o(f"s_lshr_b64 {sr(S_EX,2)}, {sr(S_EX,2)}, 10")
    o(f"s_or_b32 s{S_B}, s{S_EX}, 0x80000000")
    o(f"v_mov_b32 v6, s{S_A}")
    o(f"v_mov_b32 v7, s{S_B}")
    o("s_mov_b64 exec, 1")
    o(f"buffer_store_dwordx2 v[6:7], v{vZ}, {sr(R_DBG,4)}, 0 offen sc1")
    o("s_mov_b64 exec, -1")
    o("L_notag:")
    o(f"v_lshrrev_b32 v12, 2, v2")
    o(f"v_and_b32 v3, 3, v2")
    o(f"v_lshlrev_b32 v3, 4, v3")
    o(f"v_lshl_add_u32 v12, v12, 8, v3")
    srcs = (S_NT, S_MODE, S_NH); dsts = (S_L1, S_L2, S_L3)
    for i in range(3):
        o(f"s_sub_u32 s{S_CNT}, s{S_WAVE}, {13 - 3*i}")
        if i == 2: o(f"s_min_u32 s{S_CNT}, s{S_CNT}, 7")
        o(f"s_lshl_b32 s{dsts[i]}, s{S_CNT}, 10")
        o(f"s_lshl_b32 s{S_A}, s{S_SLICE}, 1")
        o(f"s_xor_b32 s{S_A}, s{S_A}, s{S_CNT}")
        o(f"s_lshl_b32 s{S_A}, s{S_A}, 12")
        o(f"s_lshl_b32 s{S_B}, s{S_SLICE}, 6")
        o(f"s_add_u32 s{srcs[i]}, s{S_A}, s{S_B}")
    for m, P in enumerate((S_WB, S_WV, S_WA, S_WU)):
        srd(o, R_W, P, 32768)
        for i in range(3):
            o(f"s_add_u32 m0, s{dsts[i]}, {WOFF + 8192*m}")
            o("s_nop 0")
            o(f"buffer_load_dwordx4 v12, {sr(R_W,4)}, s{srcs[i]} offen lds")
    o("L_nowload:")
    srd(o, R_W, S_WC, 256)
    o(f"s_lshl_b32 s{S_B}, s{S_SLICE}, 6")
    o(f"buffer_load_dwordx2 {vr(vWC,2)}, v14, {sr(R_W,4)}, s{S_B} offen")
    o(f"s_cmp_lt_u32 s{S_WAVE}, {TEAM0}")
    o(f"s_cbranch_scc1 L_gemm")
    o(f"s_cmp_eq_u32 s{S_WG}, 255")
    o(f"s_movk_i32 s{S_C}, {CH//4}")
    o(f"s_cselect_b32 s{S_C}, {(E-255*CH)//4}, s{S_C}")
    o(f"s_mov_b32 s{S_B}, 42800")
    o(f"s_movk_i32 s{S_D}, {NPB}")
    o(f"s_cmp_lt_u32 s{S_WAVE}, 13")
    o(f"s_cbranch_scc0 L_we")
    o("s_waitcnt vmcnt(1)")
    o("L_we:")
    o("s_waitcnt vmcnt(13)")
    stamp(o, 1)
    for r in range(4):
        o(f"v_mul_u32_u24 v{vB+r}, s{S_B}, v{vDST+r}")
        o(f"v_lshrrev_b32 v{vB+r}, 24, v{vB+r}")
        o(f"v_mul_u32_u24 v3, s{S_D}, v{vB+r}")
        o(f"v_sub_u32 v3, v{vDST+r}, v3")
        o(f"v_lshlrev_b32 v3, 2, v3")
        o(f"v_lshl_or_b32 v{vRec+2*r}, v{vSRC+r}, 16, v3")
        o(f"v_lshlrev_b32 v{vB+r}, 2, v{vB+r}")
        if r & 1: o(f"v_and_b32 v{vRec+2*r+1}, 0xffff0000, v{vE+(r>>1)}")
        else:     o(f"v_lshlrev_b32 v{vRec+2*r+1}, 16, v{vE+(r>>1)}")
    o(f"v_cmpx_gt_u32 vcc, s{S_C}, v4")
    for r in range(4):
        o(f"ds_add_rtn_u32 v{vR+r}, v{vB+r}, v15 offset:{HISTA}")
    o("s_mov_b64 exec, -1")
    o(f"v_lshlrev_b32 v8, 2, v2")
    soft_barrier(o, "L_sb1", NT, 3)
    o(f"ds_read_b32 v6, v8 offset:{HISTA}")
    o("s_waitcnt lgkmcnt(0)")
    o(f"v_mov_b32 v7, v6")
    scan64(o, 7)
    o(f"v_sub_u32 v7, v7, v6")
    for r in range(4):
        o(f"ds_bpermute_b32 v{vDST+r}, v{vB+r}, v7")
    o(f"v_lshl_or_b32 v5, v6, 11, v7")
    o(f"v_mov_b32 v3, {RECS}")
    o("s_waitcnt lgkmcnt(0)")
    o(f"v_cmpx_gt_u32 vcc, s{S_C}, v4")
    for r in range(4):
        o(f"v_add_u32 v{vDST+r}, v{vDST+r}, v{vR+r}")
        o(f"v_lshl_add_u32 v{vDST+r}, v{vDST+r}, 3, v3")
        o(f"ds_write_b64 v{vDST+r}, {vr(vRec+2*r,2)}")
    o("s_mov_b64 exec, -1")
    o("s_waitcnt vmcnt(0)")
    soft_barrier(o, "L_sb2", 2*NT, 3)
    stamp(o, 2)
    o(f"s_cmp_lt_u32 s{S_WAVE}, 13")
    o(f"s_cbranch_scc1 L_gemm")
    o(f"s_cmp_eq_u32 s{S_WAVE}, 14")
    o(f"s_cbranch_scc1 L_w14")
    o(f"s_cmp_eq_u32 s{S_WAVE}, 13")
    o(f"s_cbranch_scc1 L_w13")
    o(f"v_lshlrev_b32 v4, 4, v2")
    o(f"v_add_u32 v12, {RECS}, v4")
    o(f"s_mul_i32 s{S_B}, s{S_WG}, {SEG}")
    o(f"s_add_u32 s{S_B}, s{S_B}, {REC_OFF}")
    for i in range(12):
        o(f"ds_read_b128 {vr(16+4*i,4)}, v12 offset:{i*1024}")
    o("s_mov_b64 exec, 0xffff")
    o(f"ds_read_b128 {vr(64,4)}, v12 offset:{12*1024}")
    o("s_mov_b64 exec, -1")
    for i in range(13):
        if i == 12: o("s_mov_b64 exec, 0xffff")
        if i and i % 4 == 0: o(f"s_add_u32 s{S_B}, s{S_B}, 4096")
        o(f"s_waitcnt lgkmcnt({12-i})")
        o(f"buffer_store_dwordx4 {vr(16+4*i,4)}, v4, {sr(R_WS,4)}, s{S_B} offen offset:{(i&3)*1024}{SC}")
    o("s_mov_b64 exec, -1")
    o(f"ds_write_b32 v{vZ}, v15 offset:{F_GO}")
    stamp(o, 3)
    get_tag(o, "L_ga")
    stamp(o, 4)
    o(f"v_or_b32 v6, s{S_NK}, v5")
    o(f"v_mov_b32 v7, s{S_NH}")
    o(f"v_lshlrev_b32 v3, 11, v2")
    o(f"s_lshl_b32 s{S_B}, s{S_WG}, 3")
    o(f"s_add_u32 s{S_B}, s{S_B}, {OFF_OFF}")
    o(f"buffer_store_dwordx2 v[6:7], v3, {sr(R_WS,4)}, s{S_B} offen{SC}")
    o("s_branch L_rec")
    o("L_w13:")
    o(f"s_cmp_eq_u32 s{S_BUCKET}, 63")
    o(f"s_cbranch_scc0 L_rec")
    o(f"v_lshlrev_b32 v3, 4, v2")
    o(f"v_add_u32 v3, {DUMMY_ROW*128}, v3")
    o(f"v_mov_b32 v16, 0x7f007f00")
    o(f"v_mov_b32 v17, 0x7f007f00")
    o(f"v_mov_b32 v18, 0")
    o(f"v_mov_b32 v19, 0")
    o("s_mov_b64 exec, 0xff")
    o(f"buffer_store_dwordx4 {vr(16,4)}, v3, {sr(R_TAB,4)}, 0 offen{SC}")
    o("s_mov_b64 exec, -1")
    o("s_branch L_rec")
    o("L_w14:")
    get_tag(o, "L_gb")
    o(f"v_lshlrev_b32 v3, 5, v2")
    o(f"s_lshl_b32 s{S_B}, s{S_BUCKET}, 11")
    o(f"s_add_u32 s{S_B}, s{S_B}, {OFF_OFF}")
    spin_bound(o)
    o("L_pa:")
    o(f"buffer_load_dwordx4 {vr(16,4)}, v3, {sr(R_WS,4)}, s{S_B} offen sc1")
    o(f"buffer_load_dwordx4 {vr(20,4)}, v3, {sr(R_WS,4)}, s{S_B} offen offset:16 sc1")
    o("s_waitcnt vmcnt(0)")
    for i in range(4):
        o(f"v_xor_b32 v{24+i}, s{S_NK}, v{16+2*i}")
        o(f"v_xor_b32 v{17+2*i}, s{S_NH}, v{17+2*i}")
    o(f"v_or3_b32 v6, v24, v25, v26")
    o(f"v_or_b32 v6, v6, v27")
    o(f"v_lshrrev_b32 v6, 22, v6")
    o(f"v_or3_b32 v6, v6, v17, v19")
    o(f"v_or3_b32 v6, v6, v21, v23")
    o(f"v_cmp_ne_u32 vcc, 0, v6")
    o(f"s_cbranch_vccz L_pa_ok")
    spin_tail(o, "L_pa", 6)
    o("L_pa_ok:")
    stamp(o, 3)
    o(f"v_lshlrev_b32 v3, 4, v2")
    o(f"ds_write_b128 v3, {vr(24,4)} offset:{OFFL}")
    o("s_waitcnt lgkmcnt(0)")
    o(f"ds_write_b32 v{vZ}, v15 offset:{F_OFFL}")
    o("s_branch L_rec")
    o("L_gemm:")
    o("s_setprio 0")
    o(f"v_lshrrev_b32 v12, 4, v2")
    o(f"v_lshlrev_b32 v3, 2, v12")
    o(f"v_and_b32 v4, 15, v2")
    o(f"v_xor_b32 v3, v3, v4")
    o(f"v_lshlrev_b32 v3, 4, v3")
    o(f"v_lshl_add_u32 v12, v12, 8, v3")
    o(f"s_cmp_lt_u32 s{S_WAVE}, {EARLY}")
    o(f"s_cbranch_scc1 L_go_ok")
    lds_wait(o, "L_go", F_GO, 1, 3)
    o(f"s_lshl_b32 s{S_A}, s{S_WAVE}, 5")
    o(f"s_add_u32 s{S_A}, s{S_A}, s{S_NODE0}")
    o(f"s_lshl_b32 s{S_A}, s{S_A}, 8")
    o(f"s_add_u32 s{S_B}, s{S_A}, 4096")
    o(f"s_mul_i32 s{S_C}, s{S_WAVE}, {XTS}")
    o(f"s_add_u32 s{S_C}, s{S_C}, {XT}")
    for i in range(8):
        o(f"s_add_u32 m0, s{S_C}, {16*i + (4096 if i >= 4 else 0)}")
        if i == 2: o(f"s_cmp_eq_u32 s{S_WAVE}, 12"); o("s_cbranch_scc1 L_xdone")
        else: o("s_nop 0")
        o(f"buffer_load_dwordx4 v12, {sr(R_X,4)}, s{S_B if i >= 4 else S_A} offen offset:{(i&3)*1024} lds")
    o("L_xdone:")
    if STAMP is not None and STAMP < TEAM0: stamp(o, 1)
    o(f"v_and_b32 v6, 31, v2")
    o(f"v_lshrrev_b32 v7, 5, v2")
    o(f"v_lshrrev_b32 v3, 2, v6")
    o(f"s_movk_i32 s{S_A}, 1040")
    o(f"v_mul_u32_u24 v3, s{S_A}, v3")
    o(f"v_and_b32 v12, 3, v6")
    o(f"v_lshl_add_u32 v3, v12, 8, v3")
    o(f"v_lshl_add_u32 v3, v7, 4, v3")
    o(f"v_add_u32 v3, s{S_C}, v3")
    o(f"v_xor_b32 v12, s{S_SLICE}, v12")
    for u in range(4):
        o(f"v_xor_b32 v4, {u}, v12")
        o(f"v_lshl_add_u32 v{vD+u}, v4, 6, v3")
    o(f"v_bfe_u32 v3, v2, 2, 2")
    o(f"v_lshl_add_u32 v8, v7, 3, v3")
    o(f"v_lshlrev_b32 v8, 6, v8")
    o(f"v_bfe_u32 v3, v2, 4, 1")
    o(f"v_lshl_add_u32 v8, v3, 5, v8")
    o(f"v_and_b32 v3, 3, v2")
    o(f"v_lshl_add_u32 v8, v3, 3, v8")
    o(f"v_add_u32 v8, {WOFF}, v8")
    o("s_waitcnt vmcnt(0)")
    stamp(o, 2 if STAMP is not None and STAMP < TEAM0 else 3)
    for t in range(8):
        o(f"ds_read_b128 {vr(vX+4*t,4)}, v{vD+(t>>1)} offset:{(t&1)*32}")
    lds_wait(o, "L_ww", F_SOFT, 2*NT, 3)
    gemm_pair(o, vW, vX, aP, aQ, 8, 0)
    scale_p(o, aP); scale_q(o, aQ)
    o(f"v_and_b32 v3, 7, v6")
    o(f"v_xor_b32 v3, v3, v7")
    o(f"v_lshlrev_b32 v3, 4, v3")
    o(f"v_lshl_add_u32 v3, v6, 7, v3")
    o(f"v_add_u32 v3, s{S_C}, v3")
    for q in range(4):
        d = vD + (q & 1)*4
        encode4(o, aP+4*q, d); encode4(o, aQ+4*q, d+2)
        if q: o(f"v_xor_b32 v3, {32*(q ^ (q-1))}, v3")
        o(f"ds_write_b128 v3, {vr(d,4)}")
    o(f"v_lshrrev_b32 v3, 3, v2")
    o(f"v_xor_b32 v12, v1, v3")
    o(f"v_lshlrev_b32 v12, 4, v12")
    o(f"v_lshl_add_u32 v12, v3, 7, v12")
    o(f"v_add_u32 v12, s{S_C}, v12")
    o(f"s_lshl_b32 s{S_A}, s{S_WAVE}, 5")
    o(f"s_add_u32 s{S_A}, s{S_A}, s{S_NODE0}")
    o(f"s_lshl_b32 s{S_A}, s{S_A}, 7")
    o(f"v_lshlrev_b32 v3, 4, v2")
    o("s_waitcnt lgkmcnt(0)")
    for i in range(4):
        o(f"ds_read_b128 {vr(aP+4*i,4)}, v12 offset:{i*1024}")
    o(f"s_cmp_eq_u32 s{S_WAVE}, 12")
    for i in range(4):
        o(f"s_waitcnt lgkmcnt({3-i})")
        o(f"buffer_store_dwordx4 {vr(aP+4*i,4)}, v3, {sr(R_TAB,4)}, s{S_A} offen offset:{i*1024}{SC}")
        if i == 0: o(f"s_cbranch_scc1 L_st_done")
    o("L_st_done:")
    if STAMP is not None and STAMP < TEAM0: stamp(o, 3)
    gemm_pair(o, vW, vX, aP, aQ, 8, 16384)
    scale_p(o, aP); scale_q(o, aQ)
    o(f"v_max3_f32 v3, |v{aP}|, |v{aP+1}|, |v{aP+2}|")
    for i in range(3, 15, 2):
        o(f"v_max3_f32 v3, v3, |v{aP+i}|, |v{aP+i+1}|")
    o(f"v_max_f32 v3, v3, |v{aP+15}|")
    o(f"v_pk_add_f32 {vr(vD,2)}, {vr(aP,2)}, {vr(aP+2,2)}")
    for i in range(4, 16, 2):
        o(f"v_pk_add_f32 {vr(vD,2)}, {vr(vD,2)}, {vr(aP+i,2)}")
    o(f"v_add_f32 v{vD}, v{vD}, v{vD+1}")
    o(f"v_mul_f32 v{vD}, 0, v{vD}")
    o(f"v_add_f32 v3, v3, v{vD}")
    o(f"s_mov_b32 s{S_A}, 0x42700000")
    o(f"s_cmp_eq_u32 s{S_WAVE}, 12")
    o(f"s_cselect_b32 s{S_EX}, 0xff, -1")
    o(f"v_cmp_nge_f32 vcc, s{S_A}, v3")
    o(f"s_mov_b32 s{S_EX+1}, s{S_EX}")
    o(f"s_and_b64 vcc, vcc, {sr(S_EX,2)}")
    o(f"s_cbranch_scc0 L_doexp")
    o(f"v_lshlrev_b32 v3, s{S_WAVE}, v15")
    o(f"ds_or_b32 v{vZ}, v3 offset:{F_RANGE}")
    o("s_branch L_noexp")
    o("L_doexp:")
    for i in range(16): o(f"v_exp_f32 v{aP+i}, v{aP+i}")
    o("L_noexp:")
    for q in range(4): encode4(o, aQ+4*q, vW+4*q+2)
    for q in range(4): encode4(o, aP+4*q, vW+4*q)
    o("L_rec:")
    o("s_setprio 0")
    if STAMP is not None and STAMP < 13: stamp(o, 4)
    vCNT, vIDX, vRA = 4, 5, 12
    o(f"v_and_b32 v{vIDX}, 3, v0")
    o(f"v_lshlrev_b32 v{vIDX}, 1, v{vIDX}")
    o(f"v_lshrrev_b32 v3, 2, v0")
    o(f"s_movk_i32 s{S_A}, {SEG}")
    o(f"v_mul_u32_u24 v{vRA}, s{S_A}, v3")
    o(f"v_and_b32 v14, 0xffc, v0")
    lds_wait(o, "L_wo", F_OFFL, 1, 3)
    o(f"ds_read_b32 v{vCNT}, v14 offset:{OFFL}")
    o(f"s_mov_b32 s{S_A}, {REC_OFF}")
    o("s_waitcnt lgkmcnt(0)")
    o(f"v_and_b32 v3, 0x7ff, v{vCNT}")
    o(f"v_lshrrev_b32 v{vCNT}, 11, v{vCNT}")
    o(f"v_add_u32 v3, v3, v{vIDX}")
    o(f"v_lshl_add_u32 v{vRA}, v3, 3, v{vRA}")
    o(f"v_sub_u32 v{vIDX}, v{vCNT}, v{vIDX}")
    for r in range(12):
        o(f"v_cmp_lt_i32 {sr(S_MSK+2*r,2)}, {8*(r>>1) + (r&1)}, v{vIDX}")
    for k in range(6):
        o(f"s_mov_b64 exec, {sr(S_MSK+4*k,2)}")
        o(f"buffer_load_dwordx4 {vr(vREC+4*k,4)}, v{vRA}, {sr(R_WS,4)}, s{S_A} offen offset:{k*64}{SC}")
    o("s_mov_b64 exec, -1")
    o(f"v_cmpx_lt_u32 vcc, 48, v{vCNT}")
    o(f"ds_write_b32 v{vZ}, v15 offset:{F_STRUCT}")
    o("s_mov_b64 exec, -1")
    stamp(o, 5)
    vRK = 24; vDA = 36
    o("s_waitcnt vmcnt(0)")
    for r in range(12):
        o(f"s_mov_b64 exec, {sr(S_MSK+2*r,2)}")
        o(f"v_and_b32 v{vDA+r}, 0xffff, v{vREC+2*r}")
        o(f"ds_add_rtn_u32 v{vRK+r}, v{vDA+r}, v15 offset:{DEG}")
    o("s_mov_b64 exec, -1")
    stamp(o, 6)
    o("s_waitcnt lgkmcnt(0)")
    o("s_barrier")
    stamp(o, 7)
    vN_D, vBIN, vR2, vPOS, vL, vTB = 80, 81, 82, 83, 84, 85
    o(f"s_movk_i32 s{S_D}, {NPB}")
    o(f"s_cmp_lt_u32 s{S_WAVE}, 7")
    o(f"s_cbranch_scc0 L_s5_skip")
    o(f"ds_read_b32 v{vN_D}, v9 offset:{DEG}")
    o("s_waitcnt lgkmcnt(0)")
    o(f"v_min_u32 v{vBIN}, 63, v{vN_D}")
    o(f"v_sub_u32 v{vBIN}, 63, v{vBIN}")
    o(f"v_lshlrev_b32 v{vBIN}, 2, v{vBIN}")
    o(f"v_cmpx_gt_u32 vcc, s{S_D}, v0")
    o(f"ds_add_rtn_u32 v{vR2}, v{vBIN}, v15 offset:{HIST2}")
    o(f"v_cmpx_lt_u32 vcc, 63, v{vN_D}")
    o(f"ds_write_b32 v{vZ}, v15 offset:{F_STRUCT}")
    o("s_mov_b64 exec, -1")
    o("s_waitcnt lgkmcnt(0)")
    o("s_branch L_s5_done")
    o("L_s5_skip:")
    o(f"s_cmp_eq_u32 s{S_WAVE}, 15")
    o(f"s_cbranch_scc0 L_s5_done")
    o(f"s_lshl_b32 s{S_B}, s{S_SLICE}, 6")
    o(f"s_add_u32 s{S_B}, s{S_B}, s{S_BUCKET}")
    o(f"s_lshl_b32 s{S_B}, s{S_B}, 3")
    o(f"s_add_u32 s{S_B}, s{S_B}, {TF_OFF}")
    o(f"v_mov_b32 v6, s{S_NK}")
    o(f"v_mov_b32 v7, s{S_NH}")
    o("s_mov_b64 exec, 1")
    o(f"buffer_store_dwordx2 v[6:7], v{vZ}, {sr(R_WS,4)}, s{S_B} offen sc1")
    o("s_mov_b64 exec, -1")
    o("L_s5_done:")
    o("s_barrier")
    o(f"s_cmp_lt_u32 s{S_WAVE}, 7")
    o(f"s_cbranch_scc0 L_s6_skip")
    o(f"v_lshlrev_b32 v3, 2, v2")
    o(f"ds_read_b32 v6, v3 offset:{HIST2}")
    o("s_waitcnt lgkmcnt(0)")
    o(f"v_mov_b32 v14, v6")
    scan64(o, 14)
    o(f"v_sub_u32 v14, v14, v6")
    o(f"ds_bpermute_b32 v{vPOS}, v{vBIN}, v14")
    o(f"v_lshl_or_b32 v6, v{vN_D}, 16, v0")
    o("s_waitcnt lgkmcnt(0)")
    o(f"v_add_u32 v{vPOS}, v{vPOS}, v{vR2}")
    o(f"v_lshlrev_b32 v3, 2, v{vPOS}")
    o(f"v_cmpx_gt_u32 vcc, s{S_D}, v0")
    o(f"ds_write_b32 v3, v6 offset:{SNODE}")
    o("s_mov_b64 exec, -1")
    o("L_s6_skip:")
    vWX, vEX, vDen, vNum, vNQ, vT, vLO, vLA, vOB, vOA, vAB, vAU = 86, 90, 92, 96, 100, 64, 72, 73, 74, 75, 76, 78
    o(f"v_lshrrev_b32 v3, 2, v2")
    o(f"v_and_b32 v6, 1, v2")
    o(f"v_mul_u32_u24 v6, 15, v6")
    o(f"v_xor_b32 v3, v3, v6")
    o(f"v_and_b32 v6, 3, v2")
    o(f"v_lshl_add_u32 v3, v6, 4, v3")
    o(f"v_cmp_gt_u32 vcc, 49, v3")
    o(f"v_min_u32 v3, 48, v3")
    o(f"v_lshlrev_b32 v3, 5, v3")
    o(f"v_lshlrev_b32 v{vWX}, 16, v{vWC}")
    o(f"v_lshlrev_b32 v{vWX+1}, 16, v{vWC+1}")
    o(f"v_and_b32 v{vWX+2}, 0xffff0000, v{vWC}")
    o(f"v_and_b32 v{vWX+3}, 0xffff0000, v{vWC+1}")
    for i in range(4): o(f"v_mul_f32 v{vWX+i}, s{S_CT}, v{vWX+i}")
    o(f"v_lshlrev_b32 v{vLO}, 4, v1")
    o(f"v_mul_u32_u24 v{vAB}, 24, v1")
    o(f"v_add_u32 v{vAB}, {AUX}, v{vAB}")
    o(f"s_lshl_b32 s{S_A}, s{S_NODE0}, 8")
    o(f"s_lshl_b32 s{S_B}, s{S_SLICE}, 6")
    o(f"s_add_u32 s{S_A}, s{S_A}, s{S_B}")
    o(f"v_lshl_add_u32 v{vOB}, v1, 3, s{S_A}")
    o("s_waitcnt lgkmcnt(0)")
    o("s_barrier")
    stamp(o, 8)
    o(f"ds_read_u16 v{vL}, v3 offset:{SNODE+2}")
    o(f"ds_read_b64 v[6:7], v{vZ} offset:{F_STRUCT}")
    o("s_waitcnt lgkmcnt(0)")
    o(f"v_cndmask_b32 v{vL}, 0, v{vL}, vcc")
    o(f"v_readfirstlane_b32 s{S_B}, v6")
    o(f"v_readfirstlane_b32 s{S_MODE}, v7")
    o(f"v_mov_b32 v{vTB}, v{vL}")
    scan64(o, vTB)
    o(f"s_or_b32 s{S_B}, s{S_B}, s{S_MODE}")
    o(f"v_readlane_b32 s{S_A}, v{vTB}, 63")
    o(f"v_sub_u32 v{vTB}, v{vTB}, v{vL}")
    o(f"s_cmp_gt_u32 s{S_A}, {ELL_ITERS}")
    o(f"s_cselect_b32 s{S_B}, 1, s{S_B}")
    o(f"v_lshl_or_b32 v{vTB}, v{vTB}, 8, v{vL}")
    o(f"s_cmp_lg_u32 s{S_B}, 0")
    o(f"s_cbranch_scc1 L_slow")
    o(f"s_cmp_lt_u32 s{S_WAVE}, 7")
    o(f"s_cbranch_scc0 L_s7_skip")
    o(f"v_lshrrev_b32 v3, 7, v{vPOS}")
    o(f"v_bfe_u32 v6, v{vPOS}, 3, 4")
    o(f"v_and_b32 v14, 1, v3")
    o(f"v_mul_u32_u24 v14, 15, v14")
    o(f"v_xor_b32 v6, v6, v14")
    o(f"v_lshl_add_u32 v3, v6, 2, v3")
    o(f"v_lshlrev_b32 v3, 2, v3")
    o(f"ds_bpermute_b32 v6, v3, v{vTB}")
    o(f"v_and_b32 v14, 7, v{vPOS}")
    o(f"v_lshlrev_b32 v14, 3, v14")
    o(f"v_add_u32 v14, {ELL}, v14")
    o(f"v_mov_b32 v{vD+6}, {DUMMY_ROW << 16}")
    o(f"v_mov_b32 v{vD+7}, 0")
    o("s_waitcnt lgkmcnt(0)")
    o(f"v_lshrrev_b32 v3, 8, v6")
    o(f"v_and_b32 v6, 0xff, v6")
    o(f"v_lshl_add_u32 v3, v3, 6, v14")
    o(f"v_cmpx_gt_u32 vcc, s{S_D}, v0")
    o(f"ds_write_b32 v9, v3 offset:{SLOT}")
    o(f"v_lshl_add_u32 v3, v{vN_D}, 6, v3")
    o("L_pad:")
    o(f"v_cmpx_gt_u32 vcc, v6, v{vN_D}")
    o(f"s_cbranch_execz L_pad_done")
    o(f"ds_write_b64 v3, {vr(vD+6,2)}")
    o(f"v_add_u32 v3, 64, v3")
    o(f"v_add_u32 v{vN_D}, 1, v{vN_D}")
    o("s_branch L_pad")
    o("L_pad_done:")
    o("s_mov_b64 exec, -1")
    o("L_s7_skip:")
    o(f"s_lshl_b32 s{S_A}, s{S_WAVE}, 2")
    o(f"v_readlane_b32 s{S_C}, v{vTB}, s{S_A}")
    o(f"s_add_u32 s{S_A}, s{S_A}, 1")
    o(f"v_readlane_b32 s{S_L1}, v{vL}, s{S_A}")
    o(f"s_add_u32 s{S_A}, s{S_A}, 1")
    o(f"v_readlane_b32 s{S_L2}, v{vL}, s{S_A}")
    o(f"s_add_u32 s{S_A}, s{S_A}, 1")
    o(f"v_readlane_b32 s{S_L3}, v{vL}, s{S_A}")
    o(f"s_and_b32 s{S_CNT}, s{S_C}, 0xff")
    o(f"s_lshr_b32 s{S_C}, s{S_C}, 8")
    o("s_waitcnt lgkmcnt(0)")
    o("s_barrier")
    stamp(o, 9)
    for r in range(12):
        o(f"s_mov_b64 exec, {sr(S_MSK+2*r,2)}")
        o(f"ds_read_b32 v{vDA+r}, v{vDA+r} offset:{SLOT}")
    o("s_mov_b64 exec, -1")
    o(f"v_lshrrev_b32 v3, 3, v2")
    o(f"v_lshlrev_b32 v6, 2, v3")
    o(f"s_lshl_b32 s{S_A}, s{S_WAVE}, 5")
    o(f"s_sub_u32 s{S_B}, {31*32}, s{S_A}")
    o(f"v_add_u32 v14, s{S_A}, v6")
    o(f"v_add_u32 v12, s{S_B}, v6")
    o(f"s_lshl_b32 s{S_C}, s{S_C}, 6")
    o(f"s_add_u32 s{S_C}, s{S_C}, {ELL}")
    o(f"v_lshl_add_u32 v{vLA}, v3, 3, s{S_C}")
    o("s_waitcnt lgkmcnt(0)")
    for r in range(12):
        o(f"s_mov_b64 exec, {sr(S_MSK+2*r,2)}")
        o(f"v_lshl_add_u32 v{vDA+r}, v{vRK+r}, 6, v{vDA+r}")
        o(f"ds_write_b64 v{vDA+r}, {vr(vREC+2*r,2)}")
    o("s_mov_b64 exec, -1")
    o(f"ds_read_u16 v{vNQ}, v14 offset:{SNODE}")
    o(f"ds_read_u16 v{vT}, v12 offset:{SNODE}")
    o(f"ds_read_u16 v{vNQ+1}, v14 offset:{SNODE+32*32}")
    o(f"ds_read_u16 v{vT+1}, v6 offset:{SNODE+48*32}")
    def aux_write(lab):
        o(f"s_cmp_lt_u32 s{S_WAVE}, 13")
        o(f"s_cbranch_scc0 {lab}")
        o(f"s_lshl_b32 s{S_A}, s{S_WAVE}, 5")
        o(f"v_and_b32 v3, 31, v2")
        o(f"v_add_u32 v3, s{S_A}, v3")
        o(f"s_movk_i32 s{S_A}, {AUS}")
        o(f"v_mul_u32_u24 v3, s{S_A}, v3")
        o(f"v_lshrrev_b32 v14, 5, v2")
        o(f"v_mul_u32_u24 v14, 24, v14")
        o(f"v_add3_u32 v3, v3, v14, s{S_D}")
        o(f"v_add_u32 v14, v3, v14")
        for q in range(4):
            o(f"ds_write2_b64 v3, {vr(vW+4*q,2)}, {vr(vW+4*q+2,2)} offset0:{6*q} offset1:{6*q+1}")
        o(f"ds_write2_b64 v14, {vr(vX,2)}, {vr(vX+2,2)} offset0:2 offset1:5")
        o(f"ds_write2_b64 v14, {vr(vX+4,2)}, {vr(vX+6,2)} offset0:14 offset1:17")
        o(f"{lab}:")
    o(f"s_movk_i32 s{S_D}, {AUX}")
    aux_write("L_noaux")
    stamp(o, 10)
    o(f"s_cmp_eq_u32 s{S_WAVE}, 14")
    o(f"s_cbranch_scc0 L_nopoll2")
    poll_tables(o, "L_pb")
    o("L_nopoll2:")
    o(f"s_cmp_eq_u32 s{S_WAVE}, 15")
    o(f"s_cselect_b32 s{S_NT}, 4, 3")
    o(f"s_movk_i32 s{S_A}, {AUS}")
    o(f"s_movk_i32 s{S_B}, 256")
    o(f"s_movk_i32 s{S_D}, 128")
    o("s_waitcnt lgkmcnt(0)")
    o(f"v_lshl_or_b32 v{vNQ}, v{vT}, 16, v{vNQ}")
    o(f"v_lshl_or_b32 v{vNQ+1}, v{vT+1}, 16, v{vNQ+1}")
    o("s_barrier")
    stamp(o, 11)
    vDK = 16; vRKk = 104
    assert vDK + 4*PD <= 64 and vRKk + 2*PD <= 128
    def gaddr(R): o(f"v_mad_u32_u16 v{R}, v{R}, s{S_D}, v{vLO} op_sel:[1,0,0,0]")
    for k in range(PD):
        o(f"ds_read_b64 {vr(vRKk+2*k,2)}, v{vLA} offset:{k*64}")
    for k in range(PD):
        o(f"s_waitcnt lgkmcnt({PD-1-k})")
        gaddr(vRKk+2*k)
        o(f"buffer_load_dwordx4 {vr(vDK+4*k,4)}, v{vRKk+2*k}, {sr(R_TAB,4)}, 0 offen{SC}")
    def promote():
        o(f"v_mad_u32_u16 v3, v{vNQ}, s{S_A}, v{vAB}")
        o(f"v_mad_u32_u16 v{vOA}, v{vNQ}, s{S_B}, v{vOB}")
        o(f"ds_read2_b64 {vr(vAU,4)}, v3 offset0:0 offset1:1")
        o(f"ds_read_b64 {vr(vAU+4,2)}, v3 offset:16")
        o(f"v_lshrrev_b64 {vr(vNQ,2)}, 16, {vr(vNQ,2)}")
        for i in range(0, 8, 2): o(f"v_mov_b64 {vr(vDen+i,2)}, 0")
        o("s_waitcnt lgkmcnt(0)")
        o(f"v_lshlrev_b64 {vr(vEX,2)}, 16, {vr(vAU,2)}")
    promote()
    o(f"s_sub_u32 s{S_CNT}, s{S_CNT}, 1")
    o(f"s_cbranch_scc1 M_sw{PD-1}")
    o("M_loop:")
    for k in range(PD):
        D = vDK + 4*k; R = vRKk + 2*k
        o(f"M_it{k}:")
        o(f"s_waitcnt vmcnt({PD-1})")
        o(f"v_lshlrev_b64 {vr(vT,2)}, 16, {vr(D,2)}")
        o(f"v_pk_fma_f32 {vr(vT+2,2)}, {vr(R,2)}, {vr(vWX+2,2)}, {vr(D,2)} op_sel:[1,0,0] op_sel_hi:[1,1,1]")
        o(f"v_pk_fma_f32 {vr(vT,2)}, {vr(R,2)}, {vr(vWX,2)}, {vr(vT,2)} op_sel:[1,0,0] op_sel_hi:[1,1,1]")
        o(f"ds_read_b64 {vr(R,2)}, v{vLA} offset:{(k+PD)*64}")
        o(f"v_exp_f32 v{vT+2}, v{vT+2}")
        o(f"v_exp_f32 v{vT+3}, v{vT+3}")
        o(f"v_exp_f32 v{vT}, v{vT}")
        o(f"v_exp_f32 v{vT+1}, v{vT+1}")
        o(f"v_lshlrev_b64 {vr(vT+4,2)}, 16, {vr(D+2,2)}")
        o(f"v_pk_fma_f32 {vr(vT+2,2)}, {vr(vT+2,2)}, {vr(vAU,2)}, 1.0 op_sel_hi:[1,1,0]")
        o(f"v_pk_fma_f32 {vr(vT,2)}, {vr(vT,2)}, {vr(vEX,2)}, 1.0 op_sel_hi:[1,1,0]")
        if k == PD-1:
            o(f"v_add_u32 v{vLA}, {PD*64}, v{vLA}")
        o(f"v_rcp_f32 v{vT+2}, v{vT+2}")
        o(f"v_rcp_f32 v{vT+3}, v{vT+3}")
        o(f"v_rcp_f32 v{vT}, v{vT}")
        o(f"v_rcp_f32 v{vT+1}, v{vT+1}")
        o(f"v_pk_add_f32 {vr(vDen+2,2)}, {vr(vDen+2,2)}, {vr(vT+2,2)}")
        o(f"v_pk_fma_f32 {vr(vNum+2,2)}, {vr(vT+2,2)}, {vr(D+2,2)}, {vr(vNum+2,2)}")
        o(f"v_pk_add_f32 {vr(vDen,2)}, {vr(vDen,2)}, {vr(vT,2)}")
        o(f"v_pk_fma_f32 {vr(vNum,2)}, {vr(vT,2)}, {vr(vT+4,2)}, {vr(vNum,2)}")
        o("s_waitcnt lgkmcnt(0)")
        gaddr(R)
        o(f"s_sub_u32 s{S_CNT}, s{S_CNT}, 1")
        o(f"buffer_load_dwordx4 {vr(D,4)}, v{R}, {sr(R_TAB,4)}, 0 offen{SC}")
        o(f"s_cbranch_scc1 M_sw{k}")
    o("s_branch M_loop")
    for k in range(PD):
        o(f"M_sw{k}:")
        finalize(o, vDen, vNum, vAU+2, vAU+4, vT, vOA)
        o(f"s_sub_u32 s{S_NT}, s{S_NT}, 1")
        o(f"s_cmp_eq_u32 s{S_NT}, 0")
        o(f"s_cbranch_scc1 L_end")
        promote()
        o(f"s_sub_u32 s{S_CNT}, s{S_L1}, 1")
        o(f"s_mov_b32 s{S_L1}, s{S_L2}")
        o(f"s_mov_b32 s{S_L2}, s{S_L3}")
        o(f"s_cbranch_scc1 M_sw{k}")
        o(f"s_branch M_it{(k+1)%PD}")
    o("L_slow:")
    vG, vI, vA2, vLOC, vR2_, vD2, vT2, vAcc = 16, 17, 18, 19, 20, 24, 32, 44
    o(f"s_movk_i32 s{S_D}, {AUX}")
    aux_write("S_noaux")
    o(f"s_cmp_eq_u32 s{S_WAVE}, 14")
    o(f"s_cbranch_scc0 S_nopoll")
    poll_tables(o, "L_pc")
    o("S_nopoll:")
    o(f"v_lshrrev_b32 v{vG}, 3, v0")
    o(f"s_mov_b32 s{S_HALFI}, 0")
    o(f"s_movk_i32 s{S_D}, {AUS}")
    o(f"s_movk_i32 s{S_CNT}, 128")
    o("S_half:")
    o("s_barrier")
    for i in range(4): o(f"v_mov_b32 v{vD2+i}, 0")
    o(f"v_lshlrev_b32 v3, 4, v0")
    o(f"v_add_u32 v3, {ELL}, v3")
    for i in range(3): o(f"ds_write_b128 v3, {vr(vD2,4)} offset:{i*16384}")
    o(f"s_cmp_lt_u32 s{S_WAVE}, 8")
    o(f"s_cbranch_scc0 S_nofill")
    o(f"ds_write_b128 v3, {vr(vD2,4)} offset:{3*16384}")
    o("S_nofill:")
    o("s_waitcnt lgkmcnt(0)")
    o("s_barrier")
    o(f"s_mov_b32 s{S_PP}, 0")
    o("S_piece:")
    o(f"v_add_u32 v3, s{S_PP}, v{vG}")
    o(f"v_lshlrev_b32 v5, 2, v3")
    o(f"ds_read_b32 v4, v5 offset:{OFFL}")
    o(f"s_movk_i32 s{S_A}, {SEG}")
    o(f"v_mul_u32_u24 v{vA2}, s{S_A}, v3")
    o(f"v_mov_b32 v{vI}, 0")
    o("s_waitcnt lgkmcnt(0)")
    o(f"v_and_b32 v5, 0x7ff, v4")
    o(f"v_lshrrev_b32 v4, 11, v4")
    o(f"v_lshl_add_u32 v{vA2}, v5, 3, v{vA2}")
    o(f"s_mov_b32 s{S_A}, {REC_OFF}")
    o(f"s_mul_i32 s{S_B}, s{S_HALFI}, 196")
    o(f"s_movk_i32 s{S_C}, 196")
    o("S_rec:")
    o(f"v_cmpx_gt_u32 vcc, v4, v{vI}")
    o(f"s_cbranch_execz S_rec_done")
    o(f"buffer_load_dwordx2 {vr(vR2_,2)}, v{vA2}, {sr(R_WS,4)}, s{S_A} offen{SC}")
    o("s_waitcnt vmcnt(0)")
    o(f"v_bfe_u32 v5, v{vR2_}, 2, 14")
    o(f"v_subrev_u32 v{vLOC}, s{S_B}, v5")
    o(f"v_mad_u32_u16 v{vR2_}, v{vR2_}, s{S_CNT}, v{vLO} op_sel:[1,0,0,0]")
    o(f"v_mad_u32_u24 v3, v5, s{S_D}, v{vAB}")
    o(f"v_lshlrev_b32 v{vAcc}, 8, v{vLOC}")
    o(f"v_lshl_add_u32 v{vAcc}, v1, 5, v{vAcc}")
    o(f"v_add_u32 v{vAcc}, {ELL}, v{vAcc}")
    o(f"v_cmpx_gt_u32 vcc, s{S_C}, v{vLOC}")
    o(f"s_cbranch_execz S_rec_next")
    o(f"buffer_load_dwordx4 {vr(vD2,4)}, v{vR2_}, {sr(R_TAB,4)}, 0 offen{SC}")
    o(f"ds_read_b64 {vr(vAU,2)}, v3")
    o("s_waitcnt vmcnt(0) lgkmcnt(0)")
    T = vT2
    o(f"v_lshlrev_b64 {vr(T,2)}, 16, {vr(vD2,2)}")
    o(f"v_lshlrev_b64 {vr(T+4,2)}, 16, {vr(vD2+2,2)}")
    o(f"v_lshlrev_b64 {vr(T+6,2)}, 16, {vr(vAU,2)}")
    o(f"v_lshrrev_b32 v5, 5, v5")
    o(f"v_lshrrev_b32 v5, v5, s{S_MODE}")
    o(f"v_and_b32 v5, 1, v5")
    o(f"v_cmp_eq_u32 vcc, 0, v5")
    for r in (T+6, T+7, vAU, vAU+1):
        o(f"v_log_f32 v3, v{r}")
        o("s_nop 0")
        o(f"v_cndmask_b32 v{r}, v{r}, v3, vcc")
    o(f"v_pk_add_f32 {vr(T,2)}, {vr(T,2)}, {vr(T+6,2)}")
    o(f"v_pk_add_f32 {vr(T+2,2)}, {vr(vD2,2)}, {vr(vAU,2)}")
    o(f"v_pk_fma_f32 {vr(T,2)}, {vr(vR2_,2)}, {vr(vWX,2)}, {vr(T,2)} op_sel:[1,0,0] op_sel_hi:[1,1,1]")
    o(f"v_pk_fma_f32 {vr(T+2,2)}, {vr(vR2_,2)}, {vr(vWX+2,2)}, {vr(T+2,2)} op_sel:[1,0,0] op_sel_hi:[1,1,1]")
    for i in range(4): o(f"v_exp_f32 v{T+i}, v{T+i}")
    o("s_nop 0")
    o(f"v_pk_add_f32 {vr(T,2)}, {vr(T,2)}, 1.0 op_sel_hi:[1,0]")
    o(f"v_pk_add_f32 {vr(T+2,2)}, {vr(T+2,2)}, 1.0 op_sel_hi:[1,0]")
    for i in range(4): o(f"v_rcp_f32 v{T+i}, v{T+i}")
    o("s_nop 0")
    o(f"v_pk_mul_f32 {vr(T+4,2)}, {vr(T+4,2)}, {vr(T,2)}")
    o(f"v_pk_mul_f32 {vr(T+6,2)}, {vr(vD2+2,2)}, {vr(T+2,2)}")
    for i in range(8): o(f"ds_add_f32 v{vAcc}, v{T+i} offset:{4*i}")
    o("S_rec_next:")
    o("s_mov_b64 exec, -1")
    o(f"v_add_u32 v{vI}, 1, v{vI}")
    o(f"v_add_u32 v{vA2}, 8, v{vA2}")
    o("s_branch S_rec")
    o("S_rec_done:")
    o("s_mov_b64 exec, -1")
    o(f"s_add_u32 s{S_PP}, s{S_PP}, 128")
    o(f"s_cmp_lt_u32 s{S_PP}, 256")
    o("s_cbranch_scc1 S_piece")
    o("s_waitcnt lgkmcnt(0)")
    o("s_barrier")
    o(f"s_mov_b32 s{S_PP}, 0")
    o("S_fin:")
    o(f"v_add_u32 v{vLOC}, s{S_PP}, v{vG}")
    o(f"v_add_u32 v5, s{S_B}, v{vLOC}")
    o(f"v_mad_u32_u24 v3, v5, s{S_D}, v{vAB}")
    o(f"v_lshlrev_b32 v{vAcc}, 8, v{vLOC}")
    o(f"v_lshl_add_u32 v{vAcc}, v1, 5, v{vAcc}")
    o(f"v_add_u32 v{vAcc}, {ELL}, v{vAcc}")
    o(f"v_lshl_add_u32 v{vOA}, v5, 8, v{vOB}")
    o(f"v_cmpx_gt_u32 vcc, s{S_C}, v{vLOC}")
    o(f"s_cbranch_execz S_fin_next")
    o(f"ds_read2_b64 {vr(vAU+2,4)}, v3 offset0:1 offset1:2")
    o(f"ds_read_b128 {vr(24,4)}, v{vAcc}")
    o(f"ds_read_b128 {vr(28,4)}, v{vAcc} offset:16")
    o("s_waitcnt lgkmcnt(0)")
    finalize(o, 24, 28, vAU+2, vAU+4, vT, vOA)
    o("S_fin_next:")
    o("s_mov_b64 exec, -1")
    o(f"s_add_u32 s{S_PP}, s{S_PP}, 128")
    o(f"s_cmp_lt_u32 s{S_PP}, 256")
    o("s_cbranch_scc1 S_fin")
    o(f"s_add_u32 s{S_HALFI}, s{S_HALFI}, 1")
    o(f"s_cmp_lt_u32 s{S_HALFI}, 2")
    o("s_cbranch_scc1 S_half")
    o("L_end:")
    stamp(o, 12)
    stamp_flush(o, 13)
    o("L_exit:")
    o("s_endpgm")

def main():
    global STAMP, PD, EARLY
    for a in sys.argv[2:]:
        if a.startswith("stamp="): STAMP = int(a[6:])
        elif a.startswith("pd="): PD = int(a[3:])
        elif a.startswith("early="): EARLY = int(a[6:])
        else: OPT.add(a)
    ref = open(f"cdna_kernels/{NAME}.s.ref").read().split("\n")
    head = [l for l in ref if l.startswith(";") and "@launch" not in l]
    out = "\n".join(head) + "\n"
    out += f"; @launch grid=(256,1,1) block=(1024,1,1) lds={LDS_SIZE}\n"
    out += f'.amdgcn_target "amdgcn-amd-amdhsa--gfx950"\n.text\n.globl {NAME}_kernel\n.p2align 8\n.type {NAME}_kernel,@function\n{NAME}_kernel:\n'
    o = Asm(); kernel(o); out += o.text()
    out += f""".section .rodata,"a"
.p2align 6
.amdhsa_kernel {NAME}_kernel
  .amdhsa_next_free_vgpr 128
  .amdhsa_next_free_sgpr {102 if STAMP is not None else 88}
  .amdhsa_accum_offset 128
  .amdhsa_group_segment_fixed_size 0
  .amdhsa_kernarg_size 96
  .amdhsa_user_sgpr_count 2
  .amdhsa_user_sgpr_kernarg_segment_ptr 1
  .amdhsa_system_sgpr_workgroup_id_x 1
.end_amdhsa_kernel
"""
    path = sys.argv[1] if len(sys.argv) > 1 else f"cdna_kernels/{NAME}.s"
    open(path, "w").write(out)
    print("wrote", path, "LDS", LDS_SIZE)
main()
```

```python
import sys

NAME = "standalone__edge_featured_mpnn_gatedgcn__graph"
N = 25000; E = 400000
NPB = 392; CH = 1564
TSTRIDE = 25096*128
DUMMY_ROW = 25088
SEG = 12544
REC_OFF = 4*TSTRIDE
OFF_OFF = REC_OFF + 256*SEG
TF_OFF = OFF_OFF + 131072
WS_USED = TF_OFF + 2048
LOG2E_NEG = 0xBFB8AA3B; TINY = 0x03800000; EPS = 0x358637BD
SC = " sc1"
PD = 8
EARLY = 6
TEAM0 = 9
HISTA = 0; DEG = 256; HIST2 = DEG + 1600; FLAG = HIST2 + 256; SLOT = FLAG + 64; SNODE = SLOT + 1600; OFFL = SNODE + 1600
XT = OFFL + 1024; XTS = 8320
WOFF = XT + 13*XTS
RECS = WOFF + 32768
LDS_SIZE = RECS + SEG
AUX = XT; AUS = 200
ELL = AUX + 416*AUS
ELL_ITERS = 896
assert ELL + ELL_ITERS*64 <= RECS and ELL % 16 == 0 and XT % 128 == 0
F_STRUCT, F_RANGE, F_SOFT, F_OFFL, F_GO = FLAG, FLAG+4, FLAG+8, FLAG+12, FLAG+16

STAMP = None; OPT = set(); PFN = 150
def st_reg(i): return 88 + 2*i if i < 7 else 36 + 2*(i-7)
def stamp(o, i):
    if STAMP is None: return
    o(f"s_memrealtime s[{st_reg(i)}:{st_reg(i)+1}]")
    o("s_waitcnt lgkmcnt(0)")
def stamp_flush(o, n):
    if STAMP is None: return
    if "dbg" in OPT:
        o(f"s_cmp_eq_u32 s{S_WAVE}, {STAMP}")
        o(f"s_cbranch_scc0 L_stf")
        o(f"s_cmp_eq_u32 s{S_WG}, 77")
        o(f"s_cbranch_scc0 L_stf")
        o(f"s_mov_b64 exec, 1")
        o(f"v_mov_b32 v0, 0")
        for i in range(n):
            o(f"s_sub_u32 s{S_A}, s{st_reg(i)}, s{st_reg(0)}")
            o(f"v_mov_b32 v2, s{S_A}")
            o(f"buffer_store_dword v2, v0, {sr(R_DBG,4)}, 0 offen offset:{8+4*i}")
        o(f"L_stf:")
        return
    o(f"s_cmp_eq_u32 s{S_WAVE}, {STAMP}")
    o(f"s_cbranch_scc0 L_stf")
    o(f"s_mov_b64 exec, 1")
    o(f"s_mov_b32 s{R_WS+2}, {64<<20}")
    o(f"s_lshl_b32 s{S_A}, s{S_WG}, 7")
    o(f"s_add_u32 s{S_A}, s{S_A}, {32<<20}")
    o(f"v_mov_b32 v0, 0")
    for i in range(n):
        o(f"v_mov_b32 v2, s{st_reg(i)}")
        o(f"v_mov_b32 v3, s{st_reg(i)+1}")
        o(f"buffer_store_dwordx2 v[2:3], v0, {sr(R_WS,4)}, s{S_A} offen offset:{8*i}")
    o(f"L_stf:")

class Asm:
    def __init__(self): self.lines = []
    def __call__(self, s):
        for l in s.split("\n"):
            l = l.strip()
            if l: self.lines.append(("" if l.endswith(":") else "    ") + l)
    def text(self): return "\n".join(self.lines) + "\n"

def vr(a, n): return f"v[{a}:{a+n-1}]"
def sr(a, n): return f"s[{a}:{a+n-1}]"

def srd(o, d, base, nbytes):
    o(f"s_mov_b32 s{d}, s{base}")
    o(f"s_and_b32 s{d+1}, s{base+1}, 0xffff")
    o(f"s_mov_b32 s{d+2}, {nbytes}")
    o(f"s_mov_b32 s{d+3}, 0x20000")

def scan64(o, v):
    for sh in (1, 2, 4, 8):
        o("s_nop 1")
        o(f"v_add_u32_dpp v{v}, v{v}, v{v} row_shr:{sh} row_mask:0xf bank_mask:0xf bound_ctrl:0")
    o("s_nop 1")
    o(f"v_add_u32_dpp v{v}, v{v}, v{v} row_bcast:15 row_mask:0xa bank_mask:0xf")
    o("s_nop 1")
    o(f"v_add_u32_dpp v{v}, v{v}, v{v} row_bcast:31 row_mask:0xc bank_mask:0xf")

def gemm_pair(o, vW, vX, aP, aQ, vWaddr, base_off):
    def rd(t):
        for m in range(2):
            b = vW + (t & 1)*8 + m*4
            o(f"ds_read_b64_tr_b16 {vr(b,2)}, v{vWaddr} offset:{base_off + m*8192 + t*1024}")
            o(f"ds_read_b64_tr_b16 {vr(b+2,2)}, v{vWaddr} offset:{base_off + m*8192 + t*1024 + 256}")
    rd(0); rd(1)
    for t in range(8):
        o(f"s_waitcnt lgkmcnt({4 if t < 7 else 0})")
        for m, acc in enumerate((aP, aQ)):
            b = vW + (t & 1)*8 + m*4
            c = "0" if t == 0 else vr(acc, 16)
            o(f"v_mfma_f32_32x32x16_bf16 {vr(acc,16)}, {vr(b,4)}, {vr(vX+4*t,4)}, {c}")
        if t + 2 < 8: rd(t+2)
    o("s_nop 15")

def encode4(o, a, d):
    for i in range(4):
        o(f"v_add_u32 v{a+i}, s{S_HALF}, v{a+i}")
    for i in range(1, 4):
        o(f"v_sub_u32_sdwa v{a+i}, v{a+i}, v{a+i-1} dst_sel:DWORD dst_unused:UNUSED_PAD src0_sel:DWORD src1_sel:WORD_1")
    o(f"v_perm_b32 v{d}, v{a+1}, v{a}, s{S_PERM}")
    o(f"v_perm_b32 v{d+1}, v{a+3}, v{a+2}, s{S_PERM}")

def scale_p(o, aP):
    for i in range(0, 16, 2):
        o(f"v_pk_fma_f32 {vr(aP+i,2)}, {vr(aP+i,2)}, {sr(S_CT,2)}, {sr(S_CT,2)} op_sel:[0,0,1] op_sel_hi:[1,0,1]")
def scale_q(o, aQ):
    for i in range(0, 16, 2):
        o(f"v_pk_add_f32 {vr(aQ+i,2)}, {vr(aQ+i,2)}, {sr(S_CT,2)} op_sel:[0,1] op_sel_hi:[1,1]")

S_WG = 2; S_NK = 3
S_X, S_E, S_SRC, S_DST, S_WA, S_WB, S_WC, S_WU, S_WV, S_OUT, S_DBG, S_WS = 4, 6, 8, 10, 12, 14, 16, 18, 20, 22, 24, 26
S_MSK = 4
R_WS = 28; R_W = 32; R_T0 = 36; R_T1 = 40; R_T2 = 44; R_X = 48; R_TAB = 52; R_OUT = 56; R_DBG = 60
S_WAVE = 64; S_HALF = 65; S_PERM = 66; S_SLICE = 67
S_CT = 68; S_EX = 70; S_EPS = 72
S_A = 74; S_B = 75; S_C = 76; S_D = 77
S_BUCKET = 78; S_NODE0 = 79
S_CNT = 80; S_L1 = 81; S_L2 = 82; S_L3 = 83; S_NT = 84; S_MODE = 85; S_NH = 86; S_SPIN = 87
S_HALFI = S_L1; S_PP = S_L2
vZ = 13

def spin_bound(o): o(f"s_mov_b32 s{S_SPIN}, 0x40000")
def spin_tail(o, lab, sleep):
    if sleep: o(f"s_sleep {sleep}")
    o(f"s_sub_u32 s{S_SPIN}, s{S_SPIN}, 1")
    o(f"s_cbranch_scc0 {lab}")

def lds_wait(o, lab, off, target, vT, sleep=1):
    spin_bound(o)
    o(f"{lab}:")
    o(f"ds_read_b32 v{vT}, v{vZ} offset:{off}")
    o("s_waitcnt lgkmcnt(0)")
    o(f"v_readfirstlane_b32 s{S_A}, v{vT}")
    o(f"s_cmp_ge_u32 s{S_A}, {target}")
    o(f"s_cbranch_scc1 {lab}_ok")
    spin_tail(o, lab, sleep)
    o(f"{lab}_ok:")

def soft_barrier(o, lab, target, vT):
    o("s_waitcnt lgkmcnt(0)")
    o("s_mov_b64 exec, 1")
    o(f"ds_add_u32 v{vZ}, v15 offset:{F_SOFT}")
    o("s_mov_b64 exec, -1")
    lds_wait(o, lab, F_SOFT, target, vT, 0)

def get_tag(o, lab):
    spin_bound(o)
    o(f"{lab}:")
    o(f"buffer_load_dwordx2 v[6:7], v{vZ}, {sr(R_DBG,4)}, 0 offen sc1")
    o("s_waitcnt vmcnt(0)")
    o(f"v_readfirstlane_b32 s{S_NK}, v6")
    o(f"v_readfirstlane_b32 s{S_NH}, v7")
    o(f"s_cmp_lg_u32 s{S_NH}, 0")
    o(f"s_cbranch_scc1 {lab}_ok")
    spin_tail(o, lab, 4)
    o(f"{lab}_ok:")

def poll_tables(o, lab):
    o(f"v_lshlrev_b32 v3, 3, v2")
    o(f"s_lshl_b32 s{S_B}, s{S_SLICE}, 9")
    o(f"s_add_u32 s{S_B}, s{S_B}, {TF_OFF}")
    spin_bound(o)
    o(f"{lab}:")
    o(f"buffer_load_dwordx2 v[6:7], v3, {sr(R_WS,4)}, s{S_B} offen sc1")
    o("s_waitcnt vmcnt(0)")
    o(f"v_xor_b32 v6, s{S_NK}, v6")
    o(f"v_xor_b32 v7, s{S_NH}, v7")
    o(f"v_or_b32 v6, v6, v7")
    o(f"v_cmp_ne_u32 vcc, 0, v6")
    o(f"s_cbranch_vccz {lab}_ok")
    spin_tail(o, lab, 2)
    o(f"{lab}_ok:")

def finalize(o, vDen, vNum, vU, vXr, vT, vOA):
    o(f"v_pk_add_f32 {vr(vDen,2)}, {vr(vDen,2)}, {sr(S_EPS,2)}")
    o(f"v_pk_add_f32 {vr(vDen+2,2)}, {vr(vDen+2,2)}, {sr(S_EPS,2)}")
    o(f"v_lshlrev_b64 {vr(vT,2)}, 16, {vr(vU,2)}")
    for i in range(4): o(f"v_rcp_f32 v{vDen+i}, v{vDen+i}")
    o(f"v_lshlrev_b32 v{vT+4}, 16, v{vXr}")
    o(f"v_lshlrev_b32 v{vT+5}, 16, v{vXr+1}")
    o(f"v_pk_fma_f32 {vr(vT,2)}, {vr(vNum,2)}, {vr(vDen,2)}, {vr(vT,2)}")
    o(f"v_pk_fma_f32 {vr(vT+2,2)}, {vr(vNum+2,2)}, {vr(vDen+2,2)}, {vr(vU,2)}")
    o(f"v_and_b32 v{vT+6}, 0xffff0000, v{vXr}")
    o(f"v_and_b32 v{vT+7}, 0xffff0000, v{vXr+1}")
    for i in range(4): o(f"v_max_f32 v{vT+i}, 0, v{vT+i}")
    o(f"v_pk_add_f32 {vr(vT,2)}, {vr(vT,2)}, {vr(vT+4,2)}")
    o(f"v_pk_add_f32 {vr(vT+2,2)}, {vr(vT+2,2)}, {vr(vT+6,2)}")
    o(f"v_cvt_pk_bf16_f32 v{vT+4}, v{vT}, v{vT+2}")
    o(f"v_cvt_pk_bf16_f32 v{vT+5}, v{vT+1}, v{vT+3}")
    o(f"buffer_store_dwordx2 {vr(vT+4,2)}, v{vOA}, {sr(R_OUT,4)}, 0 offen")

def kernel(o):
    vX = 16; vW = 48; aP = 64; aQ = 80; vD = 96; vREC = 104
    vWC = 10
    NT = 16 - TEAM0
    o(f"s_cmp_ge_u32 s{S_WG}, 256")
    o(f"s_cbranch_scc1 L_exit")
    stamp(o, 0)
    o(f"s_load_dwordx16 s[4:19], s[0:1], 0")
    o(f"s_load_dwordx8 s[20:27], s[0:1], 64")
    if "pf" in OPT:
        o(f"s_getpc_b64 {sr(S_EX,2)}")
        o(f"v_lshlrev_b32 v3, 6, v0")
        o(f"s_movk_i32 s{S_A}, {PFN}")
        o(f"v_cmpx_gt_u32 vcc, s{S_A}, v0")
        o(f"global_load_dword v127, v3, {sr(S_EX,2)}")
        o("s_mov_b64 exec, -1")
    o(f"v_lshrrev_b32 v1, 6, v0")
    o(f"v_and_b32 v2, 63, v0")
    o(f"v_readfirstlane_b32 s{S_WAVE}, v1")
    o(f"v_lshlrev_b32 v9, 2, v0")
    o(f"v_mov_b32 v{vZ}, 0")
    o(f"s_movk_i32 s{S_A}, {SLOT//4}")
    o(f"v_cmpx_gt_u32 vcc, s{S_A}, v0")
    o(f"ds_write_b32 v9, v{vZ}")
    o("s_mov_b64 exec, -1")
    o(f"s_cmp_lt_u32 s{S_WAVE}, {TEAM0}")
    o(f"s_cbranch_scc1 L_noprio")
    o("s_setprio 3")
    o("L_noprio:")
    o(f"s_mov_b32 s{S_HALF}, 0x8000")
    o(f"s_mov_b32 s{S_PERM}, 0x07060302")
    o(f"s_mov_b32 s{S_CT}, {LOG2E_NEG:#x}")
    o(f"s_mov_b32 s{S_CT+1}, {TINY:#x}")
    o(f"s_mov_b32 s{S_EPS}, {EPS:#x}")
    o(f"s_mov_b32 s{S_EPS+1}, {EPS:#x}")
    o(f"s_bfe_u32 s{S_SLICE}, s{S_WG}, 0x20001")
    o(f"s_lshr_b32 s{S_BUCKET}, s{S_WG}, 3")
    o(f"s_and_b32 s{S_A}, s{S_WG}, 1")
    o(f"s_lshl_b32 s{S_A}, s{S_A}, 5")
    o(f"s_add_u32 s{S_BUCKET}, s{S_BUCKET}, s{S_A}")
    o(f"s_mul_i32 s{S_NODE0}, s{S_BUCKET}, {NPB}")
    o(f"v_mov_b32 v15, 1")
    o(f"v_and_b32 v1, 7, v2")
    o(f"v_lshlrev_b32 v14, 3, v1")
    o(f"v_subrev_u32 v4, {TEAM0*64}, v0")
    o(f"v_lshlrev_b32 v3, 4, v4")
    o(f"v_lshlrev_b32 v5, 3, v4")
    o(f"s_mul_i32 s{S_C}, s{S_WG}, {CH*4}")
    o(f"s_mul_i32 s{S_B}, s{S_WG}, {CH*2}")
    o("s_waitcnt lgkmcnt(0)")
    srd(o, R_T0, S_DST, E*4)
    srd(o, R_T1, S_SRC, E*4)
    srd(o, R_T2, S_E, E*2)
    vDST, vSRC, vE, vB, vR, vRec = 16, 20, 24, 28, 32, 36
    o(f"s_cmp_lt_u32 s{S_WAVE}, {TEAM0}")
    o(f"s_cbranch_scc1 L_noedge")
    o(f"buffer_load_dwordx4 {vr(vDST,4)}, v3, {sr(R_T0,4)}, s{S_C} offen")
    o(f"buffer_load_dwordx4 {vr(vSRC,4)}, v3, {sr(R_T1,4)}, s{S_C} offen")
    o(f"buffer_load_dwordx2 {vr(vE,2)}, v5, {sr(R_T2,4)}, s{S_B} offen")
    o("L_noedge:")
    srd(o, R_X, S_X, N*256)
    srd(o, R_WS, S_WS, WS_USED)
    srd(o, R_OUT, S_OUT, N*256)
    srd(o, R_DBG, S_DBG, 256)
    o(f"s_mul_i32 s{S_A}, s{S_SLICE}, {TSTRIDE}")
    o(f"s_add_u32 s{R_TAB}, s{S_WS}, s{S_A}")
    o(f"s_addc_u32 s{R_TAB+1}, s{S_WS+1}, 0")
    o(f"s_and_b32 s{R_TAB+1}, s{R_TAB+1}, 0xffff")
    o(f"s_mov_b32 s{R_TAB+2}, {TSTRIDE}")
    o(f"s_mov_b32 s{R_TAB+3}, 0x20000")
    o("s_barrier")
    o(f"s_cmp_lt_u32 s{S_WAVE}, 13")
    o(f"s_cbranch_scc1 L_nowload")
    o(f"s_cmp_eq_u32 s{S_WAVE}, 13")
    o(f"s_cbranch_scc0 L_notag")
    o(f"s_cmp_eq_u32 s{S_WG}, 0")
    o(f"s_cbranch_scc0 L_notag")
    o(f"s_memrealtime {sr(S_EX,2)}")
    o("s_waitcnt lgkmcnt(0)")
    o(f"s_lshl_b32 s{S_A}, s{S_EX}, 22")
    o(f"s_lshr_b64 {sr(S_EX,2)}, {sr(S_EX,2)}, 10")
    o(f"s_or_b32 s{S_B}, s{S_EX}, 0x80000000")
    o(f"v_mov_b32 v6, s{S_A}")
    o(f"v_mov_b32 v7, s{S_B}")
    o("s_mov_b64 exec, 1")
    o(f"buffer_store_dwordx2 v[6:7], v{vZ}, {sr(R_DBG,4)}, 0 offen sc1")
    o("s_mov_b64 exec, -1")
    o("L_notag:")
    o(f"v_lshrrev_b32 v12, 2, v2")
    o(f"v_and_b32 v3, 3, v2")
    o(f"v_lshlrev_b32 v3, 4, v3")
    o(f"v_lshl_add_u32 v12, v12, 8, v3")
    srcs = (S_NT, S_MODE, S_NH); dsts = (S_L1, S_L2, S_L3)
    for i in range(3):
        o(f"s_sub_u32 s{S_CNT}, s{S_WAVE}, {13 - 3*i}")
        if i == 2: o(f"s_min_u32 s{S_CNT}, s{S_CNT}, 7")
        o(f"s_lshl_b32 s{dsts[i]}, s{S_CNT}, 10")
        o(f"s_lshl_b32 s{S_A}, s{S_SLICE}, 1")
        o(f"s_xor_b32 s{S_A}, s{S_A}, s{S_CNT}")
        o(f"s_lshl_b32 s{S_A}, s{S_A}, 12")
        o(f"s_lshl_b32 s{S_B}, s{S_SLICE}, 6")
        o(f"s_add_u32 s{srcs[i]}, s{S_A}, s{S_B}")
    for m, P in enumerate((S_WB, S_WV, S_WA, S_WU)):
        srd(o, R_W, P, 32768)
        for i in range(3):
            o(f"s_add_u32 m0, s{dsts[i]}, {WOFF + 8192*m}")
            o("s_nop 0")
            o(f"buffer_load_dwordx4 v12, {sr(R_W,4)}, s{srcs[i]} offen lds")
    o("L_nowload:")
    srd(o, R_W, S_WC, 256)
    o(f"s_lshl_b32 s{S_B}, s{S_SLICE}, 6")
    o(f"buffer_load_dwordx2 {vr(vWC,2)}, v14, {sr(R_W,4)}, s{S_B} offen")
    o(f"s_cmp_lt_u32 s{S_WAVE}, {TEAM0}")
    o(f"s_cbranch_scc1 L_gemm")
    o(f"s_cmp_eq_u32 s{S_WG}, 255")
    o(f"s_movk_i32 s{S_C}, {CH//4}")
    o(f"s_cselect_b32 s{S_C}, {(E-255*CH)//4}, s{S_C}")
    o(f"s_mov_b32 s{S_B}, 42800")
    o(f"s_movk_i32 s{S_D}, {NPB}")
    o(f"s_cmp_lt_u32 s{S_WAVE}, 13")
    o(f"s_cbranch_scc0 L_we")
    o("s_waitcnt vmcnt(1)")
    o("L_we:")
    o("s_waitcnt vmcnt(13)")
    stamp(o, 1)
    for r in range(4):
        o(f"v_mul_u32_u24 v{vB+r}, s{S_B}, v{vDST+r}")
        o(f"v_lshrrev_b32 v{vB+r}, 24, v{vB+r}")
        o(f"v_mul_u32_u24 v3, s{S_D}, v{vB+r}")
        o(f"v_sub_u32 v3, v{vDST+r}, v3")
        o(f"v_lshlrev_b32 v3, 2, v3")
        o(f"v_lshl_or_b32 v{vRec+2*r}, v{vSRC+r}, 16, v3")
        o(f"v_lshlrev_b32 v{vB+r}, 2, v{vB+r}")
        if r & 1: o(f"v_and_b32 v{vRec+2*r+1}, 0xffff0000, v{vE+(r>>1)}")
        else:     o(f"v_lshlrev_b32 v{vRec+2*r+1}, 16, v{vE+(r>>1)}")
    o(f"v_cmpx_gt_u32 vcc, s{S_C}, v4")
    for r in range(4):
        o(f"ds_add_rtn_u32 v{vR+r}, v{vB+r}, v15 offset:{HISTA}")
    o("s_mov_b64 exec, -1")
    o(f"v_lshlrev_b32 v8, 2, v2")
    soft_barrier(o, "L_sb1", NT, 3)
    o(f"ds_read_b32 v6, v8 offset:{HISTA}")
    o("s_waitcnt lgkmcnt(0)")
    o(f"v_mov_b32 v7, v6")
    scan64(o, 7)
    o(f"v_sub_u32 v7, v7, v6")
    for r in range(4):
        o(f"ds_bpermute_b32 v{vDST+r}, v{vB+r}, v7")
    o(f"v_lshl_or_b32 v5, v6, 11, v7")
    o(f"v_mov_b32 v3, {RECS}")
    o("s_waitcnt lgkmcnt(0)")
    o(f"v_cmpx_gt_u32 vcc, s{S_C}, v4")
    for r in range(4):
        o(f"v_add_u32 v{vDST+r}, v{vDST+r}, v{vR+r}")
        o(f"v_lshl_add_u32 v{vDST+r}, v{vDST+r}, 3, v3")
        o(f"ds_write_b64 v{vDST+r}, {vr(vRec+2*r,2)}")
    o("s_mov_b64 exec, -1")
    o("s_waitcnt vmcnt(0)")
    soft_barrier(o, "L_sb2", 2*NT, 3)
    stamp(o, 2)
    o(f"s_cmp_lt_u32 s{S_WAVE}, 13")
    o(f"s_cbranch_scc1 L_gemm")
    o(f"s_cmp_eq_u32 s{S_WAVE}, 14")
    o(f"s_cbranch_scc1 L_w14")
    o(f"s_cmp_eq_u32 s{S_WAVE}, 13")
    o(f"s_cbranch_scc1 L_w13")
    o(f"v_lshlrev_b32 v4, 4, v2")
    o(f"v_add_u32 v12, {RECS}, v4")
    o(f"s_mul_i32 s{S_B}, s{S_WG}, {SEG}")
    o(f"s_add_u32 s{S_B}, s{S_B}, {REC_OFF}")
    for i in range(12):
        o(f"ds_read_b128 {vr(16+4*i,4)}, v12 offset:{i*1024}")
    o("s_mov_b64 exec, 0xffff")
    o(f"ds_read_b128 {vr(64,4)}, v12 offset:{12*1024}")
    o("s_mov_b64 exec, -1")
    for i in range(13):
        if i == 12: o("s_mov_b64 exec, 0xffff")
        if i and i % 4 == 0: o(f"s_add_u32 s{S_B}, s{S_B}, 4096")
        o(f"s_waitcnt lgkmcnt({12-i})")
        o(f"buffer_store_dwordx4 {vr(16+4*i,4)}, v4, {sr(R_WS,4)}, s{S_B} offen offset:{(i&3)*1024}{SC}")
    o("s_mov_b64 exec, -1")
    o(f"ds_write_b32 v{vZ}, v15 offset:{F_GO}")
    stamp(o, 3)
    get_tag(o, "L_ga")
    stamp(o, 4)
    o(f"v_or_b32 v6, s{S_NK}, v5")
    o(f"v_mov_b32 v7, s{S_NH}")
    o(f"v_lshlrev_b32 v3, 11, v2")
    o(f"s_lshl_b32 s{S_B}, s{S_WG}, 3")
    o(f"s_add_u32 s{S_B}, s{S_B}, {OFF_OFF}")
    o(f"buffer_store_dwordx2 v[6:7], v3, {sr(R_WS,4)}, s{S_B} offen{SC}")
    o("s_branch L_rec")
    o("L_w13:")
    o(f"s_cmp_eq_u32 s{S_BUCKET}, 63")
    o(f"s_cbranch_scc0 L_rec")
    o(f"v_lshlrev_b32 v3, 4, v2")
    o(f"v_add_u32 v3, {DUMMY_ROW*128}, v3")
    o(f"v_mov_b32 v16, 0x7f007f00")
    o(f"v_mov_b32 v17, 0x7f007f00")
    o(f"v_mov_b32 v18, 0")
    o(f"v_mov_b32 v19, 0")
    o("s_mov_b64 exec, 0xff")
    o(f"buffer_store_dwordx4 {vr(16,4)}, v3, {sr(R_TAB,4)}, 0 offen{SC}")
    o("s_mov_b64 exec, -1")
    o("s_branch L_rec")
    o("L_w14:")
    get_tag(o, "L_gb")
    o(f"v_lshlrev_b32 v3, 5, v2")
    o(f"s_lshl_b32 s{S_B}, s{S_BUCKET}, 11")
    o(f"s_add_u32 s{S_B}, s{S_B}, {OFF_OFF}")
    spin_bound(o)
    o("L_pa:")
    o(f"buffer_load_dwordx4 {vr(16,4)}, v3, {sr(R_WS,4)}, s{S_B} offen sc1")
    o(f"buffer_load_dwordx4 {vr(20,4)}, v3, {sr(R_WS,4)}, s{S_B} offen offset:16 sc1")
    o("s_waitcnt vmcnt(0)")
    for i in range(4):
        o(f"v_xor_b32 v{24+i}, s{S_NK}, v{16+2*i}")
        o(f"v_xor_b32 v{17+2*i}, s{S_NH}, v{17+2*i}")
    o(f"v_or3_b32 v6, v24, v25, v26")
    o(f"v_or_b32 v6, v6, v27")
    o(f"v_lshrrev_b32 v6, 22, v6")
    o(f"v_or3_b32 v6, v6, v17, v19")
    o(f"v_or3_b32 v6, v6, v21, v23")
    o(f"v_cmp_ne_u32 vcc, 0, v6")
    o(f"s_cbranch_vccz L_pa_ok")
    spin_tail(o, "L_pa", 6)
    o("L_pa_ok:")
    stamp(o, 3)
    o(f"v_lshlrev_b32 v3, 4, v2")
    o(f"ds_write_b128 v3, {vr(24,4)} offset:{OFFL}")
    o("s_waitcnt lgkmcnt(0)")
    o(f"ds_write_b32 v{vZ}, v15 offset:{F_OFFL}")
    o("s_branch L_rec")
    o("L_gemm:")
    o("s_setprio 0")
    o(f"v_lshrrev_b32 v12, 4, v2")
    o(f"v_lshlrev_b32 v3, 2, v12")
    o(f"v_and_b32 v4, 15, v2")
    o(f"v_xor_b32 v3, v3, v4")
    o(f"v_lshlrev_b32 v3, 4, v3")
    o(f"v_lshl_add_u32 v12, v12, 8, v3")
    o(f"s_cmp_lt_u32 s{S_WAVE}, {EARLY}")
    o(f"s_cbranch_scc1 L_go_ok")
    lds_wait(o, "L_go", F_GO, 1, 3)
    o(f"s_lshl_b32 s{S_A}, s{S_WAVE}, 5")
    o(f"s_add_u32 s{S_A}, s{S_A}, s{S_NODE0}")
    o(f"s_lshl_b32 s{S_A}, s{S_A}, 8")
    o(f"s_add_u32 s{S_B}, s{S_A}, 4096")
    o(f"s_mul_i32 s{S_C}, s{S_WAVE}, {XTS}")
    o(f"s_add_u32 s{S_C}, s{S_C}, {XT}")
    for i in range(8):
        o(f"s_add_u32 m0, s{S_C}, {16*i + (4096 if i >= 4 else 0)}")
        if i == 2: o(f"s_cmp_eq_u32 s{S_WAVE}, 12"); o("s_cbranch_scc1 L_xdone")
        else: o("s_nop 0")
        o(f"buffer_load_dwordx4 v12, {sr(R_X,4)}, s{S_B if i >= 4 else S_A} offen offset:{(i&3)*1024} lds")
    o("L_xdone:")
    if STAMP is not None and STAMP < TEAM0: stamp(o, 1)
    o(f"v_and_b32 v6, 31, v2")
    o(f"v_lshrrev_b32 v7, 5, v2")
    o(f"v_lshrrev_b32 v3, 2, v6")
    o(f"s_movk_i32 s{S_A}, 1040")
    o(f"v_mul_u32_u24 v3, s{S_A}, v3")
    o(f"v_and_b32 v12, 3, v6")
    o(f"v_lshl_add_u32 v3, v12, 8, v3")
    o(f"v_lshl_add_u32 v3, v7, 4, v3")
    o(f"v_add_u32 v3, s{S_C}, v3")
    o(f"v_xor_b32 v12, s{S_SLICE}, v12")
    for u in range(4):
        o(f"v_xor_b32 v4, {u}, v12")
        o(f"v_lshl_add_u32 v{vD+u}, v4, 6, v3")
    o(f"v_bfe_u32 v3, v2, 2, 2")
    o(f"v_lshl_add_u32 v8, v7, 3, v3")
    o(f"v_lshlrev_b32 v8, 6, v8")
    o(f"v_bfe_u32 v3, v2, 4, 1")
    o(f"v_lshl_add_u32 v8, v3, 5, v8")
    o(f"v_and_b32 v3, 3, v2")
    o(f"v_lshl_add_u32 v8, v3, 3, v8")
    o(f"v_add_u32 v8, {WOFF}, v8")
    o("s_waitcnt vmcnt(0)")
    stamp(o, 2 if STAMP is not None and STAMP < TEAM0 else 3)
    for t in range(8):
        o(f"ds_read_b128 {vr(vX+4*t,4)}, v{vD+(t>>1)} offset:{(t&1)*32}")
    lds_wait(o, "L_ww", F_SOFT, 2*NT, 3)
    gemm_pair(o, vW, vX, aP, aQ, 8, 0)
    scale_p(o, aP); scale_q(o, aQ)
    o(f"v_and_b32 v3, 7, v6")
    o(f"v_xor_b32 v3, v3, v7")
    o(f"v_lshlrev_b32 v3, 4, v3")
    o(f"v_lshl_add_u32 v3, v6, 7, v3")
    o(f"v_add_u32 v3, s{S_C}, v3")
    for q in range(4):
        d = vD + (q & 1)*4
        encode4(o, aP+4*q, d); encode4(o, aQ+4*q, d+2)
        if q: o(f"v_xor_b32 v3, {32*(q ^ (q-1))}, v3")
        o(f"ds_write_b128 v3, {vr(d,4)}")
    o(f"v_lshrrev_b32 v3, 3, v2")
    o(f"v_xor_b32 v12, v1, v3")
    o(f"v_lshlrev_b32 v12, 4, v12")
    o(f"v_lshl_add_u32 v12, v3, 7, v12")
    o(f"v_add_u32 v12, s{S_C}, v12")
    o(f"s_lshl_b32 s{S_A}, s{S_WAVE}, 5")
    o(f"s_add_u32 s{S_A}, s{S_A}, s{S_NODE0}")
    o(f"s_lshl_b32 s{S_A}, s{S_A}, 7")
    o(f"v_lshlrev_b32 v3, 4, v2")
    o("s_waitcnt lgkmcnt(0)")
    for i in range(4):
        o(f"ds_read_b128 {vr(aP+4*i,4)}, v12 offset:{i*1024}")
    o(f"s_cmp_eq_u32 s{S_WAVE}, 12")
    for i in range(4):
        o(f"s_waitcnt lgkmcnt({3-i})")
        o(f"buffer_store_dwordx4 {vr(aP+4*i,4)}, v3, {sr(R_TAB,4)}, s{S_A} offen offset:{i*1024}{SC}")
        if i == 0: o(f"s_cbranch_scc1 L_st_done")
    o("L_st_done:")
    if STAMP is not None and STAMP < TEAM0: stamp(o, 3)
    gemm_pair(o, vW, vX, aP, aQ, 8, 16384)
    scale_p(o, aP); scale_q(o, aQ)
    o(f"v_max3_f32 v3, |v{aP}|, |v{aP+1}|, |v{aP+2}|")
    for i in range(3, 15, 2):
        o(f"v_max3_f32 v3, v3, |v{aP+i}|, |v{aP+i+1}|")
    o(f"v_max_f32 v3, v3, |v{aP+15}|")
    o(f"v_pk_add_f32 {vr(vD,2)}, {vr(aP,2)}, {vr(aP+2,2)}")
    for i in range(4, 16, 2):
        o(f"v_pk_add_f32 {vr(vD,2)}, {vr(vD,2)}, {vr(aP+i,2)}")
    o(f"v_add_f32 v{vD}, v{vD}, v{vD+1}")
    o(f"v_mul_f32 v{vD}, 0, v{vD}")
    o(f"v_add_f32 v3, v3, v{vD}")
    o(f"s_mov_b32 s{S_A}, 0x42700000")
    o(f"s_cmp_eq_u32 s{S_WAVE}, 12")
    o(f"s_cselect_b32 s{S_EX}, 0xff, -1")
    o(f"v_cmp_nge_f32 vcc, s{S_A}, v3")
    o(f"s_mov_b32 s{S_EX+1}, s{S_EX}")
    o(f"s_and_b64 vcc, vcc, {sr(S_EX,2)}")
    o(f"s_cbranch_scc0 L_doexp")
    o(f"v_lshlrev_b32 v3, s{S_WAVE}, v15")
    o(f"ds_or_b32 v{vZ}, v3 offset:{F_RANGE}")
    o("s_branch L_noexp")
    o("L_doexp:")
    for i in range(16): o(f"v_exp_f32 v{aP+i}, v{aP+i}")
    o("L_noexp:")
    for q in range(4): encode4(o, aQ+4*q, vW+4*q+2)
    for q in range(4): encode4(o, aP+4*q, vW+4*q)
    o("L_rec:")
    o("s_setprio 0")
    if STAMP is not None and STAMP < 13: stamp(o, 4)
    vCNT, vIDX, vRA = 4, 5, 12
    o(f"v_and_b32 v{vIDX}, 3, v0")
    o(f"v_lshlrev_b32 v{vIDX}, 1, v{vIDX}")
    o(f"v_lshrrev_b32 v3, 2, v0")
    o(f"s_movk_i32 s{S_A}, {SEG}")
    o(f"v_mul_u32_u24 v{vRA}, s{S_A}, v3")
    o(f"v_and_b32 v14, 0xffc, v0")
    lds_wait(o, "L_wo", F_OFFL, 1, 3)
    o(f"ds_read_b32 v{vCNT}, v14 offset:{OFFL}")
    o(f"s_mov_b32 s{S_A}, {REC_OFF}")
    o("s_waitcnt lgkmcnt(0)")
    o(f"v_and_b32 v3, 0x7ff, v{vCNT}")
    o(f"v_lshrrev_b32 v{vCNT}, 11, v{vCNT}")
    o(f"v_add_u32 v3, v3, v{vIDX}")
    o(f"v_lshl_add_u32 v{vRA}, v3, 3, v{vRA}")
    o(f"v_sub_u32 v{vIDX}, v{vCNT}, v{vIDX}")
    for r in range(12):
        o(f"v_cmp_lt_i32 {sr(S_MSK+2*r,2)}, {8*(r>>1) + (r&1)}, v{vIDX}")
    for k in range(6):
        o(f"s_mov_b64 exec, {sr(S_MSK+4*k,2)}")
        o(f"buffer_load_dwordx4 {vr(vREC+4*k,4)}, v{vRA}, {sr(R_WS,4)}, s{S_A} offen offset:{k*64}{SC}")
    o("s_mov_b64 exec, -1")
    o(f"v_cmpx_lt_u32 vcc, 48, v{vCNT}")
    o(f"ds_write_b32 v{vZ}, v15 offset:{F_STRUCT}")
    o("s_mov_b64 exec, -1")
    stamp(o, 5)
    vRK = 24; vDA = 36
    o("s_waitcnt vmcnt(0)")
    for r in range(12):
        o(f"s_mov_b64 exec, {sr(S_MSK+2*r,2)}")
        o(f"v_and_b32 v{vDA+r}, 0xffff, v{vREC+2*r}")
        o(f"ds_add_rtn_u32 v{vRK+r}, v{vDA+r}, v15 offset:{DEG}")
    o("s_mov_b64 exec, -1")
    stamp(o, 6)
    o("s_waitcnt lgkmcnt(0)")
    o("s_barrier")
    stamp(o, 7)
    vN_D, vBIN, vR2, vPOS, vL, vTB = 80, 81, 82, 83, 84, 85
    o(f"s_movk_i32 s{S_D}, {NPB}")
    o(f"s_cmp_lt_u32 s{S_WAVE}, 7")
    o(f"s_cbranch_scc0 L_s5_skip")
    o(f"ds_read_b32 v{vN_D}, v9 offset:{DEG}")
    o("s_waitcnt lgkmcnt(0)")
    o(f"v_min_u32 v{vBIN}, 63, v{vN_D}")
    o(f"v_sub_u32 v{vBIN}, 63, v{vBIN}")
    o(f"v_lshlrev_b32 v{vBIN}, 2, v{vBIN}")
    o(f"v_cmpx_gt_u32 vcc, s{S_D}, v0")
    o(f"ds_add_rtn_u32 v{vR2}, v{vBIN}, v15 offset:{HIST2}")
    o(f"v_cmpx_lt_u32 vcc, 63, v{vN_D}")
    o(f"ds_write_b32 v{vZ}, v15 offset:{F_STRUCT}")
    o("s_mov_b64 exec, -1")
    o("s_waitcnt lgkmcnt(0)")
    o("s_branch L_s5_done")
    o("L_s5_skip:")
    o(f"s_cmp_eq_u32 s{S_WAVE}, 15")
    o(f"s_cbranch_scc0 L_s5_done")
    o(f"s_lshl_b32 s{S_B}, s{S_SLICE}, 6")
    o(f"s_add_u32 s{S_B}, s{S_B}, s{S_BUCKET}")
    o(f"s_lshl_b32 s{S_B}, s{S_B}, 3")
    o(f"s_add_u32 s{S_B}, s{S_B}, {TF_OFF}")
    o(f"v_mov_b32 v6, s{S_NK}")
    o(f"v_mov_b32 v7, s{S_NH}")
    o("s_mov_b64 exec, 1")
    o(f"buffer_store_dwordx2 v[6:7], v{vZ}, {sr(R_WS,4)}, s{S_B} offen sc1")
    o("s_mov_b64 exec, -1")
    o("L_s5_done:")
    o("s_barrier")
    o(f"s_cmp_lt_u32 s{S_WAVE}, 7")
    o(f"s_cbranch_scc0 L_s6_skip")
    o(f"v_lshlrev_b32 v3, 2, v2")
    o(f"ds_read_b32 v6, v3 offset:{HIST2}")
    o("s_waitcnt lgkmcnt(0)")
    o(f"v_mov_b32 v14, v6")
    scan64(o, 14)
    o(f"v_sub_u32 v14, v14, v6")
    o(f"ds_bpermute_b32 v{vPOS}, v{vBIN}, v14")
    o(f"v_lshl_or_b32 v6, v{vN_D}, 16, v0")
    o("s_waitcnt lgkmcnt(0)")
    o(f"v_add_u32 v{vPOS}, v{vPOS}, v{vR2}")
    o(f"v_lshlrev_b32 v3, 2, v{vPOS}")
    o(f"v_cmpx_gt_u32 vcc, s{S_D}, v0")
    o(f"ds_write_b32 v3, v6 offset:{SNODE}")
    o("s_mov_b64 exec, -1")
    o("L_s6_skip:")
    vWX, vEX, vDen, vNum, vNQ, vT, vLO, vLA, vOB, vOA, vAB, vAU = 86, 90, 92, 96, 100, 64, 72, 73, 74, 75, 76, 78
    o(f"v_lshrrev_b32 v3, 2, v2")
    o(f"v_and_b32 v6, 1, v2")
    o(f"v_mul_u32_u24 v6, 15, v6")
    o(f"v_xor_b32 v3, v3, v6")
    o(f"v_and_b32 v6, 3, v2")
    o(f"v_lshl_add_u32 v3, v6, 4, v3")
    o(f"v_cmp_gt_u32 vcc, 49, v3")
    o(f"v_min_u32 v3, 48, v3")
    o(f"v_lshlrev_b32 v3, 5, v3")
    o(f"v_lshlrev_b32 v{vWX}, 16, v{vWC}")
    o(f"v_lshlrev_b32 v{vWX+1}, 16, v{vWC+1}")
    o(f"v_and_b32 v{vWX+2}, 0xffff0000, v{vWC}")
    o(f"v_and_b32 v{vWX+3}, 0xffff0000, v{vWC+1}")
    for i in range(4): o(f"v_mul_f32 v{vWX+i}, s{S_CT}, v{vWX+i}")
    o(f"v_lshlrev_b32 v{vLO}, 4, v1")
    o(f"v_mul_u32_u24 v{vAB}, 24, v1")
    o(f"v_add_u32 v{vAB}, {AUX}, v{vAB}")
    o(f"s_lshl_b32 s{S_A}, s{S_NODE0}, 8")
    o(f"s_lshl_b32 s{S_B}, s{S_SLICE}, 6")
    o(f"s_add_u32 s{S_A}, s{S_A}, s{S_B}")
    o(f"v_lshl_add_u32 v{vOB}, v1, 3, s{S_A}")
    o("s_waitcnt lgkmcnt(0)")
    o("s_barrier")
    stamp(o, 8)
    o(f"ds_read_u16 v{vL}, v3 offset:{SNODE+2}")
    o(f"ds_read_b64 v[6:7], v{vZ} offset:{F_STRUCT}")
    o("s_waitcnt lgkmcnt(0)")
    o(f"v_cndmask_b32 v{vL}, 0, v{vL}, vcc")
    o(f"v_readfirstlane_b32 s{S_B}, v6")
    o(f"v_readfirstlane_b32 s{S_MODE}, v7")
    o(f"v_mov_b32 v{vTB}, v{vL}")
    scan64(o, vTB)
    o(f"s_or_b32 s{S_B}, s{S_B}, s{S_MODE}")
    o(f"v_readlane_b32 s{S_A}, v{vTB}, 63")
    o(f"v_sub_u32 v{vTB}, v{vTB}, v{vL}")
    o(f"s_cmp_gt_u32 s{S_A}, {ELL_ITERS}")
    o(f"s_cselect_b32 s{S_B}, 1, s{S_B}")
    o(f"v_lshl_or_b32 v{vTB}, v{vTB}, 8, v{vL}")
    o(f"s_cmp_lg_u32 s{S_B}, 0")
    o(f"s_cbranch_scc1 L_slow")
    o(f"s_cmp_lt_u32 s{S_WAVE}, 7")
    o(f"s_cbranch_scc0 L_s7_skip")
    o(f"v_lshrrev_b32 v3, 7, v{vPOS}")
    o(f"v_bfe_u32 v6, v{vPOS}, 3, 4")
    o(f"v_and_b32 v14, 1, v3")
    o(f"v_mul_u32_u24 v14, 15, v14")
    o(f"v_xor_b32 v6, v6, v14")
    o(f"v_lshl_add_u32 v3, v6, 2, v3")
    o(f"v_lshlrev_b32 v3, 2, v3")
    o(f"ds_bpermute_b32 v6, v3, v{vTB}")
    o(f"v_and_b32 v14, 7, v{vPOS}")
    o(f"v_lshlrev_b32 v14, 3, v14")
    o(f"v_add_u32 v14, {ELL}, v14")
    o(f"v_mov_b32 v{vD+6}, {DUMMY_ROW << 16}")
    o(f"v_mov_b32 v{vD+7}, 0")
    o("s_waitcnt lgkmcnt(0)")
    o(f"v_lshrrev_b32 v3, 8, v6")
    o(f"v_and_b32 v6, 0xff, v6")
    o(f"v_lshl_add_u32 v3, v3, 6, v14")
    o(f"v_cmpx_gt_u32 vcc, s{S_D}, v0")
    o(f"ds_write_b32 v9, v3 offset:{SLOT}")
    o(f"v_lshl_add_u32 v3, v{vN_D}, 6, v3")
    o("L_pad:")
    o(f"v_cmpx_gt_u32 vcc, v6, v{vN_D}")
    o(f"s_cbranch_execz L_pad_done")
    o(f"ds_write_b64 v3, {vr(vD+6,2)}")
    o(f"v_add_u32 v3, 64, v3")
    o(f"v_add_u32 v{vN_D}, 1, v{vN_D}")
    o("s_branch L_pad")
    o("L_pad_done:")
    o("s_mov_b64 exec, -1")
    o("L_s7_skip:")
    o(f"s_lshl_b32 s{S_A}, s{S_WAVE}, 2")
    o(f"v_readlane_b32 s{S_C}, v{vTB}, s{S_A}")
    o(f"s_add_u32 s{S_A}, s{S_A}, 1")
    o(f"v_readlane_b32 s{S_L1}, v{vL}, s{S_A}")
    o(f"s_add_u32 s{S_A}, s{S_A}, 1")
    o(f"v_readlane_b32 s{S_L2}, v{vL}, s{S_A}")
    o(f"s_add_u32 s{S_A}, s{S_A}, 1")
    o(f"v_readlane_b32 s{S_L3}, v{vL}, s{S_A}")
    o(f"s_and_b32 s{S_CNT}, s{S_C}, 0xff")
    o(f"s_lshr_b32 s{S_C}, s{S_C}, 8")
    o("s_waitcnt lgkmcnt(0)")
    o("s_barrier")
    stamp(o, 9)
    for r in range(12):
        o(f"s_mov_b64 exec, {sr(S_MSK+2*r,2)}")
        o(f"ds_read_b32 v{vDA+r}, v{vDA+r} offset:{SLOT}")
    o("s_mov_b64 exec, -1")
    o(f"v_lshrrev_b32 v3, 3, v2")
    o(f"v_lshlrev_b32 v6, 2, v3")
    o(f"s_lshl_b32 s{S_A}, s{S_WAVE}, 5")
    o(f"s_sub_u32 s{S_B}, {31*32}, s{S_A}")
    o(f"v_add_u32 v14, s{S_A}, v6")
    o(f"v_add_u32 v12, s{S_B}, v6")
    o(f"s_lshl_b32 s{S_C}, s{S_C}, 6")
    o(f"s_add_u32 s{S_C}, s{S_C}, {ELL}")
    o(f"v_lshl_add_u32 v{vLA}, v3, 3, s{S_C}")
    o("s_waitcnt lgkmcnt(0)")
    for r in range(12):
        o(f"s_mov_b64 exec, {sr(S_MSK+2*r,2)}")
        o(f"v_lshl_add_u32 v{vDA+r}, v{vRK+r}, 6, v{vDA+r}")
        o(f"ds_write_b64 v{vDA+r}, {vr(vREC+2*r,2)}")
    o("s_mov_b64 exec, -1")
    o(f"ds_read_u16 v{vNQ}, v14 offset:{SNODE}")
    o(f"ds_read_u16 v{vT}, v12 offset:{SNODE}")
    o(f"ds_read_u16 v{vNQ+1}, v14 offset:{SNODE+32*32}")
    o(f"ds_read_u16 v{vT+1}, v6 offset:{SNODE+48*32}")
    def aux_write(lab):
        o(f"s_cmp_lt_u32 s{S_WAVE}, 13")
        o(f"s_cbranch_scc0 {lab}")
        o(f"s_lshl_b32 s{S_A}, s{S_WAVE}, 5")
        o(f"v_and_b32 v3, 31, v2")
        o(f"v_add_u32 v3, s{S_A}, v3")
        o(f"s_movk_i32 s{S_A}, {AUS}")
        o(f"v_mul_u32_u24 v3, s{S_A}, v3")
        o(f"v_lshrrev_b32 v14, 5, v2")
        o(f"v_mul_u32_u24 v14, 24, v14")
        o(f"v_add3_u32 v3, v3, v14, s{S_D}")
        o(f"v_add_u32 v14, v3, v14")
        for q in range(4):
            o(f"ds_write2_b64 v3, {vr(vW+4*q,2)}, {vr(vW+4*q+2,2)} offset0:{6*q} offset1:{6*q+1}")
        o(f"ds_write2_b64 v14, {vr(vX,2)}, {vr(vX+2,2)} offset0:2 offset1:5")
        o(f"ds_write2_b64 v14, {vr(vX+4,2)}, {vr(vX+6,2)} offset0:14 offset1:17")
        o(f"{lab}:")
    o(f"s_movk_i32 s{S_D}, {AUX}")
    aux_write("L_noaux")
    stamp(o, 10)
    o(f"s_cmp_eq_u32 s{S_WAVE}, 14")
    o(f"s_cbranch_scc0 L_nopoll2")
    poll_tables(o, "L_pb")
    o("L_nopoll2:")
    o(f"s_cmp_eq_u32 s{S_WAVE}, 15")
    o(f"s_cselect_b32 s{S_NT}, 4, 3")
    o(f"s_movk_i32 s{S_A}, {AUS}")
    o(f"s_movk_i32 s{S_B}, 256")
    o(f"s_movk_i32 s{S_D}, 128")
    o("s_waitcnt lgkmcnt(0)")
    o(f"v_lshl_or_b32 v{vNQ}, v{vT}, 16, v{vNQ}")
    o(f"v_lshl_or_b32 v{vNQ+1}, v{vT+1}, 16, v{vNQ+1}")
    o("s_barrier")
    stamp(o, 11)
    vDK = 16; vRKk = 104
    assert vDK + 4*PD <= 64 and vRKk + 2*PD <= 128
    def gaddr(R): o(f"v_mad_u32_u16 v{R}, v{R}, s{S_D}, v{vLO} op_sel:[1,0,0,0]")
    for k in range(PD):
        o(f"ds_read_b64 {vr(vRKk+2*k,2)}, v{vLA} offset:{k*64}")
    for k in range(PD):
        o(f"s_waitcnt lgkmcnt({PD-1-k})")
        gaddr(vRKk+2*k)
        o(f"buffer_load_dwordx4 {vr(vDK+4*k,4)}, v{vRKk+2*k}, {sr(R_TAB,4)}, 0 offen{SC}")
    def promote():
        o(f"v_mad_u32_u16 v3, v{vNQ}, s{S_A}, v{vAB}")
        o(f"v_mad_u32_u16 v{vOA}, v{vNQ}, s{S_B}, v{vOB}")
        o(f"ds_read2_b64 {vr(vAU,4)}, v3 offset0:0 offset1:1")
        o(f"ds_read_b64 {vr(vAU+4,2)}, v3 offset:16")
        o(f"v_lshrrev_b64 {vr(vNQ,2)}, 16, {vr(vNQ,2)}")
        for i in range(0, 8, 2): o(f"v_mov_b64 {vr(vDen+i,2)}, 0")
        o("s_waitcnt lgkmcnt(0)")
        o(f"v_lshlrev_b64 {vr(vEX,2)}, 16, {vr(vAU,2)}")
    promote()
    o(f"s_sub_u32 s{S_CNT}, s{S_CNT}, 1")
    o(f"s_cbranch_scc1 M_sw{PD-1}")
    o("M_loop:")
    for k in range(PD):
        D = vDK + 4*k; R = vRKk + 2*k
        o(f"M_it{k}:")
        o(f"s_waitcnt vmcnt({PD-1})")
        o(f"v_lshlrev_b64 {vr(vT,2)}, 16, {vr(D,2)}")
        o(f"v_pk_fma_f32 {vr(vT+2,2)}, {vr(R,2)}, {vr(vWX+2,2)}, {vr(D,2)} op_sel:[1,0,0] op_sel_hi:[1,1,1]")
        o(f"v_pk_fma_f32 {vr(vT,2)}, {vr(R,2)}, {vr(vWX,2)}, {vr(vT,2)} op_sel:[1,0,0] op_sel_hi:[1,1,1]")
        o(f"ds_read_b64 {vr(R,2)}, v{vLA} offset:{(k+PD)*64}")
        o(f"v_exp_f32 v{vT+2}, v{vT+2}")
        o(f"v_exp_f32 v{vT+3}, v{vT+3}")
        o(f"v_exp_f32 v{vT}, v{vT}")
        o(f"v_exp_f32 v{vT+1}, v{vT+1}")
        o(f"v_lshlrev_b64 {vr(vT+4,2)}, 16, {vr(D+2,2)}")
        o(f"v_pk_fma_f32 {vr(vT+2,2)}, {vr(vT+2,2)}, {vr(vAU,2)}, 1.0 op_sel_hi:[1,1,0]")
        o(f"v_pk_fma_f32 {vr(vT,2)}, {vr(vT,2)}, {vr(vEX,2)}, 1.0 op_sel_hi:[1,1,0]")
        if k == PD-1:
            o(f"v_add_u32 v{vLA}, {PD*64}, v{vLA}")
        o(f"v_rcp_f32 v{vT+2}, v{vT+2}")
        o(f"v_rcp_f32 v{vT+3}, v{vT+3}")
        o(f"v_rcp_f32 v{vT}, v{vT}")
        o(f"v_rcp_f32 v{vT+1}, v{vT+1}")
        o(f"v_pk_add_f32 {vr(vDen+2,2)}, {vr(vDen+2,2)}, {vr(vT+2,2)}")
        o(f"v_pk_fma_f32 {vr(vNum+2,2)}, {vr(vT+2,2)}, {vr(D+2,2)}, {vr(vNum+2,2)}")
        o(f"v_pk_add_f32 {vr(vDen,2)}, {vr(vDen,2)}, {vr(vT,2)}")
        o(f"v_pk_fma_f32 {vr(vNum,2)}, {vr(vT,2)}, {vr(vT+4,2)}, {vr(vNum,2)}")
        o("s_waitcnt lgkmcnt(0)")
        gaddr(R)
        o(f"s_sub_u32 s{S_CNT}, s{S_CNT}, 1")
        o(f"buffer_load_dwordx4 {vr(D,4)}, v{R}, {sr(R_TAB,4)}, 0 offen{SC}")
        o(f"s_cbranch_scc1 M_sw{k}")
    o("s_branch M_loop")
    for k in range(PD):
        o(f"M_sw{k}:")
        finalize(o, vDen, vNum, vAU+2, vAU+4, vT, vOA)
        o(f"s_sub_u32 s{S_NT}, s{S_NT}, 1")
        o(f"s_cmp_eq_u32 s{S_NT}, 0")
        o(f"s_cbranch_scc1 L_end")
        promote()
        o(f"s_sub_u32 s{S_CNT}, s{S_L1}, 1")
        o(f"s_mov_b32 s{S_L1}, s{S_L2}")
        o(f"s_mov_b32 s{S_L2}, s{S_L3}")
        o(f"s_cbranch_scc1 M_sw{k}")
        o(f"s_branch M_it{(k+1)%PD}")
    o("L_slow:")
    vG, vI, vA2, vLOC, vR2_, vD2, vT2, vAcc = 16, 17, 18, 19, 20, 24, 32, 44
    o(f"s_movk_i32 s{S_D}, {AUX}")
    aux_write("S_noaux")
    o(f"s_cmp_eq_u32 s{S_WAVE}, 14")
    o(f"s_cbranch_scc0 S_nopoll")
    poll_tables(o, "L_pc")
    o("S_nopoll:")
    o(f"v_lshrrev_b32 v{vG}, 3, v0")
    o(f"s_mov_b32 s{S_HALFI}, 0")
    o(f"s_movk_i32 s{S_D}, {AUS}")
    o(f"s_movk_i32 s{S_CNT}, 128")
    o("S_half:")
    o("s_barrier")
    for i in range(4): o(f"v_mov_b32 v{vD2+i}, 0")
    o(f"v_lshlrev_b32 v3, 4, v0")
    o(f"v_add_u32 v3, {ELL}, v3")
    for i in range(3): o(f"ds_write_b128 v3, {vr(vD2,4)} offset:{i*16384}")
    o(f"s_cmp_lt_u32 s{S_WAVE}, 8")
    o(f"s_cbranch_scc0 S_nofill")
    o(f"ds_write_b128 v3, {vr(vD2,4)} offset:{3*16384}")
    o("S_nofill:")
    o("s_waitcnt lgkmcnt(0)")
    o("s_barrier")
    o(f"s_mov_b32 s{S_PP}, 0")
    o("S_piece:")
    o(f"v_add_u32 v3, s{S_PP}, v{vG}")
    o(f"v_lshlrev_b32 v5, 2, v3")
    o(f"ds_read_b32 v4, v5 offset:{OFFL}")
    o(f"s_movk_i32 s{S_A}, {SEG}")
    o(f"v_mul_u32_u24 v{vA2}, s{S_A}, v3")
    o(f"v_mov_b32 v{vI}, 0")
    o("s_waitcnt lgkmcnt(0)")
    o(f"v_and_b32 v5, 0x7ff, v4")
    o(f"v_lshrrev_b32 v4, 11, v4")
    o(f"v_lshl_add_u32 v{vA2}, v5, 3, v{vA2}")
    o(f"s_mov_b32 s{S_A}, {REC_OFF}")
    o(f"s_mul_i32 s{S_B}, s{S_HALFI}, 196")
    o(f"s_movk_i32 s{S_C}, 196")
    o("S_rec:")
    o(f"v_cmpx_gt_u32 vcc, v4, v{vI}")
    o(f"s_cbranch_execz S_rec_done")
    o(f"buffer_load_dwordx2 {vr(vR2_,2)}, v{vA2}, {sr(R_WS,4)}, s{S_A} offen{SC}")
    o("s_waitcnt vmcnt(0)")
    o(f"v_bfe_u32 v5, v{vR2_}, 2, 14")
    o(f"v_subrev_u32 v{vLOC}, s{S_B}, v5")
    o(f"v_mad_u32_u16 v{vR2_}, v{vR2_}, s{S_CNT}, v{vLO} op_sel:[1,0,0,0]")
    o(f"v_mad_u32_u24 v3, v5, s{S_D}, v{vAB}")
    o(f"v_lshlrev_b32 v{vAcc}, 8, v{vLOC}")
    o(f"v_lshl_add_u32 v{vAcc}, v1, 5, v{vAcc}")
    o(f"v_add_u32 v{vAcc}, {ELL}, v{vAcc}")
    o(f"v_cmpx_gt_u32 vcc, s{S_C}, v{vLOC}")
    o(f"s_cbranch_execz S_rec_next")
    o(f"buffer_load_dwordx4 {vr(vD2,4)}, v{vR2_}, {sr(R_TAB,4)}, 0 offen{SC}")
    o(f"ds_read_b64 {vr(vAU,2)}, v3")
    o("s_waitcnt vmcnt(0) lgkmcnt(0)")
    T = vT2
    o(f"v_lshlrev_b64 {vr(T,2)}, 16, {vr(vD2,2)}")
    o(f"v_lshlrev_b64 {vr(T+4,2)}, 16, {vr(vD2+2,2)}")
    o(f"v_lshlrev_b64 {vr(T+6,2)}, 16, {vr(vAU,2)}")
    o(f"v_lshrrev_b32 v5, 5, v5")
    o(f"v_lshrrev_b32 v5, v5, s{S_MODE}")
    o(f"v_and_b32 v5, 1, v5")
    o(f"v_cmp_eq_u32 vcc, 0, v5")
    for r in (T+6, T+7, vAU, vAU+1):
        o(f"v_log_f32 v3, v{r}")
        o("s_nop 0")
        o(f"v_cndmask_b32 v{r}, v{r}, v3, vcc")
    o(f"v_pk_add_f32 {vr(T,2)}, {vr(T,2)}, {vr(T+6,2)}")
    o(f"v_pk_add_f32 {vr(T+2,2)}, {vr(vD2,2)}, {vr(vAU,2)}")
    o(f"v_pk_fma_f32 {vr(T,2)}, {vr(vR2_,2)}, {vr(vWX,2)}, {vr(T,2)} op_sel:[1,0,0] op_sel_hi:[1,1,1]")
    o(f"v_pk_fma_f32 {vr(T+2,2)}, {vr(vR2_,2)}, {vr(vWX+2,2)}, {vr(T+2,2)} op_sel:[1,0,0] op_sel_hi:[1,1,1]")
    for i in range(4): o(f"v_exp_f32 v{T+i}, v{T+i}")
    o("s_nop 0")
    o(f"v_pk_add_f32 {vr(T,2)}, {vr(T,2)}, 1.0 op_sel_hi:[1,0]")
    o(f"v_pk_add_f32 {vr(T+2,2)}, {vr(T+2,2)}, 1.0 op_sel_hi:[1,0]")
    for i in range(4): o(f"v_rcp_f32 v{T+i}, v{T+i}")
    o("s_nop 0")
    o(f"v_pk_mul_f32 {vr(T+4,2)}, {vr(T+4,2)}, {vr(T,2)}")
    o(f"v_pk_mul_f32 {vr(T+6,2)}, {vr(vD2+2,2)}, {vr(T+2,2)}")
    for i in range(8): o(f"ds_add_f32 v{vAcc}, v{T+i} offset:{4*i}")
    o("S_rec_next:")
    o("s_mov_b64 exec, -1")
    o(f"v_add_u32 v{vI}, 1, v{vI}")
    o(f"v_add_u32 v{vA2}, 8, v{vA2}")
    o("s_branch S_rec")
    o("S_rec_done:")
    o("s_mov_b64 exec, -1")
    o(f"s_add_u32 s{S_PP}, s{S_PP}, 128")
    o(f"s_cmp_lt_u32 s{S_PP}, 256")
    o("s_cbranch_scc1 S_piece")
    o("s_waitcnt lgkmcnt(0)")
    o("s_barrier")
    o(f"s_mov_b32 s{S_PP}, 0")
    o("S_fin:")
    o(f"v_add_u32 v{vLOC}, s{S_PP}, v{vG}")
    o(f"v_add_u32 v5, s{S_B}, v{vLOC}")
    o(f"v_mad_u32_u24 v3, v5, s{S_D}, v{vAB}")
    o(f"v_lshlrev_b32 v{vAcc}, 8, v{vLOC}")
    o(f"v_lshl_add_u32 v{vAcc}, v1, 5, v{vAcc}")
    o(f"v_add_u32 v{vAcc}, {ELL}, v{vAcc}")
    o(f"v_lshl_add_u32 v{vOA}, v5, 8, v{vOB}")
    o(f"v_cmpx_gt_u32 vcc, s{S_C}, v{vLOC}")
    o(f"s_cbranch_execz S_fin_next")
    o(f"ds_read2_b64 {vr(vAU+2,4)}, v3 offset0:1 offset1:2")
    o(f"ds_read_b128 {vr(24,4)}, v{vAcc}")
    o(f"ds_read_b128 {vr(28,4)}, v{vAcc} offset:16")
    o("s_waitcnt lgkmcnt(0)")
    finalize(o, 24, 28, vAU+2, vAU+4, vT, vOA)
    o("S_fin_next:")
    o("s_mov_b64 exec, -1")
    o(f"s_add_u32 s{S_PP}, s{S_PP}, 128")
    o(f"s_cmp_lt_u32 s{S_PP}, 256")
    o("s_cbranch_scc1 S_fin")
    o(f"s_add_u32 s{S_HALFI}, s{S_HALFI}, 1")
    o(f"s_cmp_lt_u32 s{S_HALFI}, 2")
    o("s_cbranch_scc1 S_half")
    o("L_end:")
    stamp(o, 12)
    stamp_flush(o, 13)
    o("L_exit:")
    o("s_endpgm")

def main():
    global STAMP, PD, EARLY
    for a in sys.argv[2:]:
        if a.startswith("stamp="): STAMP = int(a[6:])
        elif a.startswith("pd="): PD = int(a[3:])
        elif a.startswith("early="): EARLY = int(a[6:])
        else: OPT.add(a)
    ref = open(f"cdna_kernels/{NAME}.s.ref").read().split("\n")
    head = [l for l in ref if l.startswith(";") and "@launch" not in l]
    out = "\n".join(head) + "\n"
    out += f"; @launch grid=(256,1,1) block=(1024,1,1) lds={LDS_SIZE}\n"
    out += f'.amdgcn_target "amdgcn-amd-amdhsa--gfx950"\n.text\n.globl {NAME}_kernel\n.p2align 8\n.type {NAME}_kernel,@function\n{NAME}_kernel:\n'
    o = Asm(); kernel(o); out += o.text()
    out += f""".section .rodata,"a"
.p2align 6
.amdhsa_kernel {NAME}_kernel
  .amdhsa_next_free_vgpr 128
  .amdhsa_next_free_sgpr {102 if STAMP is not None else 88}
  .amdhsa_accum_offset 128
  .amdhsa_group_segment_fixed_size 0
  .amdhsa_kernarg_size 96
  .amdhsa_user_sgpr_count 2
  .amdhsa_user_sgpr_kernarg_segment_ptr 1
  .amdhsa_system_sgpr_workgroup_id_x 1
.end_amdhsa_kernel
"""
    path = sys.argv[1] if len(sys.argv) > 1 else f"cdna_kernels/{NAME}.s"
    open(path, "w").write(out)
    print("wrote", path, "LDS", LDS_SIZE)
main()
```

```python
import sys

NAME = "standalone__edge_featured_mpnn_gatedgcn__graph"
N = 25000; E = 400000
NPB = 196; CH = 1564
TROWS = 25096; TSTRIDE = TROWS*128
DUMMY_ROW = 25088
SEG = 12544
REC_OFF = 4*TSTRIDE
OFF_OFF = REC_OFF + 256*SEG
TF_OFF = OFF_OFF + 128*2048
WS_USED = TF_OFF + 4096
LOG2E_NEG = 0xBFB8AA3B; TINY = 0x03800000; EPS = 0x358637BD
SC = " sc1"
PD = 8
TEAM0 = 9
NL = 5
NR = 2*NL
HISTA = 0; BASE = 512; DEG = 1024; HIST2 = 2048; FLAG = 2304; SLOT = 2432; TBL = SLOT + 1024; SNODE = TBL + 256; OFFL = SNODE + 1024 + 128
XT = OFFL + 1024; XTS = 8320
WOFF = XT + 7*XTS
RECS = WOFF + 65536
LDS_END = RECS + SEG
AUX = XT; AUS = 200; AUP = 200*AUS
ELL = AUX + 2*AUP
ELL_ITERS = 512
LDS_SIZE = LDS_END + 2048
assert ELL % 16 == 0 and XT % 128 == 0
F_STRUCT, F_RANGE, F_SOFT, F_OFFL, F_W, F_GO, F_TAG, F_TC, F_GD, F_WI = FLAG, FLAG+4, FLAG+8, FLAG+12, FLAG+16, FLAG+20, FLAG+24, FLAG+32, FLAG+64, FLAG+68

STAMP = None; OPT = set(); PFN = 170
def st_reg(i): return 90 + 2*i if i < 6 else 36 + 2*(i-6) if i < 12 else 24 + 2*(i-12)
def gstamp(o, i):
    if "gd" in OPT: stamp(o, i, True)
def stamp(o, i, force=False):
    if STAMP is None: return
    if "gd" in OPT and not force and 5 <= i <= 10: return
    if "clk" in OPT:
        if i in (1, 2): return
        if i == 11: o(f"s_memtime s[{st_reg(1)}:{st_reg(1)+1}]")
        if i == 12: o(f"s_memtime s[{st_reg(2)}:{st_reg(2)+1}]")
    o(f"s_memrealtime s[{st_reg(i)}:{st_reg(i)+1}]")
    o("s_waitcnt lgkmcnt(0)")
def stamp_flush(o, n):
    if STAMP is None: return
    o(f"s_cmp_eq_u32 s{S_WAVE}, {STAMP}")
    o(f"s_cbranch_scc0 L_stf")
    o(f"s_mov_b64 exec, 1")
    o(f"s_mov_b32 s{R_WS+2}, {64<<20}")
    o(f"s_lshl_b32 s{S_A}, s{S_WG}, 7")
    o(f"s_add_u32 s{S_A}, s{S_A}, {32<<20}")
    o(f"v_mov_b32 v0, 0")
    for i in range(n):
        o(f"v_mov_b32 v2, s{st_reg(i)}")
        o(f"v_mov_b32 v3, s{st_reg(i)+1}")
        o(f"buffer_store_dwordx2 v[2:3], v0, {sr(R_WS,4)}, s{S_A} offen offset:{8*i}")
    o(f"L_stf:")

class Asm:
    def __init__(self): self.lines = []
    def __call__(self, s):
        for l in s.split("\n"):
            l = l.strip()
            if l: self.lines.append(("" if l.endswith(":") else "    ") + l)
    def text(self): return "\n".join(self.lines) + "\n"

def vr(a, n): return f"v[{a}:{a+n-1}]"
def sr(a, n): return f"s[{a}:{a+n-1}]"

def srd(o, d, base, nbytes):
    o(f"s_mov_b32 s{d}, s{base}")
    o(f"s_and_b32 s{d+1}, s{base+1}, 0xffff")
    o(f"s_mov_b32 s{d+2}, {nbytes}")
    o(f"s_mov_b32 s{d+3}, 0x20000")

def scan64(o, v):
    for sh in (1, 2, 4, 8):
        o("s_nop 1")
        o(f"v_add_u32_dpp v{v}, v{v}, v{v} row_shr:{sh} row_mask:0xf bank_mask:0xf bound_ctrl:0")
    o("s_nop 1")
    o(f"v_add_u32_dpp v{v}, v{v}, v{v} row_bcast:15 row_mask:0xa bank_mask:0xf")
    o("s_nop 1")
    o(f"v_add_u32_dpp v{v}, v{v}, v{v} row_bcast:31 row_mask:0xc bank_mask:0xf")

def gemm_pair(o, vW, vX, aP, aQ, vWaddr, base_off):
    def rd(t):
        for m in range(2):
            b = vW + (t & 1)*8 + m*4
            off = base_off + m*16384 + (t & 1)*2048
            o(f"ds_read_b64_tr_b16 {vr(b,2)}, v{vWaddr + (t >> 1)} offset:{off}")
            o(f"ds_read_b64_tr_b16 {vr(b+2,2)}, v{vWaddr + (t >> 1)} offset:{off + 512}")
    rd(0); rd(1)
    for t in range(8):
        o(f"s_waitcnt lgkmcnt({4 if t < 7 else 0})")
        for m, acc in enumerate((aP, aQ)):
            b = vW + (t & 1)*8 + m*4
            c = "0" if t == 0 else vr(acc, 16)
            o(f"v_mfma_f32_32x32x16_bf16 {vr(acc,16)}, {vr(b,4)}, {vr(vX+4*t,4)}, {c}")
        if t + 2 < 8: rd(t+2)
    o("s_nop 15")

def encode4(o, a, d):
    for i in range(4):
        o(f"v_add_u32 v{a+i}, s{S_HALF}, v{a+i}")
    for i in range(1, 4):
        o(f"v_sub_u32_sdwa v{a+i}, v{a+i}, v{a+i-1} dst_sel:DWORD dst_unused:UNUSED_PAD src0_sel:DWORD src1_sel:WORD_1")
    o(f"v_perm_b32 v{d}, v{a+1}, v{a}, s{S_PERM}")
    o(f"v_perm_b32 v{d+1}, v{a+3}, v{a+2}, s{S_PERM}")

S_WG = 2; S_NK = 3
S_X, S_E, S_SRC, S_DST, S_WA, S_WB, S_WC, S_WU, S_WV, S_OUT, S_DBG, S_WS = 4, 6, 8, 10, 12, 14, 16, 18, 20, 22, 24, 26
S_MSK = 4
R_WS = 28; R_W = 32; R_T0 = 36; R_T1 = 40; R_T2 = 44; R_X = 48; R_TAB = 52; R_OUT = 56; R_DBG = 60
S_WAVE = 64; S_HALF = 65; S_PERM = 66; S_SL0 = 67
S_CT = 68; S_EX = 70; S_EPS = 72
S_A = 74; S_B = 75; S_C = 76; S_D = 77
S_BUCKET = 78; S_NODE0 = 79
S_CNT = 80; S_L1 = 81; S_L2 = 82; S_L3 = 83; S_NT = 84; S_MODE = 85; S_NH = 86; S_SPIN = 87; S_PH = 88; S_B1 = 89
S_SL = S_L1; S_TILE = S_L2; S_FB = S_L3
S_PP = S_L2
vZ = 13

def spin_bound(o): o(f"s_mov_b32 s{S_SPIN}, 0x40000")
def spin_tail(o, lab, sleep):
    if sleep: o(f"s_sleep {sleep}")
    o(f"s_sub_u32 s{S_SPIN}, s{S_SPIN}, 1")
    o(f"s_cbranch_scc0 {lab}")

def lds_wait(o, lab, vA, off, target, vT, sleep=1):
    spin_bound(o)
    o(f"{lab}:")
    o(f"ds_read_b32 v{vT}, v{vA} offset:{off}")
    o("s_waitcnt lgkmcnt(0)")
    o(f"v_readfirstlane_b32 s{S_A}, v{vT}")
    o(f"s_cmp_ge_u32 s{S_A}, {target}")
    o(f"s_cbranch_scc1 {lab}_ok")
    spin_tail(o, lab, sleep)
    o(f"{lab}_ok:")

def lds_inc(o, vA, off):
    o("s_mov_b64 exec, 1")
    o(f"ds_add_u32 v{vA}, v15 offset:{off}")
    o("s_mov_b64 exec, -1")

def soft_barrier(o, lab, target, vT):
    o("s_waitcnt lgkmcnt(0)")
    lds_inc(o, vZ, F_SOFT)
    lds_wait(o, lab, vZ, F_SOFT, target, vT, 0)

def get_tag(o, lab):
    spin_bound(o)
    o(f"{lab}:")
    o(f"buffer_load_dwordx2 v[6:7], v{vZ}, {sr(R_DBG,4)}, 0 offen sc1")
    o("s_waitcnt vmcnt(0)")
    o(f"v_readfirstlane_b32 s{S_NK}, v6")
    o(f"v_readfirstlane_b32 s{S_NH}, v7")
    o(f"s_cmp_lg_u32 s{S_NH}, 0")
    o(f"s_cbranch_scc1 {lab}_ok")
    spin_tail(o, lab, 4)
    o(f"{lab}_ok:")

def poll_tables(o, lab, ph, v):
    o(f"v_lshlrev_b32 v3, 4, v2")
    o(f"s_lshl_b32 s{S_C}, s{S_SL0}, 10")
    o(f"s_add_u32 s{S_C}, s{S_C}, {TF_OFF + 1024*ph}")
    spin_bound(o)
    o(f"{lab}:")
    o(f"buffer_load_dwordx4 {vr(v,4)}, v3, {sr(R_WS,4)}, s{S_C} offen sc1")
    o("s_waitcnt vmcnt(0)")
    o(f"v_xor_b32 v{v}, s{S_NK}, v{v}")
    o(f"v_xor_b32 v{v+1}, s{S_NH}, v{v+1}")
    o(f"v_xor_b32 v{v+2}, s{S_NK}, v{v+2}")
    o(f"v_xor_b32 v{v+3}, s{S_NH}, v{v+3}")
    o(f"v_or3_b32 v{v}, v{v}, v{v+1}, v{v+2}")
    o(f"v_or_b32 v{v}, v{v}, v{v+3}")
    o(f"v_cmp_ne_u32 vcc, 0, v{v}")
    o(f"s_cbranch_vccz {lab}_ok")
    spin_tail(o, lab, 2)
    o(f"{lab}_ok:")

def publish_tf(o, ph):
    o(f"s_lshl_b32 s{S_B}, s{S_SL0}, 7")
    o(f"s_add_u32 s{S_B}, s{S_B}, s{S_BUCKET}")
    o(f"s_lshl_b32 s{S_B}, s{S_B}, 3")
    o(f"s_add_u32 s{S_B}, s{S_B}, {TF_OFF + 1024*ph}")
    o(f"v_mov_b32 v6, s{S_NK}")
    o(f"v_mov_b32 v7, s{S_NH}")
    o("s_mov_b64 exec, 1")
    o(f"buffer_store_dwordx2 v[6:7], v{vZ}, {sr(R_WS,4)}, s{S_B} offen sc1")
    o("s_mov_b64 exec, -1")

def finalize(o, vDen, vNum, vIX, vIY, vU, vXr, vT, vOA):
    if vIX is not None:
        o(f"v_pk_fma_f32 {vr(vDen,2)}, {vr(vDen,2)}, {vr(vIX,2)}, {sr(S_EPS,2)}")
        o(f"v_pk_fma_f32 {vr(vDen+2,2)}, {vr(vDen+2,2)}, {vr(vIY,2)}, {sr(S_EPS,2)}")
        o(f"v_pk_mul_f32 {vr(vNum,2)}, {vr(vNum,2)}, {vr(vIX,2)}")
        o(f"v_pk_mul_f32 {vr(vNum+2,2)}, {vr(vNum+2,2)}, {vr(vIY,2)}")
    else:
        o(f"v_pk_add_f32 {vr(vDen,2)}, {vr(vDen,2)}, {sr(S_EPS,2)}")
        o(f"v_pk_add_f32 {vr(vDen+2,2)}, {vr(vDen+2,2)}, {sr(S_EPS,2)}")
    o(f"v_lshlrev_b32 v{vT}, 16, v{vU}")
    o(f"v_lshlrev_b32 v{vT+1}, 16, v{vU+1}")
    o(f"v_and_b32 v{vT+2}, 0xffff0000, v{vU}")
    o(f"v_and_b32 v{vT+3}, 0xffff0000, v{vU+1}")
    for i in range(4): o(f"v_rcp_f32 v{vDen+i}, v{vDen+i}")
    o(f"v_lshlrev_b32 v{vT+4}, 16, v{vXr}")
    o(f"v_lshlrev_b32 v{vT+5}, 16, v{vXr+1}")
    o(f"v_pk_fma_f32 {vr(vT,2)}, {vr(vNum,2)}, {vr(vDen,2)}, {vr(vT,2)}")
    o(f"v_pk_fma_f32 {vr(vT+2,2)}, {vr(vNum+2,2)}, {vr(vDen+2,2)}, {vr(vT+2,2)}")
    o(f"v_and_b32 v{vT+6}, 0xffff0000, v{vXr}")
    o(f"v_and_b32 v{vT+7}, 0xffff0000, v{vXr+1}")
    for i in range(4): o(f"v_max_f32 v{vT+i}, 0, v{vT+i}")
    o(f"v_pk_add_f32 {vr(vT,2)}, {vr(vT,2)}, {vr(vT+4,2)}")
    o(f"v_pk_add_f32 {vr(vT+2,2)}, {vr(vT+2,2)}, {vr(vT+6,2)}")
    o(f"v_cvt_pk_bf16_f32 v{vT+4}, v{vT}, v{vT+2}")
    o(f"v_cvt_pk_bf16_f32 v{vT+5}, v{vT+1}, v{vT+3}")
    o(f"buffer_store_dwordx2 {vr(vT+4,2)}, v{vOA}, {sr(R_OUT,4)}, 0 offen")

def xsrc(o):
    o(f"v_lshrrev_b32 v12, 4, v2")
    o(f"v_lshlrev_b32 v3, 2, v12")
    o(f"v_and_b32 v4, 15, v2")
    o(f"v_xor_b32 v3, v3, v4")
    o(f"v_lshlrev_b32 v3, 4, v3")
    o(f"v_lshl_add_u32 v12, v12, 8, v3")

def kernel(o):
    vX = 16; vW = 48; aP = 64; aQ = 80; vD = 96; vREC = 104
    vWA = 104
    vWC = 124
    vSTG = 8
    NTM = 16 - TEAM0
    o(f"s_cmp_ge_u32 s{S_WG}, 256")
    o(f"s_cbranch_scc1 L_exit")
    stamp(o, 0)
    o(f"s_load_dwordx16 s[4:19], s[0:1], 0")
    o(f"s_load_dwordx8 s[20:27], s[0:1], 64")
    o(f"s_getpc_b64 {sr(S_EX,2)}")
    o(f"v_lshlrev_b32 v3, 6, v0")
    o(f"s_movk_i32 s{S_A}, {PFN}")
    o(f"v_cmpx_gt_u32 vcc, s{S_A}, v0")
    o(f"global_load_dword v123, v3, {sr(S_EX,2)}")
    o("s_mov_b64 exec, -1")
    o(f"v_lshrrev_b32 v1, 6, v0")
    o(f"v_and_b32 v2, 63, v0")
    o(f"v_readfirstlane_b32 s{S_WAVE}, v1")
    o(f"v_lshlrev_b32 v9, 2, v0")
    o(f"v_mov_b32 v{vZ}, 0")
    o(f"s_movk_i32 s{S_A}, {SLOT//4}")
    o(f"v_cmpx_gt_u32 vcc, s{S_A}, v0")
    o(f"ds_write_b32 v9, v{vZ}")
    o("s_mov_b64 exec, -1")
    o(f"s_cmp_lt_u32 s{S_WAVE}, {TEAM0}")
    o(f"s_cbranch_scc1 L_noprio")
    o("s_setprio 3")
    o("L_noprio:")
    o(f"s_mov_b32 s{S_HALF}, 0x8000")
    o(f"s_mov_b32 s{S_PERM}, 0x07060302")
    o(f"s_mov_b32 s{S_CT}, {LOG2E_NEG:#x}")
    o(f"s_mov_b32 s{S_CT+1}, {TINY:#x}")
    o(f"s_mov_b32 s{S_EPS}, {EPS:#x}")
    o(f"s_mov_b32 s{S_EPS+1}, {EPS:#x}")
    o(f"s_bfe_u32 s{S_SL0}, s{S_WG}, 0x10002")
    o(f"s_lshl_b32 s{S_SL0}, s{S_SL0}, 1")
    o(f"s_lshr_b32 s{S_BUCKET}, s{S_WG}, 3")
    o(f"s_and_b32 s{S_A}, s{S_WG}, 3")
    o(f"s_lshl_b32 s{S_A}, s{S_A}, 5")
    o(f"s_add_u32 s{S_BUCKET}, s{S_BUCKET}, s{S_A}")
    o(f"s_mul_i32 s{S_NODE0}, s{S_BUCKET}, {NPB}")
    o(f"v_mov_b32 v15, 1")
    o(f"v_and_b32 v1, 7, v2")
    o(f"v_lshlrev_b32 v14, 3, v1")
    o(f"v_subrev_u32 v4, {TEAM0*64}, v0")
    o(f"v_lshlrev_b32 v3, 4, v4")
    o(f"v_lshlrev_b32 v5, 3, v4")
    o(f"s_mul_i32 s{S_C}, s{S_WG}, {CH*4}")
    o(f"s_mul_i32 s{S_B}, s{S_WG}, {CH*2}")
    o(f"v_lshrrev_b32 v12, 3, v2")
    o(f"v_lshrrev_b32 v6, 2, v2")
    o(f"v_and_b32 v6, 4, v6")
    o(f"v_xor_b32 v6, v6, v1")
    o(f"v_lshlrev_b32 v6, 4, v6")
    o(f"v_lshl_add_u32 v12, v12, 8, v6")
    o("s_waitcnt lgkmcnt(0)")
    srd(o, R_T0, S_DST, E*4)
    srd(o, R_T1, S_SRC, E*4)
    srd(o, R_T2, S_E, E*2)
    vDST, vSRC, vE, vB, vR, vRec = 16, 20, 24, 28, 32, 36
    o(f"s_cmp_lt_u32 s{S_WAVE}, {TEAM0}")
    o(f"s_cbranch_scc1 L_noedge")
    o(f"buffer_load_dwordx4 {vr(vDST,4)}, v3, {sr(R_T0,4)}, s{S_C} offen")
    o(f"buffer_load_dwordx4 {vr(vSRC,4)}, v3, {sr(R_T1,4)}, s{S_C} offen")
    o(f"buffer_load_dwordx2 {vr(vE,2)}, v5, {sr(R_T2,4)}, s{S_B} offen")
    o("L_noedge:")
    o("s_barrier")
    o(f"s_cmp_lt_u32 s{S_WAVE}, 8")
    o(f"s_cbranch_scc0 L_now")
    o(f"s_bitcmp1_b32 s{S_WAVE}, 2")
    o(f"s_cselect_b32 s{S_A}, s{S_WA}, s{S_WB}")
    o(f"s_cselect_b32 s{S_B}, s{S_WA+1}, s{S_WB+1}")
    o(f"s_cselect_b32 s{S_C}, s{S_WU}, s{S_WV}")
    o(f"s_cselect_b32 s{S_D}, s{S_WU+1}, s{S_WV+1}")
    o(f"s_bitcmp1_b32 s{S_WAVE}, 1")
    o(f"s_cselect_b32 s{R_W}, s{S_C}, s{S_A}")
    o(f"s_cselect_b32 s{R_W+1}, s{S_D}, s{S_B}")
    o(f"s_and_b32 s{R_W+1}, s{R_W+1}, 0xffff")
    o(f"s_mov_b32 s{R_W+2}, 32768")
    o(f"s_mov_b32 s{R_W+3}, 0x20000")
    o(f"s_and_b32 s{S_A}, s{S_WAVE}, 1")
    o(f"s_lshl_b32 s{S_A}, s{S_A}, 14")
    o(f"s_lshl_b32 s{S_B}, s{S_SL0}, 6")
    o(f"s_add_u32 s{S_A}, s{S_A}, s{S_B}")
    o(f"s_lshl_b32 s{S_C}, s{S_WAVE}, 13")
    for i in range(8):
        o(f"s_add_u32 m0, s{S_C}, {WOFF + 1024*i}")
        o(f"s_add_u32 s{S_D}, s{S_A}, {2048*i}")
        o(f"buffer_load_dwordx4 v12, {sr(R_W,4)}, s{S_D} offen lds")
    lds_inc(o, vZ, F_WI)
    o("L_now:")
    srd(o, R_W, S_WC, 256)
    o(f"s_lshl_b32 s{S_B}, s{S_SL0}, 6")
    o(f"buffer_load_dwordx2 {vr(vWC,2)}, v14, {sr(R_W,4)}, s{S_B} offen")
    o(f"buffer_load_dwordx2 {vr(vWC+2,2)}, v14, {sr(R_W,4)}, s{S_B} offen offset:64")
    srd(o, R_X, S_X, N*256)
    srd(o, R_WS, S_WS, WS_USED)
    srd(o, R_OUT, S_OUT, N*256)
    srd(o, R_DBG, S_DBG, 256)
    o(f"s_mul_i32 s{S_A}, s{S_SL0}, {TSTRIDE}")
    o(f"s_add_u32 s{R_TAB}, s{S_WS}, s{S_A}")
    o(f"s_addc_u32 s{R_TAB+1}, s{S_WS+1}, 0")
    o(f"s_and_b32 s{R_TAB+1}, s{R_TAB+1}, 0xffff")
    o(f"s_mov_b32 s{R_TAB+2}, {2*TSTRIDE}")
    o(f"s_mov_b32 s{R_TAB+3}, 0x20000")
    o(f"s_cmp_lt_u32 s{S_WAVE}, {TEAM0}")
    o(f"s_cbranch_scc1 L_gemm")
    o(f"s_cmp_eq_u32 s{S_WAVE}, 14")
    o(f"s_cbranch_scc0 L_notag")
    o(f"s_cmp_eq_u32 s{S_WG}, 0")
    o(f"s_cbranch_scc0 L_notag")
    o(f"s_memrealtime {sr(S_EX,2)}")
    o("s_waitcnt lgkmcnt(0)")
    o(f"s_lshl_b32 s{S_A}, s{S_EX}, 22")
    o(f"s_lshr_b64 {sr(S_EX,2)}, {sr(S_EX,2)}, 10")
    o(f"s_or_b32 s{S_B}, s{S_EX}, 0x80000000")
    o(f"v_mov_b32 v6, s{S_A}")
    o(f"v_mov_b32 v7, s{S_B}")
    o("s_mov_b64 exec, 1")
    o(f"buffer_store_dwordx2 v[6:7], v{vZ}, {sr(R_DBG,4)}, 0 offen sc1")
    o("s_mov_b64 exec, -1")
    o("L_notag:")
    o(f"s_cmp_eq_u32 s{S_WG}, 255")
    o(f"s_movk_i32 s{S_C}, {CH//4}")
    o(f"s_cselect_b32 s{S_C}, {(E-255*CH)//4}, s{S_C}")
    o(f"s_mov_b32 s{S_B}, 85599")
    o(f"s_movk_i32 s{S_D}, {NPB}")
    o("s_waitcnt vmcnt(2)")
    stamp(o, 1)
    for r in range(4):
        o(f"v_mul_u32_u24 v{vB+r}, s{S_B}, v{vDST+r}")
        o(f"v_lshrrev_b32 v{vB+r}, 24, v{vB+r}")
        o(f"v_mul_u32_u24 v3, s{S_D}, v{vB+r}")
        o(f"v_sub_u32 v3, v{vDST+r}, v3")
        o(f"v_lshlrev_b32 v3, 2, v3")
        o(f"v_lshl_or_b32 v{vRec+2*r}, v{vSRC+r}, 16, v3")
        o(f"v_lshlrev_b32 v{vB+r}, 2, v{vB+r}")
        if r & 1: o(f"v_and_b32 v{vRec+2*r+1}, 0xffff0000, v{vE+(r>>1)}")
        else:     o(f"v_lshlrev_b32 v{vRec+2*r+1}, 16, v{vE+(r>>1)}")
    o(f"v_cmpx_gt_u32 vcc, s{S_C}, v4")
    for r in range(4):
        o(f"ds_add_rtn_u32 v{vR+r}, v{vB+r}, v15 offset:{HISTA}")
    o("s_mov_b64 exec, -1")
    o(f"v_lshlrev_b32 v8, 3, v2")
    soft_barrier(o, "L_sb1", NTM, 3)
    o(f"ds_read_b64 v[6:7], v8 offset:{HISTA}")
    o("s_waitcnt lgkmcnt(0)")
    o(f"v_add_u32 v11, v6, v7")
    scan64(o, 11)
    o(f"v_sub_u32 v11, v11, v7")
    o(f"v_sub_u32 v10, v11, v6")
    o(f"ds_write_b64 v8, v[10:11] offset:{BASE}")
    for r in range(4):
        o(f"ds_read_b32 v{vDST+r}, v{vB+r} offset:{BASE}")
    o(f"v_lshl_or_b32 v10, v6, 11, v10")
    o(f"v_lshl_or_b32 v11, v7, 11, v11")
    o(f"v_mov_b32 v3, {RECS}")
    o("s_waitcnt lgkmcnt(0)")
    o(f"v_cmpx_gt_u32 vcc, s{S_C}, v4")
    for r in range(4):
        o(f"v_add_u32 v{vDST+r}, v{vDST+r}, v{vR+r}")
        o(f"v_lshl_add_u32 v{vDST+r}, v{vDST+r}, 3, v3")
        o(f"ds_write_b64 v{vDST+r}, {vr(vRec+2*r,2)}")
    o("s_mov_b64 exec, -1")
    soft_barrier(o, "L_sb2", 2*NTM, 3)
    stamp(o, 2)
    o(f"s_cmp_lt_u32 s{S_WAVE}, 14")
    o(f"s_cbranch_scc1 L_gemm")
    o(f"s_cmp_eq_u32 s{S_WAVE}, 14")
    o(f"s_cbranch_scc1 L_w14")
    o(f"v_lshlrev_b32 v4, 4, v2")
    o(f"v_add_u32 v12, {RECS}, v4")
    o(f"s_mul_i32 s{S_B}, s{S_WG}, {SEG}")
    o(f"s_add_u32 s{S_B}, s{S_B}, {REC_OFF}")
    for i in range(12):
        o(f"ds_read_b128 {vr(16+4*i,4)}, v12 offset:{i*1024}")
    o("s_mov_b64 exec, 0xffff")
    o(f"ds_read_b128 {vr(64,4)}, v12 offset:{12*1024}")
    o("s_mov_b64 exec, -1")
    for i in range(13):
        if i == 12: o("s_mov_b64 exec, 0xffff")
        if i and i % 4 == 0: o(f"s_add_u32 s{S_B}, s{S_B}, 4096")
        o(f"s_waitcnt lgkmcnt({12-i})")
        o(f"buffer_store_dwordx4 {vr(16+4*i,4)}, v4, {sr(R_WS,4)}, s{S_B} offen offset:{(i&3)*1024}{SC}")
    o("s_mov_b64 exec, -1")
    stamp(o, 3)
    get_tag(o, "L_ga")
    o(f"ds_write_b32 v{vZ}, v15 offset:{F_GO}")
    stamp(o, 4)
    o(f"v_or_b32 v16, s{S_NK}, v10")
    o(f"v_mov_b32 v17, s{S_NH}")
    o(f"v_or_b32 v18, s{S_NK}, v11")
    o(f"v_mov_b32 v19, s{S_NH}")
    o(f"s_lshl_b32 s{S_B}, s{S_WG}, 10")
    o(f"s_add_u32 s{S_B}, s{S_B}, {OFF_OFF}")
    o(f"buffer_store_dwordx4 v[16:19], v4, {sr(R_WS,4)}, s{S_B} offen{SC}")
    o(f"s_cmp_eq_u32 s{S_BUCKET}, 127")
    o(f"s_cbranch_scc0 L_rec")
    o(f"v_lshrrev_b32 v3, 3, v2")
    o(f"s_mov_b32 s{S_B}, {TSTRIDE}")
    o(f"v_mul_lo_u32 v3, v3, s{S_B}")
    o(f"v_lshl_add_u32 v3, v1, 4, v3")
    o(f"s_mov_b32 s{S_B}, {DUMMY_ROW*128}")
    o(f"v_mov_b32 v20, 0x7f007f00")
    o(f"v_mov_b32 v21, 0x7f007f00")
    o(f"v_mov_b32 v22, 0")
    o(f"v_mov_b32 v23, 0")
    o("s_mov_b64 exec, 0xffff")
    o(f"buffer_store_dwordx4 {vr(20,4)}, v3, {sr(R_TAB,4)}, s{S_B} offen{SC}")
    o("s_mov_b64 exec, -1")
    o("s_branch L_rec")
    o("L_w14:")
    xsrc(o)
    o(f"s_add_u32 s{S_A}, s{S_NODE0}, {16*TEAM0}")
    o(f"s_lshl_b32 s{S_A}, s{S_A}, 8")
    for w in range(TEAM0, 13):
        for i in range(4 if w < 12 else 1):
            o(f"s_mov_b32 m0, {XT + (w >> 1)*XTS + (w & 1)*4160 + 16*i}")
            o("s_nop 0")
            o(f"buffer_load_dwordx4 v12, {sr(R_X,4)}, s{S_A} offen offset:{i*1024} lds")
        if w < 12: o(f"s_add_u32 s{S_A}, s{S_A}, 4096")
    get_tag(o, "L_gb")
    o(f"v_mov_b32 v3, 2")
    o("s_mov_b64 exec, 1")
    o(f"ds_add_u32 v{vZ}, v15 offset:{F_TC+16}")
    o(f"ds_add_u32 v{vZ}, v3 offset:{F_TC+20}")
    o(f"ds_add_u32 v{vZ}, v3 offset:{F_TC+24}")
    o("s_mov_b64 exec, -1")
    o(f"ds_write_b64 v{vZ}, v[6:7] offset:{F_TAG}")
    o(f"v_lshlrev_b32 v3, 12, v2")
    o(f"s_lshl_b32 s{S_B}, s{S_BUCKET}, 3")
    o(f"s_add_u32 s{S_B}, s{S_B}, {OFF_OFF}")
    spin_bound(o)
    o("L_pa:")
    for i in range(4):
        o(f"buffer_load_dwordx2 {vr(16+2*i,2)}, v3, {sr(R_WS,4)}, s{S_B} offen offset:{1024*i} sc1")
    o("s_waitcnt vmcnt(0)")
    for i in range(4):
        o(f"v_xor_b32 v{24+i}, s{S_NK}, v{16+2*i}")
        o(f"v_xor_b32 v{17+2*i}, s{S_NH}, v{17+2*i}")
    o(f"v_or3_b32 v6, v24, v25, v26")
    o(f"v_or_b32 v6, v6, v27")
    o(f"v_lshrrev_b32 v6, 22, v6")
    o(f"v_or3_b32 v6, v6, v17, v19")
    o(f"v_or3_b32 v6, v6, v21, v23")
    o(f"v_cmpx_ne_u32 vcc, 0, v6")
    o(f"s_cbranch_execz L_pa_ok")
    spin_tail(o, "L_pa", 2)
    o("L_pa_ok:")
    o("s_mov_b64 exec, -1")
    stamp(o, 3)
    o(f"v_lshlrev_b32 v3, 4, v2")
    o(f"ds_write_b128 v3, {vr(24,4)} offset:{OFFL}")
    o("s_waitcnt lgkmcnt(0)")
    o(f"ds_write_b32 v{vZ}, v15 offset:{F_OFFL}")
    o("s_branch L_rec")
    o("L_gemm:")
    o("s_setprio 0")
    xsrc(o)
    if "wi" in OPT: lds_wait(o, "L_wi", vZ, F_WI, 8, 3, 0)
    o(f"s_lshr_b32 s{S_TILE}, s{S_WAVE}, 1")
    o(f"s_and_b32 s{S_FB}, s{S_WAVE}, 1")
    o(f"s_add_u32 s{S_SL}, s{S_SL0}, s{S_FB}")
    o(f"s_lshl_b32 s{S_A}, s{S_WAVE}, 4")
    o(f"s_add_u32 s{S_A}, s{S_A}, s{S_NODE0}")
    o(f"s_lshl_b32 s{S_A}, s{S_A}, 8")
    o(f"s_mul_i32 s{S_C}, s{S_TILE}, {XTS}")
    o(f"s_add_u32 s{S_C}, s{S_C}, {XT}")
    o(f"s_mul_i32 s{S_B}, s{S_FB}, 4160")
    o(f"s_add_u32 s{S_B}, s{S_B}, s{S_C}")
    o(f"s_cmp_ge_u32 s{S_WAVE}, {TEAM0}")
    o(f"s_cbranch_scc1 L_xdone")
    for i in range(4):
        o(f"s_add_u32 m0, s{S_B}, {16*i}")
        o("s_nop 0")
        o(f"buffer_load_dwordx4 v12, {sr(R_X,4)}, s{S_A} offen offset:{i*1024} lds")
    o("L_xdone:")
    o(f"s_cmp_lt_u32 s{S_WAVE}, 8")
    o(f"s_cbranch_scc0 L_w4")
    o("s_waitcnt vmcnt(4)")
    lds_inc(o, vZ, F_W)
    o("L_w4:")
    if STAMP is not None and STAMP < TEAM0: stamp(o, 1)
    o(f"v_and_b32 v6, 31, v2")
    o(f"v_lshrrev_b32 v7, 5, v2")
    o(f"v_lshrrev_b32 v3, 2, v6")
    o(f"s_movk_i32 s{S_A}, 1040")
    o(f"v_mul_u32_u24 v3, s{S_A}, v3")
    o(f"v_and_b32 v12, 3, v6")
    o(f"v_lshl_add_u32 v3, v12, 8, v3")
    o(f"v_lshl_add_u32 v3, v7, 4, v3")
    o(f"v_add_u32 v3, s{S_C}, v3")
    o(f"v_xor_b32 v12, s{S_SL}, v12")
    for u in range(4):
        o(f"v_xor_b32 v4, {u}, v12")
        o(f"v_lshl_add_u32 v{vD+u}, v4, 6, v3")
    o(f"v_bfe_u32 v3, v2, 2, 2")
    o(f"v_lshl_add_u32 v8, v7, 3, v3")
    o(f"v_lshlrev_b32 v8, 7, v8")
    o(f"v_lshrrev_b32 v3, 1, v3")
    o(f"v_xor_b32 v3, s{S_FB}, v3")
    o(f"v_lshl_add_u32 v8, v3, 6, v8")
    o(f"v_bfe_u32 v3, v2, 4, 1")
    o(f"v_lshl_add_u32 v8, v3, 5, v8")
    o(f"v_and_b32 v3, 3, v2")
    o(f"v_lshl_add_u32 v8, v3, 3, v8")
    for u in range(4):
        o(f"s_xor_b32 s{S_A}, s{S_SL}, {u}")
        o(f"s_lshl_b32 s{S_A}, s{S_A}, 12")
        o(f"s_add_u32 s{S_A}, s{S_A}, {WOFF}")
        o(f"v_add_u32 v{vWA+u}, s{S_A}, v8")
    o(f"s_lshl_b32 s{S_A}, s{S_TILE}, 2")
    o(f"v_mov_b32 v11, s{S_A}")
    o(f"s_lshl_b32 s{S_D}, s{S_FB}, 12")
    o(f"s_add_u32 s{S_D}, s{S_D}, s{S_C}")
    o("s_waitcnt vmcnt(0)")
    o(f"s_cmp_ge_u32 s{S_WAVE}, {TEAM0}")
    o(f"s_cbranch_scc1 L_noinc")
    lds_inc(o, 11, F_TC)
    o("L_noinc:")
    lds_wait(o, "L_wt", 11, F_TC, 2, 3, 0)
    stamp(o, 2 if STAMP is not None and STAMP < TEAM0 else 3)
    for t in range(8):
        o(f"ds_read_b128 {vr(vX+4*t,4)}, v{vD+(t>>1)} offset:{(t&1)*32}")
    o("s_waitcnt lgkmcnt(0)")
    lds_inc(o, 11, F_TC)
    lds_wait(o, "L_ww", vZ, F_W, 8, 3)
    gstamp(o, 5)
    gemm_pair(o, vW, vX, aP, aQ, vWA, 0)
    gstamp(o, 6)
    for i in range(0, 16, 2):
        o(f"v_pk_fma_f32 {vr(aP+i,2)}, {vr(aP+i,2)}, {sr(S_CT,2)}, {sr(S_CT,2)} op_sel:[0,0,1] op_sel_hi:[1,0,1]")
    for i in range(0, 16, 2):
        o(f"v_pk_add_f32 {vr(aQ+i,2)}, {vr(aQ+i,2)}, {sr(S_CT,2)} op_sel:[0,1] op_sel_hi:[1,1]")
    lds_wait(o, "L_wu", 11, F_TC, 4, 3, 0)
    gstamp(o, 7)
    o(f"v_and_b32 v3, 7, v6")
    o(f"v_xor_b32 v3, v3, v7")
    o(f"v_lshlrev_b32 v3, 4, v3")
    o(f"v_lshl_add_u32 v3, v6, 7, v3")
    o(f"v_add_u32 v3, s{S_D}, v3")
    for q in range(4):
        d = vD + (q & 1)*4
        encode4(o, aP+4*q, d); encode4(o, aQ+4*q, d+2)
        if q: o(f"v_xor_b32 v3, {32*(q ^ (q-1))}, v3")
        o(f"ds_write_b128 v3, {vr(d,4)}")
    o(f"v_lshrrev_b32 v3, 3, v2")
    o(f"v_xor_b32 v10, v1, v3")
    o(f"v_lshlrev_b32 v10, 4, v10")
    o(f"v_lshl_add_u32 v10, v3, 7, v10")
    o(f"v_add_u32 v10, s{S_D}, v10")
    o(f"s_lshl_b32 s{S_B1}, s{S_TILE}, 5")
    o(f"s_add_u32 s{S_B1}, s{S_B1}, s{S_NODE0}")
    o(f"s_lshl_b32 s{S_B1}, s{S_B1}, 7")
    def tab_read():
        for i in range(4):
            o(f"ds_read_b128 {vr(aP+4*i,4)}, v10 offset:{i*1024}")
    def tab_store(lab, counted):
        o(f"v_lshlrev_b32 v3, 4, v2")
        o(f"s_cmp_lt_u32 s{S_WAVE}, 12")
        o(f"s_cbranch_scc1 {lab}_full")
        if counted: o("s_waitcnt lgkmcnt(0)")
        o("s_mov_b32 exec_hi, 0")
        o(f"buffer_store_dwordx4 {vr(aP,4)}, v3, {sr(R_TAB,4)}, s{S_B1} offen{SC}")
        o("s_mov_b64 exec, -1")
        o(f"s_branch {lab}")
        o(f"{lab}_full:")
        for i in range(4):
            if counted: o(f"s_waitcnt lgkmcnt({3-i})")
            o(f"buffer_store_dwordx4 {vr(aP+4*i,4)}, v3, {sr(R_TAB,4)}, s{S_B1} offen offset:{i*1024}{SC}")
        o(f"{lab}:")
    o(f"s_mul_i32 s{S_A}, s{S_FB}, {TSTRIDE}")
    o(f"s_add_u32 s{S_B1}, s{S_B1}, s{S_A}")
    gstamp(o, 8)
    if "nohold" not in OPT: lds_wait(o, "L_hold", vZ, F_GO, 1, 3)
    else: o("s_waitcnt lgkmcnt(0)")
    gstamp(o, 9)
    tab_read()
    tab_store("L_st_done", True)
    if STAMP is not None and STAMP < TEAM0: stamp(o, 3)
    gemm_pair(o, vW, vX, aP, aQ, vWA, 32768)
    gstamp(o, 10)
    for i in range(0, 16, 2):
        o(f"v_pk_mul_f32 {vr(aP+i,2)}, {vr(aP+i,2)}, {sr(S_CT,2)} op_sel_hi:[1,0]")
    for q in range(4):
        o(f"v_cvt_pk_bf16_f32 v{vW+4*q+2}, v{aQ+4*q}, v{aQ+4*q+1}")
        o(f"v_cvt_pk_bf16_f32 v{vW+4*q+3}, v{aQ+4*q+2}, v{aQ+4*q+3}")
    o(f"v_max3_f32 v3, |v{aP}|, |v{aP+1}|, |v{aP+2}|")
    for i in range(3, 15, 2):
        o(f"v_max3_f32 v3, v3, |v{aP+i}|, |v{aP+i+1}|")
    o(f"v_max_f32 v3, v3, |v{aP+15}|")
    o(f"s_mov_b32 s{S_A}, 0x42700000")
    o(f"s_cmp_ge_u32 s{S_WAVE}, 12")
    o(f"s_cselect_b32 s{S_EX}, 0xf, -1")
    o(f"v_cmp_lt_f32 vcc, s{S_A}, v3")
    o(f"s_mov_b32 s{S_EX+1}, s{S_EX}")
    o(f"s_and_b64 vcc, vcc, {sr(S_EX,2)}")
    o(f"s_cbranch_scc0 L_doexp")
    o(f"v_lshlrev_b32 v3, s{S_WAVE}, v15")
    o(f"ds_or_b32 v{vZ}, v3 offset:{F_RANGE}")
    o("s_branch L_noexp")
    o("L_doexp:")
    for i in range(16): o(f"v_exp_f32 v{aP+i}, -v{aP+i}")
    o("L_noexp:")
    for q in range(4):
        o(f"v_cvt_pk_bf16_f32 v{vW+4*q}, v{aP+4*q}, v{aP+4*q+1}")
        o(f"v_cvt_pk_bf16_f32 v{vW+4*q+1}, v{aP+4*q+2}, v{aP+4*q+3}")
    lds_inc(o, vZ, F_GD)
    def aux_write(lab):
        o(f"s_cmp_lt_u32 s{S_WAVE}, 14")
        o(f"s_cbranch_scc0 {lab}")
        o(f"s_lshr_b32 s{S_A}, s{S_WAVE}, 1")
        o(f"s_lshl_b32 s{S_A}, s{S_A}, 5")
        o(f"v_and_b32 v3, 31, v2")
        o(f"v_add_u32 v3, s{S_A}, v3")
        o(f"s_movk_i32 s{S_A}, {AUS}")
        o(f"v_cmpx_gt_u32 vcc, s{S_A}, v3")
        o(f"s_and_b32 s{S_B}, s{S_WAVE}, 1")
        o(f"s_mul_i32 s{S_B}, s{S_B}, {AUP}")
        o(f"s_add_u32 s{S_B}, s{S_B}, {AUX}")
        o(f"v_mul_u32_u24 v3, s{S_A}, v3")
        o(f"v_lshrrev_b32 v14, 5, v2")
        o(f"v_mul_u32_u24 v14, 24, v14")
        o(f"v_add3_u32 v3, v3, v14, s{S_B}")
        o(f"v_add_u32 v14, v3, v14")
        for q in range(4):
            o(f"ds_write2_b64 v3, {vr(vW+4*q,2)}, {vr(vW+4*q+2,2)} offset0:{6*q} offset1:{6*q+1}")
        o(f"ds_write2_b64 v14, {vr(vX,2)}, {vr(vX+2,2)} offset0:2 offset1:5")
        o(f"ds_write2_b64 v14, {vr(vX+4,2)}, {vr(vX+6,2)} offset0:14 offset1:17")
        o("s_mov_b64 exec, -1")
        o(f"{lab}:")
    o("L_rec:")
    if STAMP is not None and STAMP < 14: stamp(o, 4)
    vCNT, vIDX, vRA = 4, 5, 12
    o(f"v_and_b32 v{vIDX}, 3, v0")
    o(f"v_lshlrev_b32 v{vIDX}, 1, v{vIDX}")
    o(f"v_lshrrev_b32 v3, 2, v0")
    o(f"s_movk_i32 s{S_A}, {SEG}")
    o(f"v_mul_u32_u24 v{vRA}, s{S_A}, v3")
    o(f"v_and_b32 v14, 0xffc, v0")
    lds_wait(o, "L_wo", vZ, F_OFFL, 1, 3)
    o(f"ds_read_b32 v{vCNT}, v14 offset:{OFFL}")
    o(f"ds_read_b64 v[6:7], v{vZ} offset:{F_TAG}")
    o(f"s_mov_b32 s{S_A}, {REC_OFF}")
    o("s_waitcnt lgkmcnt(0)")
    o(f"v_readfirstlane_b32 s{S_NK}, v6")
    o(f"v_readfirstlane_b32 s{S_NH}, v7")
    o(f"v_and_b32 v3, 0x7ff, v{vCNT}")
    o(f"v_lshrrev_b32 v{vCNT}, 11, v{vCNT}")
    o(f"v_add_u32 v3, v3, v{vIDX}")
    o(f"v_lshl_add_u32 v{vRA}, v3, 3, v{vRA}")
    o(f"v_sub_u32 v{vIDX}, v{vCNT}, v{vIDX}")
    for r in range(NR):
        o(f"v_cmp_lt_i32 {sr(S_MSK+2*r,2)}, {8*(r>>1) + (r&1)}, v{vIDX}")
    for k in range(NL):
        o(f"s_mov_b64 exec, {sr(S_MSK+4*k,2)}")
        if k >= 2: o("s_cbranch_execz L_ld_done")
        o(f"buffer_load_dwordx4 {vr(vREC+4*k,4)}, v{vRA}, {sr(R_WS,4)}, s{S_A} offen offset:{k*64}{SC}")
    o("L_ld_done:")
    o("s_mov_b64 exec, -1")
    o(f"v_cmpx_lt_u32 vcc, {8*NL}, v{vCNT}")
    o(f"ds_write_b32 v{vZ}, v15 offset:{F_STRUCT}")
    o("s_mov_b64 exec, -1")
    o(f"s_cmp_lt_u32 s{S_WAVE}, 14")
    o(f"s_cbranch_scc0 L_noaux")
    lds_wait(o, "L_wg", vZ, F_GD, 14, 3)
    aux_write("L_noaux")
    stamp(o, 5)
    vRK = 24; vDA = 34
    o("s_waitcnt vmcnt(0)")
    for r in range(NR):
        o(f"s_mov_b64 exec, {sr(S_MSK+2*r,2)}")
        if r >= 3: o("s_cbranch_execz L_cnt_done")
        o(f"v_and_b32 v{vDA+r}, 0xffff, v{vREC+2*r}")
        o(f"ds_add_rtn_u32 v{vRK+r}, v{vDA+r}, v15 offset:{DEG}")
    o("L_cnt_done:")
    o("s_setprio 0")
    o("s_mov_b64 exec, -1")
    stamp(o, 6)
    o("s_waitcnt lgkmcnt(0)")
    o("s_barrier")
    stamp(o, 7)
    vN_D, vBIN, vR2, vPOS, vL, vTB = 80, 81, 82, 83, 84, 85
    vWX, vW2, vEX, vDen, vNum, vNQ, vT, vLO, vLA, vOB, vOA, vAB, vAU = 86, 124, 90, 92, 96, 100, 64, 72, 73, 74, 75, 76, 78
    o(f"s_cmp_eq_u32 s{S_WAVE}, 15")
    o(f"s_cbranch_scc0 L_nosort")
    o("s_setprio 3")
    sD, sB, sR, sP = 48, 52, 56, 60
    o(f"v_lshlrev_b32 v8, 2, v2")
    for i in range(4): o(f"ds_read_b32 v{sD+i}, v8 offset:{DEG+256*i}")
    publish_tf(o, 0)
    publish_tf(o, 1)
    o("s_waitcnt lgkmcnt(0)")
    for i in range(4):
        o(f"v_min_u32 v{sB+i}, 63, v{sD+i}")
        o(f"v_sub_u32 v{sB+i}, 63, v{sB+i}")
        o(f"v_lshlrev_b32 v{sB+i}, 2, v{sB+i}")
        if i == 3: o("s_mov_b64 exec, 0xff")
        o(f"ds_add_rtn_u32 v{sR+i}, v{sB+i}, v15 offset:{HIST2}")
    o("s_mov_b64 exec, -1")
    o(f"ds_read_b32 v6, v8 offset:{HIST2}")
    o(f"v_max3_u32 v3, v{sD}, v{sD+1}, v{sD+2}")
    o(f"v_max_u32 v3, v3, v{sD+3}")
    o(f"v_cmp_lt_u32 vcc, 63, v3")
    o(f"s_cmp_lg_u64 vcc, 0")
    o(f"s_cselect_b32 s{S_C}, 1, 0")
    o(f"v_lshrrev_b32 v10, 1, v2")
    o(f"v_sub_u32 v11, 31, v10")
    o(f"v_and_b32 v7, 1, v2")
    o(f"v_cmp_eq_u32 vcc, 1, v7")
    o(f"v_add_u32 v12, 192, v2")
    o(f"v_mov_b32 v7, 0xffff")
    o(f"v_cndmask_b32 v10, v10, v11, vcc")
    o(f"v_and_b32 v11, 32, v2")
    o(f"v_add_u32 v10, v10, v11")
    o(f"v_cmp_gt_u32 vcc, 4, v2")
    o(f"v_cmp_gt_u32 {sr(S_EX,2)}, 25, v10")
    o(f"v_lshlrev_b32 v10, 5, v10")
    o(f"v_cndmask_b32 v12, v7, v12, vcc")
    o("s_waitcnt lgkmcnt(0)")
    o(f"v_mov_b32 v14, v6")
    scan64(o, 14)
    o(f"v_sub_u32 v14, v14, v6")
    for i in range(4): o(f"ds_bpermute_b32 v{sP+i}, v{sB+i}, v14")
    o(f"v_lshl_or_b32 v{sB}, v{sD}, 16, v2")
    o(f"v_add_u32 v3, 64, v2")
    o(f"v_lshl_or_b32 v{sB+1}, v{sD+1}, 16, v3")
    o(f"v_add_u32 v3, 128, v2")
    o(f"v_lshl_or_b32 v{sB+2}, v{sD+2}, 16, v3")
    o(f"v_lshl_or_b32 v{sB+3}, v{sD+3}, 16, v12")
    o("s_waitcnt lgkmcnt(0)")
    for i in range(4):
        o(f"v_add_u32 v{sP+i}, v{sP+i}, v{sR+i}")
        o(f"v_lshlrev_b32 v3, 2, v{sP+i}")
        if i == 3: o("s_mov_b64 exec, 0xff")
        o(f"ds_write_b32 v3, v{sB+i} offset:{SNODE}")
    o("s_mov_b64 exec, -1")
    o(f"ds_read_u16 v{vL}, v10 offset:{SNODE+2}")
    for i in range(4):
        o(f"v_lshrrev_b32 v3, 3, v{sP+i}")
        o(f"v_sub_u32 v6, 31, v3")
        o(f"v_cmp_gt_u32 vcc, 16, v3")
        o(f"v_lshl_or_b32 v6, v6, 3, 4")
        o(f"v_lshlrev_b32 v3, 3, v3")
        o(f"v_cndmask_b32 v{sB+i}, v6, v3, vcc")
        o(f"v_and_b32 v{sP+i}, 7, v{sP+i}")
        o(f"v_lshlrev_b32 v{sP+i}, 3, v{sP+i}")
        o(f"v_add_u32 v{sP+i}, {ELL}, v{sP+i}")
    o("s_waitcnt lgkmcnt(0)")
    o(f"v_cndmask_b32 v{vL}, 0, v{vL}, {sr(S_EX,2)}")
    o(f"v_mov_b32 v{vTB}, v{vL}")
    scan64(o, vTB)
    o("s_nop 0")
    o(f"v_readlane_b32 s{S_A}, v{vTB}, 63")
    o(f"v_sub_u32 v{vTB}, v{vTB}, v{vL}")
    o(f"v_lshl_or_b32 v{vTB}, v{vTB}, 8, v{vL}")
    o(f"s_cmp_gt_u32 s{S_A}, {ELL_ITERS}")
    o(f"s_cselect_b32 s{S_C}, 1, s{S_C}")
    o(f"s_cmp_lg_u32 s{S_C}, 0")
    o(f"s_cbranch_scc0 L_fit")
    o(f"ds_write_b32 v{vZ}, v15 offset:{F_STRUCT}")
    o("s_branch L_sorted")
    o("L_fit:")
    for i in range(4): o(f"ds_bpermute_b32 v{sR+i}, v{sB+i}, v{vTB}")
    o(f"ds_write_b32 v8, v{vTB} offset:{TBL}")
    o("s_waitcnt lgkmcnt(1)")
    for i in range(4):
        o(f"v_lshrrev_b32 v3, 8, v{sR+i}")
        o(f"v_lshl_add_u32 v{sP+i}, v3, 6, v{sP+i}")
        o(f"v_lshl_or_b32 v{sP+i}, v{sR+i}, 24, v{sP+i}")
        o(f"ds_write_b32 v8, v{sP+i} offset:{SLOT+256*i}")
    o("s_branch L_sorted")
    o("L_nosort:")
    o(f"s_cmp_eq_u32 s{S_WAVE}, 14")
    o(f"s_cbranch_scc0 L_nopf")
    o(f"v_lshlrev_b32 v3, 7, v2")
    o(f"s_lshl_b32 s{S_B}, s{S_NODE0}, 7")
    for i in range(4):
        if i == 3: o("s_mov_b64 exec, 0xf")
        o(f"buffer_load_dword v{48+i}, v3, {sr(R_TAB,4)}, s{S_B} offen{SC}")
        if i < 3: o(f"s_add_u32 s{S_B}, s{S_B}, 8192")
    o("s_mov_b64 exec, -1")
    o("L_nopf:")
    o("L_sorted:")
    o("s_setprio 0")
    o(f"v_lshlrev_b32 v{vLO}, 4, v1")
    o(f"v_mul_u32_u24 v{vAB}, 24, v1")
    for p, w in ((0, vWX), (2, vW2)):
        o(f"v_lshlrev_b32 v{w}, 16, v{vWC+p}")
        o(f"v_lshlrev_b32 v{w+1}, 16, v{vWC+p+1}")
        o(f"v_and_b32 v{w+2}, 0xffff0000, v{vWC+p}")
        o(f"v_and_b32 v{w+3}, 0xffff0000, v{vWC+p+1}")
        o(f"v_pk_mul_f32 {vr(w,2)}, {vr(w,2)}, {sr(S_CT,2)} op_sel_hi:[1,0]")
        o(f"v_pk_mul_f32 {vr(w+2,2)}, {vr(w+2,2)}, {sr(S_CT,2)} op_sel_hi:[1,0]")
    o(f"v_add_u32 v{vAB}, {AUX}, v{vAB}")
    o(f"s_lshl_b32 s{S_A}, s{S_NODE0}, 8")
    o(f"s_lshl_b32 s{S_B}, s{S_SL0}, 6")
    o(f"s_add_u32 s{S_A}, s{S_A}, s{S_B}")
    o(f"v_lshl_add_u32 v{vOB}, v1, 3, s{S_A}")
    o(f"v_lshlrev_b32 v8, 2, v2")
    o(f"v_lshrrev_b32 v3, 3, v2")
    o(f"v_lshlrev_b32 v6, 2, v3")
    o(f"v_lshlrev_b32 v5, 3, v3")
    o(f"s_lshl_b32 s{S_A}, s{S_WAVE}, 5")
    o(f"v_add_u32 v14, s{S_A}, v6")
    o(f"s_sub_u32 s{S_A}, {15*32}, s{S_A}")
    o(f"v_add_u32 v12, s{S_A}, v6")
    o("s_waitcnt lgkmcnt(0)")
    o("s_barrier")
    stamp(o, 8)
    o(f"ds_read_b64 v[6:7], v{vZ} offset:{F_STRUCT}")
    o(f"ds_read_b32 v{vTB}, v8 offset:{TBL}")
    o(f"ds_read_b32 v80, v9 offset:{SLOT}")
    o(f"ds_read_b32 v81, v9 offset:{DEG}")
    for r in range(NR):
        o(f"s_mov_b64 exec, {sr(S_MSK+2*r,2)}")
        if r >= 3: o("s_cbranch_execz L_s8a_done")
        o(f"ds_read_b32 v{vDA+r}, v{vDA+r} offset:{SLOT}")
    o("L_s8a_done:")
    o("s_mov_b64 exec, -1")
    o(f"ds_read_u16 v{vNQ}, v14 offset:{SNODE}")
    o(f"ds_read_u16 v10, v12 offset:{SNODE+16*32}")
    o(f"ds_read_u16 v{vNQ+1}, v12 offset:{SNODE}")
    o(f"ds_read_u16 v11, v14 offset:{SNODE+16*32}")
    o("s_waitcnt lgkmcnt(0)")
    o(f"v_readfirstlane_b32 s{S_B}, v6")
    o(f"v_readfirstlane_b32 s{S_MODE}, v7")
    o(f"s_lshl_b32 s{S_A}, s{S_WAVE}, 1")
    o(f"v_readlane_b32 s{S_C}, v{vTB}, s{S_A}")
    o(f"s_or_b32 s{S_B}, s{S_B}, s{S_MODE}")
    o(f"s_cbranch_scc1 L_slow")
    for r in range(NR):
        o(f"s_mov_b64 exec, {sr(S_MSK+2*r,2)}")
        if r >= 3: o("s_cbranch_execz L_s8b_done")
        o(f"v_lshl_add_u32 v{vDA+r}, v{vRK+r}, 6, v{vDA+r}")
        o(f"v_and_b32 v{vDA+r}, 0xffffff, v{vDA+r}")
        o(f"ds_write_b64 v{vDA+r}, {vr(vREC+2*r,2)}")
    o("L_s8b_done:")
    o("s_mov_b64 exec, -1")
    o(f"s_cmp_lt_u32 s{S_WAVE}, 4")
    o(f"s_cbranch_scc0 L_pad_done")
    o(f"v_lshrrev_b32 v82, 24, v80")
    o(f"v_lshl_add_u32 v80, v81, 6, v80")
    o(f"v_and_b32 v80, 0xffffff, v80")
    o(f"v_mov_b32 v6, {DUMMY_ROW << 16}")
    o(f"v_mov_b32 v7, 0")
    o(f"s_movk_i32 s{S_B}, 200")
    o(f"v_cmpx_gt_u32 vcc, s{S_B}, v0")
    o("L_pad:")
    o(f"v_cmpx_gt_u32 vcc, v82, v81")
    o(f"s_cbranch_execz L_pad_done")
    o(f"ds_write_b64 v80, v[6:7]")
    o(f"v_add_u32 v80, 64, v80")
    o(f"v_add_u32 v81, 1, v81")
    o("s_branch L_pad")
    o("L_pad_done:")
    o("s_mov_b64 exec, -1")
    o(f"s_add_u32 s{S_A}, s{S_A}, 1")
    o(f"v_readlane_b32 s{S_L1}, v{vTB}, s{S_A}")
    o(f"s_xor_b32 s{S_A}, s{S_A}, 30")
    o(f"v_readlane_b32 s{S_L3}, v{vTB}, s{S_A}")
    o(f"s_sub_u32 s{S_A}, s{S_A}, 1")
    o(f"v_readlane_b32 s{S_B1}, v{vTB}, s{S_A}")
    o(f"s_and_b32 s{S_CNT}, s{S_C}, 0xff")
    o(f"s_lshr_b32 s{S_C}, s{S_C}, 8")
    o(f"s_and_b32 s{S_L1}, s{S_L1}, 0xff")
    o(f"s_and_b32 s{S_L3}, s{S_L3}, 0xff")
    o(f"s_and_b32 s{S_L2}, s{S_B1}, 0xff")
    o(f"s_lshr_b32 s{S_B1}, s{S_B1}, 8")
    o(f"s_lshl_b32 s{S_C}, s{S_C}, 6")
    o(f"s_add_u32 s{S_C}, s{S_C}, {ELL}")
    o(f"s_lshl_b32 s{S_B1}, s{S_B1}, 6")
    o(f"s_add_u32 s{S_B1}, s{S_B1}, {ELL}")
    o(f"v_add_u32 v{vLA}, s{S_C}, v5")
    stamp(o, 10)
    o(f"s_cmp_eq_u32 s{S_WAVE}, 14")
    o(f"s_cbranch_scc0 L_nopoll2")
    poll_tables(o, "L_pb", 0, 48)
    o("L_nopoll2:")
    o(f"s_cmp_ge_u32 s{S_WAVE}, 7")
    o(f"s_cselect_b32 s{S_NT}, 2, 1")
    o(f"s_mov_b32 s{S_PH}, 0")
    o(f"s_movk_i32 s{S_D}, 128")
    o("s_waitcnt lgkmcnt(0)")
    o(f"v_lshl_or_b32 v{vNQ}, v10, 16, v{vNQ}")
    o(f"v_lshl_or_b32 v{vNQ+1}, v11, 16, v{vNQ+1}")
    o("s_barrier")
    stamp(o, 11)
    o(f"s_movk_i32 s{S_A}, {AUS}")
    o(f"s_movk_i32 s{S_B}, 256")
    o("s_setprio 3")
    vDK = 16; vRKk = 104
    assert vDK + 4*PD <= 64 and vRKk + 2*PD <= 124 and PD >= 8
    def gaddr(R): o(f"v_mad_u32_u16 v{R}, v{R}, s{S_D}, v{vLO} op_sel:[1,0,0,0]")
    o("M_prime:")
    for k in range(PD):
        o(f"ds_read_b64 {vr(vRKk+2*k,2)}, v{vLA} offset:{k*64}")
    for k in range(PD):
        o(f"s_waitcnt lgkmcnt({PD-1-k})")
        gaddr(vRKk+2*k)
        o(f"buffer_load_dwordx4 {vr(vDK+4*k,4)}, v{vRKk+2*k}, {sr(R_TAB,4)}, s{S_PH} offen{SC}")
    def promote():
        o(f"v_mad_u32_u16 v3, v{vNQ}, s{S_A}, v{vAB}")
        o(f"v_mad_u32_u16 v{vOA}, v{vNQ}, s{S_B}, v{vOB}")
        o(f"ds_read2_b64 {vr(vAU,4)}, v3 offset0:0 offset1:1")
        o(f"ds_read_b64 {vr(vAU+4,2)}, v3 offset:16")
        o(f"v_lshrrev_b32 v{vNQ}, 16, v{vNQ}")
        for i in range(0, 8, 2): o(f"v_mov_b64 {vr(vDen+i,2)}, 0")
        o("s_waitcnt lgkmcnt(0)")
        o(f"v_lshlrev_b32 v{vEX}, 16, v{vAU}")
        o(f"v_lshlrev_b32 v{vEX+1}, 16, v{vAU+1}")
        o(f"v_and_b32 v{vAU}, 0xffff0000, v{vAU}")
        o(f"v_and_b32 v{vAU+1}, 0xffff0000, v{vAU+1}")
    promote()
    o(f"s_sub_u32 s{S_CNT}, s{S_CNT}, 1")
    o(f"s_cbranch_scc1 M_sw{PD-1}")
    o("M_loop:")
    for k in range(PD):
        D = vDK + 4*k; R = vRKk + 2*k
        o(f"M_it{k}:")
        o(f"s_waitcnt vmcnt({PD-1})")
        o(f"v_lshlrev_b64 {vr(vT,2)}, 16, {vr(D,2)}")
        o(f"v_pk_fma_f32 {vr(vT+2,2)}, {vr(R,2)}, {vr(vWX+2,2)}, {vr(D,2)} op_sel:[1,0,0] op_sel_hi:[1,1,1]")
        o(f"v_pk_fma_f32 {vr(vT,2)}, {vr(R,2)}, {vr(vWX,2)}, {vr(vT,2)} op_sel:[1,0,0] op_sel_hi:[1,1,1]")
        o(f"ds_read_b64 {vr(R,2)}, v{vLA} offset:{(k+PD)*64}")
        o(f"v_exp_f32 v{vT+2}, v{vT+2}")
        o(f"v_exp_f32 v{vT+3}, v{vT+3}")
        o(f"v_exp_f32 v{vT}, v{vT}")
        o(f"v_exp_f32 v{vT+1}, v{vT+1}")
        o(f"v_lshlrev_b64 {vr(vT+4,2)}, 16, {vr(D+2,2)}")
        o(f"v_pk_add_f32 {vr(vT+2,2)}, {vr(vT+2,2)}, {vr(vAU,2)}")
        o(f"v_pk_add_f32 {vr(vT,2)}, {vr(vT,2)}, {vr(vEX,2)}")
        if k == PD-1:
            o(f"v_add_u32 v{vLA}, {PD*64}, v{vLA}")
        o(f"v_rcp_f32 v{vT+2}, v{vT+2}")
        o(f"v_rcp_f32 v{vT+3}, v{vT+3}")
        o(f"v_rcp_f32 v{vT}, v{vT}")
        o(f"v_rcp_f32 v{vT+1}, v{vT+1}")
        o(f"v_pk_add_f32 {vr(vDen+2,2)}, {vr(vDen+2,2)}, {vr(vT+2,2)}")
        o(f"v_pk_fma_f32 {vr(vNum+2,2)}, {vr(vT+2,2)}, {vr(D+2,2)}, {vr(vNum+2,2)}")
        o(f"v_pk_add_f32 {vr(vDen,2)}, {vr(vDen,2)}, {vr(vT,2)}")
        o(f"v_pk_fma_f32 {vr(vNum,2)}, {vr(vT,2)}, {vr(vT+4,2)}, {vr(vNum,2)}")
        o("s_waitcnt lgkmcnt(0)")
        gaddr(R)
        o(f"s_sub_u32 s{S_CNT}, s{S_CNT}, 1")
        o(f"buffer_load_dwordx4 {vr(D,4)}, v{R}, {sr(R_TAB,4)}, s{S_PH} offen{SC}")
        o(f"s_cbranch_scc1 M_sw{k}")
    o("s_branch M_loop")
    for k in range(PD):
        o(f"M_sw{k}:")
        finalize(o, vDen, vNum, vEX, vAU, vAU+2, vAU+4, vT, vOA)
        o(f"s_sub_u32 s{S_NT}, s{S_NT}, 1")
        o(f"s_cmp_eq_u32 s{S_NT}, 0")
        o(f"s_cbranch_scc1 M_phase")
        o(f"s_cmp_eq_u32 s{S_PH}, 0")
        o(f"s_cbranch_scc1 M_p{k}")
        o("s_setprio 0")
        o(f"s_branch M_q{k}")
        o(f"M_p{k}:")
        o("s_setprio 2")
        o(f"M_q{k}:")
        promote()
        o(f"s_sub_u32 s{S_CNT}, s{S_L1}, 1")
        o(f"s_cbranch_scc1 M_sw{k}")
        o(f"s_branch M_it{(k+1)%PD}")
    o("M_phase:")
    o(f"s_cmp_eq_u32 s{S_PH}, 0")
    o(f"s_cbranch_scc0 L_end")
    o("s_setprio 1")
    stamp(o, 13)
    poll_tables(o, "L_pd", 1, vT)
    o(f"s_mov_b32 s{S_PH}, {TSTRIDE}")
    o(f"v_mov_b64 {vr(vWX,2)}, {vr(vW2,2)}")
    o(f"v_mov_b64 {vr(vWX+2,2)}, {vr(vW2+2,2)}")
    o(f"v_add_u32 v{vAB}, {AUP}, v{vAB}")
    o(f"v_add_u32 v{vOB}, 64, v{vOB}")
    o(f"v_add_u32 v{vLA}, s{S_B1}, v5")
    o(f"v_mov_b32 v{vNQ}, v{vNQ+1}")
    o(f"s_mov_b32 s{S_CNT}, s{S_L2}")
    o(f"s_mov_b32 s{S_L1}, s{S_L3}")
    o(f"s_cmp_le_u32 s{S_WAVE}, 8")
    o(f"s_cselect_b32 s{S_NT}, 2, 1")
    o("s_branch M_prime")
    o("L_slow:")
    vG, vI, vA2, vR2_, vD2, vT2, vAcc = 16, 17, 18, 20, 24, 32, 19
    poll_tables(o, "S_pa", 0, 24)
    poll_tables(o, "S_pb", 1, 24)
    o(f"v_lshrrev_b32 v{vG}, 3, v0")
    o(f"s_mov_b32 s{S_PH}, 0")
    o(f"s_movk_i32 s{S_D}, {AUS}")
    o(f"s_movk_i32 s{S_CNT}, 128")
    o(f"s_mov_b32 s{S_B1}, 0")
    o("S_half:")
    o("s_barrier")
    for i in range(4): o(f"v_mov_b32 v{vD2+i}, 0")
    o(f"v_lshlrev_b32 v3, 4, v0")
    o(f"v_add_u32 v3, {ELL}, v3")
    for i in range(3): o(f"ds_write_b128 v3, {vr(vD2,4)} offset:{i*16384}")
    o(f"s_cmp_lt_u32 s{S_WAVE}, 2")
    o(f"s_cbranch_scc0 S_nofill")
    o(f"ds_write_b128 v3, {vr(vD2,4)} offset:{3*16384}")
    o("S_nofill:")
    o("s_waitcnt lgkmcnt(0)")
    o("s_barrier")
    o(f"s_mov_b32 s{S_PP}, 0")
    o("S_piece:")
    o(f"v_add_u32 v3, s{S_PP}, v{vG}")
    o(f"v_lshlrev_b32 v5, 2, v3")
    o(f"ds_read_b32 v4, v5 offset:{OFFL}")
    o(f"s_movk_i32 s{S_A}, {SEG}")
    o(f"v_mul_u32_u24 v{vA2}, s{S_A}, v3")
    o(f"v_mov_b32 v{vI}, 0")
    o("s_waitcnt lgkmcnt(0)")
    o(f"v_and_b32 v5, 0x7ff, v4")
    o(f"v_lshrrev_b32 v4, 11, v4")
    o(f"v_lshl_add_u32 v{vA2}, v5, 3, v{vA2}")
    o(f"s_mov_b32 s{S_A}, {REC_OFF}")
    o("S_rec:")
    o(f"v_cmpx_gt_u32 vcc, v4, v{vI}")
    o(f"s_cbranch_execz S_rec_done")
    o(f"buffer_load_dwordx2 {vr(vR2_,2)}, v{vA2}, {sr(R_WS,4)}, s{S_A} offen{SC}")
    o("s_waitcnt vmcnt(0)")
    o(f"v_bfe_u32 v5, v{vR2_}, 2, 14")
    o(f"v_mad_u32_u16 v{vR2_}, v{vR2_}, s{S_CNT}, v{vLO} op_sel:[1,0,0,0]")
    o(f"v_mad_u32_u24 v3, v5, s{S_D}, v{vAB}")
    o(f"v_lshlrev_b32 v{vAcc}, 8, v5")
    o(f"v_lshl_add_u32 v{vAcc}, v1, 5, v{vAcc}")
    o(f"v_add_u32 v{vAcc}, {ELL}, v{vAcc}")
    o(f"buffer_load_dwordx4 {vr(vD2,4)}, v{vR2_}, {sr(R_TAB,4)}, s{S_B1} offen{SC}")
    o(f"ds_read_b64 {vr(vAU,2)}, v3")
    o("s_waitcnt vmcnt(0) lgkmcnt(0)")
    T = vT2
    o(f"v_lshlrev_b64 {vr(T,2)}, 16, {vr(vD2,2)}")
    o(f"v_lshlrev_b64 {vr(T+4,2)}, 16, {vr(vD2+2,2)}")
    o(f"v_lshlrev_b32 v{T+6}, 16, v{vAU}")
    o(f"v_lshlrev_b32 v{T+7}, 16, v{vAU+1}")
    o(f"v_and_b32 v{vAU}, 0xffff0000, v{vAU}")
    o(f"v_and_b32 v{vAU+1}, 0xffff0000, v{vAU+1}")
    o(f"v_lshrrev_b32 v5, 5, v5")
    o(f"v_lshl_add_u32 v5, v5, 1, s{S_PH}")
    o(f"v_lshrrev_b32 v5, v5, s{S_MODE}")
    o(f"v_and_b32 v5, 1, v5")
    o(f"v_cmp_eq_u32 vcc, 0, v5")
    for r in (T+6, T+7, vAU, vAU+1):
        o(f"v_log_f32 v3, v{r}")
        o("s_nop 0")
        o(f"v_cndmask_b32 v{r}, v{r}, -v3, vcc")
    o(f"v_pk_add_f32 {vr(T,2)}, {vr(T,2)}, {vr(T+6,2)}")
    o(f"v_pk_add_f32 {vr(T+2,2)}, {vr(vD2,2)}, {vr(vAU,2)}")
    o(f"v_pk_fma_f32 {vr(T,2)}, {vr(vR2_,2)}, {vr(vWX,2)}, {vr(T,2)} op_sel:[1,0,0] op_sel_hi:[1,1,1]")
    o(f"v_pk_fma_f32 {vr(T+2,2)}, {vr(vR2_,2)}, {vr(vWX+2,2)}, {vr(T+2,2)} op_sel:[1,0,0] op_sel_hi:[1,1,1]")
    for i in range(4): o(f"v_exp_f32 v{T+i}, v{T+i}")
    o("s_nop 0")
    o(f"v_pk_add_f32 {vr(T,2)}, {vr(T,2)}, 1.0 op_sel_hi:[1,0]")
    o(f"v_pk_add_f32 {vr(T+2,2)}, {vr(T+2,2)}, 1.0 op_sel_hi:[1,0]")
    for i in range(4): o(f"v_rcp_f32 v{T+i}, v{T+i}")
    o("s_nop 0")
    o(f"v_pk_mul_f32 {vr(T+4,2)}, {vr(T+4,2)}, {vr(T,2)}")
    o(f"v_pk_mul_f32 {vr(T+6,2)}, {vr(vD2+2,2)}, {vr(T+2,2)}")
    for i in range(8): o(f"ds_add_f32 v{vAcc}, v{T+i} offset:{4*i}")
    o("s_mov_b64 exec, -1")
    o(f"v_add_u32 v{vI}, 1, v{vI}")
    o(f"v_add_u32 v{vA2}, 8, v{vA2}")
    o("s_branch S_rec")
    o("S_rec_done:")
    o("s_mov_b64 exec, -1")
    o(f"s_add_u32 s{S_PP}, s{S_PP}, 128")
    o(f"s_cmp_lt_u32 s{S_PP}, 256")
    o("s_cbranch_scc1 S_piece")
    o("s_waitcnt lgkmcnt(0)")
    o("s_barrier")
    o(f"s_mov_b32 s{S_PP}, 0")
    o(f"s_movk_i32 s{S_C}, {NPB}")
    o("S_fin:")
    o(f"v_add_u32 v5, s{S_PP}, v{vG}")
    o(f"v_mad_u32_u24 v3, v5, s{S_D}, v{vAB}")
    o(f"v_lshlrev_b32 v{vAcc}, 8, v5")
    o(f"v_lshl_add_u32 v{vAcc}, v1, 5, v{vAcc}")
    o(f"v_add_u32 v{vAcc}, {ELL}, v{vAcc}")
    o(f"v_lshl_add_u32 v{vOA}, v5, 8, v{vOB}")
    o(f"v_cmpx_gt_u32 vcc, s{S_C}, v5")
    o(f"s_cbranch_execz S_fin_next")
    o(f"ds_read2_b64 {vr(vAU+2,4)}, v3 offset0:1 offset1:2")
    o(f"ds_read_b128 {vr(24,4)}, v{vAcc}")
    o(f"ds_read_b128 {vr(28,4)}, v{vAcc} offset:16")
    o("s_waitcnt lgkmcnt(0)")
    finalize(o, 24, 28, None, None, vAU+2, vAU+4, vT, vOA)
    o("S_fin_next:")
    o("s_mov_b64 exec, -1")
    o(f"s_add_u32 s{S_PP}, s{S_PP}, 128")
    o(f"s_cmp_lt_u32 s{S_PP}, 256")
    o("s_cbranch_scc1 S_fin")
    o(f"v_mov_b64 {vr(vWX,2)}, {vr(vW2,2)}")
    o(f"v_mov_b64 {vr(vWX+2,2)}, {vr(vW2+2,2)}")
    o(f"v_add_u32 v{vAB}, {AUP}, v{vAB}")
    o(f"v_add_u32 v{vOB}, 64, v{vOB}")
    o(f"s_mov_b32 s{S_B1}, {TSTRIDE}")
    o(f"s_add_u32 s{S_PH}, s{S_PH}, 1")
    o(f"s_cmp_lt_u32 s{S_PH}, 2")
    o("s_cbranch_scc1 S_half")
    o("L_end:")
    stamp(o, 12)
    stamp_flush(o, 14)
    o("L_exit:")
    o("s_endpgm")

def main():
    global STAMP, PD
    for a in sys.argv[2:]:
        if a.startswith("stamp="): STAMP = int(a[6:])
        elif a.startswith("pd="): PD = int(a[3:])
        else: OPT.add(a)
    ref = open(f"cdna_kernels/{NAME}.s.ref").read().split("\n")
    head = [l for l in ref if l.startswith(";") and "@launch" not in l]
    out = "\n".join(head) + "\n"
    out += f"; @launch grid=(256,1,1) block=(1024,1,1) lds={LDS_SIZE}\n"
    out += f'.amdgcn_target "amdgcn-amd-amdhsa--gfx950"\n.text\n.globl {NAME}_kernel\n.p2align 8\n.type {NAME}_kernel,@function\n{NAME}_kernel:\n'
    o = Asm(); kernel(o); out += o.text()
    out += f""".section .rodata,"a"
.p2align 6
.amdhsa_kernel {NAME}_kernel
  .amdhsa_next_free_vgpr 128
  .amdhsa_next_free_sgpr {102 if STAMP is not None else 90}
  .amdhsa_accum_offset 128
  .amdhsa_group_segment_fixed_size 0
  .amdhsa_kernarg_size 96
  .amdhsa_user_sgpr_count 2
  .amdhsa_user_sgpr_kernarg_segment_ptr 1
  .amdhsa_system_sgpr_workgroup_id_x 1
.end_amdhsa_kernel
"""
    path = sys.argv[1] if len(sys.argv) > 1 else f"cdna_kernels/{NAME}.s"
    open(path, "w").write(out)
    print("wrote", path, "LDS", LDS_SIZE, "ELL_ITERS", ELL_ITERS)
main()
```

```python
import sys

NAME = "standalone__edge_featured_mpnn_gatedgcn__graph"
N = 25000; E = 400000
NPB = 196; CH = 1564
TROWS = 25096; TSTRIDE = TROWS*128
DUMMY_ROW = 25088
SEG = 12544
REC_OFF = 4*TSTRIDE
OFF_OFF = REC_OFF + 256*SEG
TF_OFF = OFF_OFF + 128*2048
WS_USED = TF_OFF + 4096
LOG2E_NEG = 0xBFB8AA3B; TINY = 0x03800000; EPS = 0x358637BD
SC = " sc1"
OUTF = " sc1"
GSC = " sc1"
PD = 4
TEAM0 = 9
NL = 5
NR = 2*NL
HISTA = 0; BASE = 512; DEG = 1024; HIST2 = 2048; FLAG = 2304; SLOT = 2432; TBL = SLOT + 1024; SNODE = TBL + 256; OFFL = SNODE + 1024 + 128
XT = OFFL + 1024; XTS = 8320
WOFF = XT + 7*XTS
RECS = WOFF + 65536
LDS_END = RECS + SEG
AUX = XT; AUS = 200; AUP = 200*AUS
ELL = AUX + 2*AUP
ELL_ITERS = 512
LDS_SIZE = LDS_END + 2048
assert ELL % 16 == 0 and XT % 128 == 0
F_STRUCT, F_RANGE, F_SOFT, F_OFFL, F_W, F_GO, F_TAG, F_TC, F_GD, F_WI = FLAG, FLAG+4, FLAG+8, FLAG+12, FLAG+16, FLAG+20, FLAG+24, FLAG+32, FLAG+64, FLAG+68

STAMP = None; OPT = set(); PFN = 170
def st_reg(i): return 90 + 2*i if i < 6 else 36 + 2*(i-6) if i < 12 else 24 + 2*(i-12)
def gstamp(o, i):
    if "gd" in OPT: stamp(o, i, True)
def stamp(o, i, force=False):
    if STAMP is None: return
    if "gd" in OPT and not force and 5 <= i <= 10: return
    if "clk" in OPT:
        if i in (1, 2): return
        if i == 11: o(f"s_memtime s[{st_reg(1)}:{st_reg(1)+1}]")
        if i == 12: o(f"s_memtime s[{st_reg(2)}:{st_reg(2)+1}]")
    o(f"s_memrealtime s[{st_reg(i)}:{st_reg(i)+1}]")
    o("s_waitcnt lgkmcnt(0)")
def stamp_flush(o, n):
    if STAMP is None: return
    o(f"s_cmp_eq_u32 s{S_WAVE}, {STAMP}")
    o(f"s_cbranch_scc0 L_stf")
    o(f"s_mov_b64 exec, 1")
    o(f"s_mov_b32 s{R_WS+2}, {64<<20}")
    o(f"s_lshl_b32 s{S_A}, s{S_WG}, 7")
    o(f"s_add_u32 s{S_A}, s{S_A}, {32<<20}")
    o(f"v_mov_b32 v0, 0")
    for i in range(n):
        o(f"v_mov_b32 v2, s{st_reg(i)}")
        o(f"v_mov_b32 v3, s{st_reg(i)+1}")
        o(f"buffer_store_dwordx2 v[2:3], v0, {sr(R_WS,4)}, s{S_A} offen offset:{8*i}")
    o(f"L_stf:")

class Asm:
    def __init__(self): self.lines = []
    def __call__(self, s):
        for l in s.split("\n"):
            l = l.strip()
            if l: self.lines.append(("" if l.endswith(":") else "    ") + l)
    def text(self): return "\n".join(self.lines) + "\n"

def vr(a, n): return f"v[{a}:{a+n-1}]"
def sr(a, n): return f"s[{a}:{a+n-1}]"

def srd(o, d, base, nbytes):
    o(f"s_mov_b32 s{d}, s{base}")
    o(f"s_and_b32 s{d+1}, s{base+1}, 0xffff")
    o(f"s_mov_b32 s{d+2}, {nbytes}")
    o(f"s_mov_b32 s{d+3}, 0x20000")

def scan64(o, v):
    for sh in (1, 2, 4, 8):
        o("s_nop 1")
        o(f"v_add_u32_dpp v{v}, v{v}, v{v} row_shr:{sh} row_mask:0xf bank_mask:0xf bound_ctrl:0")
    o("s_nop 1")
    o(f"v_add_u32_dpp v{v}, v{v}, v{v} row_bcast:15 row_mask:0xa bank_mask:0xf")
    o("s_nop 1")
    o(f"v_add_u32_dpp v{v}, v{v}, v{v} row_bcast:31 row_mask:0xc bank_mask:0xf")

def gemm_pair(o, vW, vX, aP, aQ, vWaddr, base_off):
    def rd(t):
        for m in range(2):
            b = vW + (t & 1)*8 + m*4
            off = base_off + m*16384 + (t & 1)*2048
            o(f"ds_read_b64_tr_b16 {vr(b,2)}, v{vWaddr + (t >> 1)} offset:{off}")
            o(f"ds_read_b64_tr_b16 {vr(b+2,2)}, v{vWaddr + (t >> 1)} offset:{off + 512}")
    rd(0); rd(1)
    for t in range(8):
        o(f"s_waitcnt lgkmcnt({4 if t < 7 else 0})")
        for m, acc in enumerate((aP, aQ)):
            b = vW + (t & 1)*8 + m*4
            c = "0" if t == 0 else vr(acc, 16)
            o(f"v_mfma_f32_32x32x16_bf16 {vr(acc,16)}, {vr(b,4)}, {vr(vX+4*t,4)}, {c}")
        if t + 2 < 8: rd(t+2)
    o("s_nop 15")

def encode4(o, a, d):
    for i in range(4):
        o(f"v_add_u32 v{a+i}, s{S_HALF}, v{a+i}")
    for i in range(1, 4):
        o(f"v_sub_u32_sdwa v{a+i}, v{a+i}, v{a+i-1} dst_sel:DWORD dst_unused:UNUSED_PAD src0_sel:DWORD src1_sel:WORD_1")
    o(f"v_perm_b32 v{d}, v{a+1}, v{a}, s{S_PERM}")
    o(f"v_perm_b32 v{d+1}, v{a+3}, v{a+2}, s{S_PERM}")

S_WG = 2; S_NK = 3
S_X, S_E, S_SRC, S_DST, S_WA, S_WB, S_WC, S_WU, S_WV, S_OUT, S_DBG, S_WS = 4, 6, 8, 10, 12, 14, 16, 18, 20, 22, 24, 26
S_MSK = 4
R_WS = 28; R_W = 32; R_T0 = 36; R_T1 = 40; R_T2 = 44; R_X = 48; R_TAB = 52; R_OUT = 56; R_DBG = 60
S_WAVE = 64; S_HALF = 65; S_PERM = 66; S_SL0 = 67
S_CT = 68; S_EX = 70; S_EPS = 72
S_A = 74; S_B = 75; S_C = 76; S_D = 77
S_BUCKET = 78; S_NODE0 = 79
S_CNT = 80; S_L1 = 81; S_L2 = 82; S_L3 = 83; S_NT = 84; S_MODE = 85; S_NH = 86; S_SPIN = 87; S_PH = 88; S_B1 = 89
S_SL = S_L1; S_TILE = S_L2; S_FB = S_L3
S_PP = S_L2
S_SO = 4; S_TASK = 5; S_CUT = 6; S_STEP = 7
vZ = 13

def spin_bound(o): o(f"s_mov_b32 s{S_SPIN}, 0x40000")
def spin_tail(o, lab, sleep):
    if sleep: o(f"s_sleep {sleep}")
    o(f"s_sub_u32 s{S_SPIN}, s{S_SPIN}, 1")
    o(f"s_cbranch_scc0 {lab}")

def lds_wait(o, lab, vA, off, target, vT, sleep=1):
    spin_bound(o)
    o(f"{lab}:")
    o(f"ds_read_b32 v{vT}, v{vA} offset:{off}")
    o("s_waitcnt lgkmcnt(0)")
    o(f"v_readfirstlane_b32 s{S_A}, v{vT}")
    o(f"s_cmp_ge_u32 s{S_A}, {target}")
    o(f"s_cbranch_scc1 {lab}_ok")
    spin_tail(o, lab, sleep)
    o(f"{lab}_ok:")

def lds_inc(o, vA, off):
    o("s_mov_b64 exec, 1")
    o(f"ds_add_u32 v{vA}, v15 offset:{off}")
    o("s_mov_b64 exec, -1")

def soft_barrier(o, lab, target, vT):
    o("s_waitcnt lgkmcnt(0)")
    lds_inc(o, vZ, F_SOFT)
    lds_wait(o, lab, vZ, F_SOFT, target, vT, 0)

def get_tag(o, lab):
    spin_bound(o)
    o(f"{lab}:")
    o(f"buffer_load_dwordx2 v[6:7], v{vZ}, {sr(R_DBG,4)}, 0 offen sc1")
    o("s_waitcnt vmcnt(0)")
    o(f"v_readfirstlane_b32 s{S_NK}, v6")
    o(f"v_readfirstlane_b32 s{S_NH}, v7")
    o(f"s_cmp_lg_u32 s{S_NH}, 0")
    o(f"s_cbranch_scc1 {lab}_ok")
    spin_tail(o, lab, 4)
    o(f"{lab}_ok:")

def poll_tables(o, lab, ph, v):
    o(f"v_lshlrev_b32 v3, 4, v2")
    o(f"s_lshl_b32 s{S_C}, s{S_SL0}, 10")
    o(f"s_add_u32 s{S_C}, s{S_C}, {TF_OFF + 1024*ph}")
    spin_bound(o)
    o(f"{lab}:")
    o(f"buffer_load_dwordx4 {vr(v,4)}, v3, {sr(R_WS,4)}, s{S_C} offen sc1")
    o("s_waitcnt vmcnt(0)")
    o(f"v_xor_b32 v{v}, s{S_NK}, v{v}")
    o(f"v_xor_b32 v{v+1}, s{S_NH}, v{v+1}")
    o(f"v_xor_b32 v{v+2}, s{S_NK}, v{v+2}")
    o(f"v_xor_b32 v{v+3}, s{S_NH}, v{v+3}")
    o(f"v_or3_b32 v{v}, v{v}, v{v+1}, v{v+2}")
    o(f"v_or_b32 v{v}, v{v}, v{v+3}")
    o(f"v_cmp_ne_u32 vcc, 0, v{v}")
    o(f"s_cbranch_vccz {lab}_ok")
    spin_tail(o, lab, 2)
    o(f"{lab}_ok:")

def publish_tf(o, ph):
    o(f"s_lshl_b32 s{S_B}, s{S_SL0}, 7")
    o(f"s_add_u32 s{S_B}, s{S_B}, s{S_BUCKET}")
    o(f"s_lshl_b32 s{S_B}, s{S_B}, 3")
    o(f"s_add_u32 s{S_B}, s{S_B}, {TF_OFF + 1024*ph}")
    o(f"v_mov_b32 v6, s{S_NK}")
    o(f"v_mov_b32 v7, s{S_NH}")
    o("s_mov_b64 exec, 1")
    o(f"buffer_store_dwordx2 v[6:7], v{vZ}, {sr(R_WS,4)}, s{S_B} offen sc1")
    o("s_mov_b64 exec, -1")

def finalize(o, vDen, vNum, vIX, vIY, vU, vXr, vT, vOA):
    if vIX is not None:
        o(f"v_pk_fma_f32 {vr(vDen,2)}, {vr(vDen,2)}, {vr(vIX,2)}, {sr(S_EPS,2)}")
        o(f"v_pk_fma_f32 {vr(vDen+2,2)}, {vr(vDen+2,2)}, {vr(vIY,2)}, {sr(S_EPS,2)}")
        o(f"v_pk_mul_f32 {vr(vNum,2)}, {vr(vNum,2)}, {vr(vIX,2)}")
        o(f"v_pk_mul_f32 {vr(vNum+2,2)}, {vr(vNum+2,2)}, {vr(vIY,2)}")
    else:
        o(f"v_pk_add_f32 {vr(vDen,2)}, {vr(vDen,2)}, {sr(S_EPS,2)}")
        o(f"v_pk_add_f32 {vr(vDen+2,2)}, {vr(vDen+2,2)}, {sr(S_EPS,2)}")
    o(f"v_lshlrev_b32 v{vT}, 16, v{vU}")
    o(f"v_lshlrev_b32 v{vT+1}, 16, v{vU+1}")
    o(f"v_and_b32 v{vT+2}, 0xffff0000, v{vU}")
    o(f"v_and_b32 v{vT+3}, 0xffff0000, v{vU+1}")
    for i in range(4): o(f"v_rcp_f32 v{vDen+i}, v{vDen+i}")
    o(f"v_lshlrev_b32 v{vT+4}, 16, v{vXr}")
    o(f"v_lshlrev_b32 v{vT+5}, 16, v{vXr+1}")
    o(f"v_pk_fma_f32 {vr(vT,2)}, {vr(vNum,2)}, {vr(vDen,2)}, {vr(vT,2)}")
    o(f"v_pk_fma_f32 {vr(vT+2,2)}, {vr(vNum+2,2)}, {vr(vDen+2,2)}, {vr(vT+2,2)}")
    o(f"v_and_b32 v{vT+6}, 0xffff0000, v{vXr}")
    o(f"v_and_b32 v{vT+7}, 0xffff0000, v{vXr+1}")
    for i in range(4): o(f"v_max_f32 v{vT+i}, 0, v{vT+i}")
    o(f"v_pk_add_f32 {vr(vT,2)}, {vr(vT,2)}, {vr(vT+4,2)}")
    o(f"v_pk_add_f32 {vr(vT+2,2)}, {vr(vT+2,2)}, {vr(vT+6,2)}")
    o(f"v_cvt_pk_bf16_f32 v{vT+4}, v{vT}, v{vT+2}")
    o(f"v_cvt_pk_bf16_f32 v{vT+5}, v{vT+1}, v{vT+3}")
    o(f"buffer_store_dwordx2 {vr(vT+4,2)}, v{vOA}, {sr(R_OUT,4)}, 0 offen{OUTF}")

def xsrc(o):
    o(f"v_lshrrev_b32 v12, 4, v2")
    o(f"v_lshlrev_b32 v3, 2, v12")
    o(f"v_and_b32 v4, 15, v2")
    o(f"v_xor_b32 v3, v3, v4")
    o(f"v_lshlrev_b32 v3, 4, v3")
    o(f"v_lshl_add_u32 v12, v12, 8, v3")

def kernel(o):
    vX = 16; vW = 48; aP = 64; aQ = 80; vD = 96; vREC = 104
    vWA = 104
    vWC = 124
    vSTG = 8
    NTM = 16 - TEAM0
    o(f"s_cmp_ge_u32 s{S_WG}, 256")
    o(f"s_cbranch_scc1 L_exit")
    stamp(o, 0)
    o(f"s_load_dwordx16 s[4:19], s[0:1], 0")
    o(f"s_load_dwordx8 s[20:27], s[0:1], 64")
    o(f"s_getpc_b64 {sr(S_EX,2)}")
    o(f"v_lshlrev_b32 v3, 6, v0")
    o(f"s_movk_i32 s{S_A}, {PFN}")
    o(f"v_cmpx_gt_u32 vcc, s{S_A}, v0")
    o(f"global_load_dword v123, v3, {sr(S_EX,2)}")
    o("s_mov_b64 exec, -1")
    o(f"v_lshrrev_b32 v1, 6, v0")
    o(f"v_and_b32 v2, 63, v0")
    o(f"v_readfirstlane_b32 s{S_WAVE}, v1")
    o(f"v_lshlrev_b32 v9, 2, v0")
    o(f"v_mov_b32 v{vZ}, 0")
    o(f"s_movk_i32 s{S_A}, {SLOT//4}")
    o(f"v_cmpx_gt_u32 vcc, s{S_A}, v0")
    o(f"ds_write_b32 v9, v{vZ}")
    o("s_mov_b64 exec, -1")
    o(f"s_cmp_lt_u32 s{S_WAVE}, {TEAM0}")
    o(f"s_cbranch_scc1 L_noprio")
    o("s_setprio 3")
    o("L_noprio:")
    o(f"s_mov_b32 s{S_HALF}, 0x8000")
    o(f"s_mov_b32 s{S_PERM}, 0x07060302")
    o(f"s_mov_b32 s{S_CT}, {LOG2E_NEG:#x}")
    o(f"s_mov_b32 s{S_CT+1}, {TINY:#x}")
    o(f"s_mov_b32 s{S_EPS}, {EPS:#x}")
    o(f"s_mov_b32 s{S_EPS+1}, {EPS:#x}")
    o(f"s_bfe_u32 s{S_SL0}, s{S_WG}, 0x10002")
    o(f"s_lshl_b32 s{S_SL0}, s{S_SL0}, 1")
    o(f"s_lshr_b32 s{S_BUCKET}, s{S_WG}, 3")
    o(f"s_and_b32 s{S_A}, s{S_WG}, 3")
    o(f"s_lshl_b32 s{S_A}, s{S_A}, 5")
    o(f"s_add_u32 s{S_BUCKET}, s{S_BUCKET}, s{S_A}")
    o(f"s_mul_i32 s{S_NODE0}, s{S_BUCKET}, {NPB}")
    o(f"v_mov_b32 v15, 1")
    o(f"v_and_b32 v1, 7, v2")
    o(f"v_lshlrev_b32 v14, 3, v1")
    o(f"v_subrev_u32 v4, {TEAM0*64}, v0")
    o(f"v_lshlrev_b32 v3, 4, v4")
    o(f"v_lshlrev_b32 v5, 3, v4")
    o(f"s_mul_i32 s{S_C}, s{S_WG}, {CH*4}")
    o(f"s_mul_i32 s{S_B}, s{S_WG}, {CH*2}")
    o(f"v_lshrrev_b32 v12, 3, v2")
    o(f"v_lshrrev_b32 v6, 2, v2")
    o(f"v_and_b32 v6, 4, v6")
    o(f"v_xor_b32 v6, v6, v1")
    o(f"v_lshlrev_b32 v6, 4, v6")
    o(f"v_lshl_add_u32 v12, v12, 8, v6")
    o("s_waitcnt lgkmcnt(0)")
    srd(o, R_T0, S_DST, E*4)
    srd(o, R_T1, S_SRC, E*4)
    srd(o, R_T2, S_E, E*2)
    vDST, vSRC, vE, vB, vR, vRec = 16, 20, 24, 28, 32, 36
    o(f"s_cmp_lt_u32 s{S_WAVE}, {TEAM0}")
    o(f"s_cbranch_scc1 L_noedge")
    o(f"buffer_load_dwordx4 {vr(vDST,4)}, v3, {sr(R_T0,4)}, s{S_C} offen")
    o(f"buffer_load_dwordx4 {vr(vSRC,4)}, v3, {sr(R_T1,4)}, s{S_C} offen")
    o(f"buffer_load_dwordx2 {vr(vE,2)}, v5, {sr(R_T2,4)}, s{S_B} offen")
    o("L_noedge:")
    o("s_barrier")
    o(f"s_cmp_lt_u32 s{S_WAVE}, 8")
    o(f"s_cbranch_scc0 L_now")
    o(f"s_bitcmp1_b32 s{S_WAVE}, 2")
    o(f"s_cselect_b32 s{S_A}, s{S_WA}, s{S_WB}")
    o(f"s_cselect_b32 s{S_B}, s{S_WA+1}, s{S_WB+1}")
    o(f"s_cselect_b32 s{S_C}, s{S_WU}, s{S_WV}")
    o(f"s_cselect_b32 s{S_D}, s{S_WU+1}, s{S_WV+1}")
    o(f"s_bitcmp1_b32 s{S_WAVE}, 1")
    o(f"s_cselect_b32 s{R_W}, s{S_C}, s{S_A}")
    o(f"s_cselect_b32 s{R_W+1}, s{S_D}, s{S_B}")
    o(f"s_and_b32 s{R_W+1}, s{R_W+1}, 0xffff")
    o(f"s_mov_b32 s{R_W+2}, 32768")
    o(f"s_mov_b32 s{R_W+3}, 0x20000")
    o(f"s_and_b32 s{S_A}, s{S_WAVE}, 1")
    o(f"s_lshl_b32 s{S_A}, s{S_A}, 14")
    o(f"s_lshl_b32 s{S_B}, s{S_SL0}, 6")
    o(f"s_add_u32 s{S_A}, s{S_A}, s{S_B}")
    o(f"s_lshl_b32 s{S_C}, s{S_WAVE}, 13")
    for i in range(8):
        o(f"s_add_u32 m0, s{S_C}, {WOFF + 1024*i}")
        o(f"s_add_u32 s{S_D}, s{S_A}, {2048*i}")
        o(f"buffer_load_dwordx4 v12, {sr(R_W,4)}, s{S_D} offen lds")
    lds_inc(o, vZ, F_WI)
    o("L_now:")
    srd(o, R_W, S_WC, 256)
    o(f"s_lshl_b32 s{S_B}, s{S_SL0}, 6")
    o(f"buffer_load_dwordx2 {vr(vWC,2)}, v14, {sr(R_W,4)}, s{S_B} offen")
    o(f"buffer_load_dwordx2 {vr(vWC+2,2)}, v14, {sr(R_W,4)}, s{S_B} offen offset:64")
    srd(o, R_X, S_X, N*256)
    srd(o, R_WS, S_WS, WS_USED)
    srd(o, R_OUT, S_OUT, N*256)
    srd(o, R_DBG, S_DBG, 256)
    o(f"s_mul_i32 s{S_A}, s{S_SL0}, {TSTRIDE}")
    o(f"s_add_u32 s{R_TAB}, s{S_WS}, s{S_A}")
    o(f"s_addc_u32 s{R_TAB+1}, s{S_WS+1}, 0")
    o(f"s_and_b32 s{R_TAB+1}, s{R_TAB+1}, 0xffff")
    o(f"s_mov_b32 s{R_TAB+2}, {2*TSTRIDE}")
    o(f"s_mov_b32 s{R_TAB+3}, 0x20000")
    o(f"s_cmp_lt_u32 s{S_WAVE}, {TEAM0}")
    o(f"s_cbranch_scc1 L_gemm")
    o(f"s_cmp_eq_u32 s{S_WAVE}, 14")
    o(f"s_cbranch_scc0 L_notag")
    o(f"s_cmp_eq_u32 s{S_WG}, 0")
    o(f"s_cbranch_scc0 L_notag")
    o(f"s_memrealtime {sr(S_EX,2)}")
    o("s_waitcnt lgkmcnt(0)")
    o(f"s_lshl_b32 s{S_A}, s{S_EX}, 22")
    o(f"s_lshr_b64 {sr(S_EX,2)}, {sr(S_EX,2)}, 10")
    o(f"s_or_b32 s{S_B}, s{S_EX}, 0x80000000")
    o(f"v_mov_b32 v6, s{S_A}")
    o(f"v_mov_b32 v7, s{S_B}")
    o("s_mov_b64 exec, 1")
    o(f"buffer_store_dwordx2 v[6:7], v{vZ}, {sr(R_DBG,4)}, 0 offen sc1")
    o("s_mov_b64 exec, -1")
    o("L_notag:")
    o(f"s_cmp_eq_u32 s{S_WG}, 255")
    o(f"s_movk_i32 s{S_C}, {CH//4}")
    o(f"s_cselect_b32 s{S_C}, {(E-255*CH)//4}, s{S_C}")
    o(f"s_mov_b32 s{S_B}, 85599")
    o(f"s_movk_i32 s{S_D}, {NPB}")
    o("s_waitcnt vmcnt(2)")
    stamp(o, 1)
    for r in range(4):
        o(f"v_mul_u32_u24 v{vB+r}, s{S_B}, v{vDST+r}")
        o(f"v_lshrrev_b32 v{vB+r}, 24, v{vB+r}")
        o(f"v_mul_u32_u24 v3, s{S_D}, v{vB+r}")
        o(f"v_sub_u32 v3, v{vDST+r}, v3")
        o(f"v_lshlrev_b32 v3, 2, v3")
        o(f"v_lshl_or_b32 v{vRec+2*r}, v{vSRC+r}, 16, v3")
        o(f"v_lshlrev_b32 v{vB+r}, 2, v{vB+r}")
        if r & 1: o(f"v_and_b32 v{vRec+2*r+1}, 0xffff0000, v{vE+(r>>1)}")
        else:     o(f"v_lshlrev_b32 v{vRec+2*r+1}, 16, v{vE+(r>>1)}")
    o(f"v_cmpx_gt_u32 vcc, s{S_C}, v4")
    for r in range(4):
        o(f"ds_add_rtn_u32 v{vR+r}, v{vB+r}, v15 offset:{HISTA}")
    o("s_mov_b64 exec, -1")
    o(f"v_lshlrev_b32 v8, 3, v2")
    soft_barrier(o, "L_sb1", NTM, 3)
    o(f"ds_read_b64 v[6:7], v8 offset:{HISTA}")
    o("s_waitcnt lgkmcnt(0)")
    o(f"v_add_u32 v11, v6, v7")
    scan64(o, 11)
    o(f"v_sub_u32 v11, v11, v7")
    o(f"v_sub_u32 v10, v11, v6")
    o(f"ds_write_b64 v8, v[10:11] offset:{BASE}")
    for r in range(4):
        o(f"ds_read_b32 v{vDST+r}, v{vB+r} offset:{BASE}")
    o(f"v_lshl_or_b32 v10, v6, 11, v10")
    o(f"v_lshl_or_b32 v11, v7, 11, v11")
    o(f"v_mov_b32 v3, {RECS}")
    o("s_waitcnt lgkmcnt(0)")
    o(f"v_cmpx_gt_u32 vcc, s{S_C}, v4")
    for r in range(4):
        o(f"v_add_u32 v{vDST+r}, v{vDST+r}, v{vR+r}")
        o(f"v_lshl_add_u32 v{vDST+r}, v{vDST+r}, 3, v3")
        o(f"ds_write_b64 v{vDST+r}, {vr(vRec+2*r,2)}")
    o("s_mov_b64 exec, -1")
    soft_barrier(o, "L_sb2", 2*NTM, 3)
    stamp(o, 2)
    o(f"s_cmp_lt_u32 s{S_WAVE}, 14")
    o(f"s_cbranch_scc1 L_gemm")
    o(f"s_cmp_eq_u32 s{S_WAVE}, 14")
    o(f"s_cbranch_scc1 L_w14")
    o(f"v_lshlrev_b32 v4, 4, v2")
    o(f"v_add_u32 v12, {RECS}, v4")
    o(f"s_mul_i32 s{S_B}, s{S_WG}, {SEG}")
    o(f"s_add_u32 s{S_B}, s{S_B}, {REC_OFF}")
    for i in range(12):
        o(f"ds_read_b128 {vr(16+4*i,4)}, v12 offset:{i*1024}")
    o("s_mov_b64 exec, 0xffff")
    o(f"ds_read_b128 {vr(64,4)}, v12 offset:{12*1024}")
    o("s_mov_b64 exec, -1")
    for i in range(13):
        if i == 12: o("s_mov_b64 exec, 0xffff")
        if i and i % 4 == 0: o(f"s_add_u32 s{S_B}, s{S_B}, 4096")
        o(f"s_waitcnt lgkmcnt({12-i})")
        o(f"buffer_store_dwordx4 {vr(16+4*i,4)}, v4, {sr(R_WS,4)}, s{S_B} offen offset:{(i&3)*1024}{SC}")
    o("s_mov_b64 exec, -1")
    stamp(o, 3)
    get_tag(o, "L_ga")
    o(f"ds_write_b32 v{vZ}, v15 offset:{F_GO}")
    stamp(o, 4)
    o(f"v_or_b32 v16, s{S_NK}, v10")
    o(f"v_mov_b32 v17, s{S_NH}")
    o(f"v_or_b32 v18, s{S_NK}, v11")
    o(f"v_mov_b32 v19, s{S_NH}")
    o(f"s_lshl_b32 s{S_B}, s{S_WG}, 10")
    o(f"s_add_u32 s{S_B}, s{S_B}, {OFF_OFF}")
    o(f"buffer_store_dwordx4 v[16:19], v4, {sr(R_WS,4)}, s{S_B} offen{SC}")
    o(f"s_cmp_eq_u32 s{S_BUCKET}, 127")
    o(f"s_cbranch_scc0 L_rec")
    o(f"v_lshrrev_b32 v3, 3, v2")
    o(f"s_mov_b32 s{S_B}, {TSTRIDE}")
    o(f"v_mul_lo_u32 v3, v3, s{S_B}")
    o(f"v_lshl_add_u32 v3, v1, 4, v3")
    o(f"s_mov_b32 s{S_B}, {DUMMY_ROW*128}")
    o(f"v_mov_b32 v20, 0x7f007f00")
    o(f"v_mov_b32 v21, 0x7f007f00")
    o(f"v_mov_b32 v22, 0")
    o(f"v_mov_b32 v23, 0")
    o("s_mov_b64 exec, 0xffff")
    o(f"buffer_store_dwordx4 {vr(20,4)}, v3, {sr(R_TAB,4)}, s{S_B} offen{SC}")
    o("s_mov_b64 exec, -1")
    o("s_branch L_rec")
    o("L_w14:")
    xsrc(o)
    o(f"s_add_u32 s{S_A}, s{S_NODE0}, {16*TEAM0}")
    o(f"s_lshl_b32 s{S_A}, s{S_A}, 8")
    for w in range(TEAM0, 13):
        for i in range(4 if w < 12 else 1):
            o(f"s_mov_b32 m0, {XT + (w >> 1)*XTS + (w & 1)*4160 + 16*i}")
            o("s_nop 0")
            o(f"buffer_load_dwordx4 v12, {sr(R_X,4)}, s{S_A} offen offset:{i*1024} lds")
        if w < 12: o(f"s_add_u32 s{S_A}, s{S_A}, 4096")
    get_tag(o, "L_gb")
    o(f"v_mov_b32 v3, 2")
    o("s_mov_b64 exec, 1")
    o(f"ds_add_u32 v{vZ}, v15 offset:{F_TC+16}")
    o(f"ds_add_u32 v{vZ}, v3 offset:{F_TC+20}")
    o(f"ds_add_u32 v{vZ}, v3 offset:{F_TC+24}")
    o("s_mov_b64 exec, -1")
    o(f"ds_write_b64 v{vZ}, v[6:7] offset:{F_TAG}")
    o(f"v_lshlrev_b32 v3, 12, v2")
    o(f"s_lshl_b32 s{S_B}, s{S_BUCKET}, 3")
    o(f"s_add_u32 s{S_B}, s{S_B}, {OFF_OFF}")
    spin_bound(o)
    o("L_pa:")
    for i in range(4):
        o(f"buffer_load_dwordx2 {vr(16+2*i,2)}, v3, {sr(R_WS,4)}, s{S_B} offen offset:{1024*i} sc1")
    o("s_waitcnt vmcnt(0)")
    for i in range(4):
        o(f"v_xor_b32 v{24+i}, s{S_NK}, v{16+2*i}")
        o(f"v_xor_b32 v{17+2*i}, s{S_NH}, v{17+2*i}")
    o(f"v_or3_b32 v6, v24, v25, v26")
    o(f"v_or_b32 v6, v6, v27")
    o(f"v_lshrrev_b32 v6, 22, v6")
    o(f"v_or3_b32 v6, v6, v17, v19")
    o(f"v_or3_b32 v6, v6, v21, v23")
    o(f"v_cmpx_ne_u32 vcc, 0, v6")
    o(f"s_cbranch_execz L_pa_ok")
    spin_tail(o, "L_pa", 2)
    o("L_pa_ok:")
    o("s_mov_b64 exec, -1")
    stamp(o, 3)
    o(f"v_lshlrev_b32 v3, 4, v2")
    o(f"ds_write_b128 v3, {vr(24,4)} offset:{OFFL}")
    o("s_waitcnt lgkmcnt(0)")
    o(f"ds_write_b32 v{vZ}, v15 offset:{F_OFFL}")
    o("s_branch L_rec")
    o("L_gemm:")
    o("s_setprio 0")
    xsrc(o)
    if "nowi" not in OPT: lds_wait(o, "L_wi", vZ, F_WI, 8, 3, 0)
    o(f"s_lshr_b32 s{S_TILE}, s{S_WAVE}, 1")
    o(f"s_and_b32 s{S_FB}, s{S_WAVE}, 1")
    o(f"s_add_u32 s{S_SL}, s{S_SL0}, s{S_FB}")
    o(f"s_lshl_b32 s{S_A}, s{S_WAVE}, 4")
    o(f"s_add_u32 s{S_A}, s{S_A}, s{S_NODE0}")
    o(f"s_lshl_b32 s{S_A}, s{S_A}, 8")
    o(f"s_mul_i32 s{S_C}, s{S_TILE}, {XTS}")
    o(f"s_add_u32 s{S_C}, s{S_C}, {XT}")
    o(f"s_mul_i32 s{S_B}, s{S_FB}, 4160")
    o(f"s_add_u32 s{S_B}, s{S_B}, s{S_C}")
    o(f"s_cmp_ge_u32 s{S_WAVE}, {TEAM0}")
    o(f"s_cbranch_scc1 L_xdone")
    for i in range(4):
        o(f"s_add_u32 m0, s{S_B}, {16*i}")
        o("s_nop 0")
        o(f"buffer_load_dwordx4 v12, {sr(R_X,4)}, s{S_A} offen offset:{i*1024} lds")
    o("L_xdone:")
    o(f"s_cmp_lt_u32 s{S_WAVE}, 8")
    o(f"s_cbranch_scc0 L_w4")
    o("s_waitcnt vmcnt(4)")
    lds_inc(o, vZ, F_W)
    o("L_w4:")
    if STAMP is not None and STAMP < TEAM0: stamp(o, 1)
    o(f"v_and_b32 v6, 31, v2")
    o(f"v_lshrrev_b32 v7, 5, v2")
    o(f"v_lshrrev_b32 v3, 2, v6")
    o(f"s_movk_i32 s{S_A}, 1040")
    o(f"v_mul_u32_u24 v3, s{S_A}, v3")
    o(f"v_and_b32 v12, 3, v6")
    o(f"v_lshl_add_u32 v3, v12, 8, v3")
    o(f"v_lshl_add_u32 v3, v7, 4, v3")
    o(f"v_add_u32 v3, s{S_C}, v3")
    o(f"v_xor_b32 v12, s{S_SL}, v12")
    for u in range(4):
        o(f"v_xor_b32 v4, {u}, v12")
        o(f"v_lshl_add_u32 v{vD+u}, v4, 6, v3")
    o(f"v_bfe_u32 v3, v2, 2, 2")
    o(f"v_lshl_add_u32 v8, v7, 3, v3")
    o(f"v_lshlrev_b32 v8, 7, v8")
    o(f"v_lshrrev_b32 v3, 1, v3")
    o(f"v_xor_b32 v3, s{S_FB}, v3")
    o(f"v_lshl_add_u32 v8, v3, 6, v8")
    o(f"v_bfe_u32 v3, v2, 4, 1")
    o(f"v_lshl_add_u32 v8, v3, 5, v8")
    o(f"v_and_b32 v3, 3, v2")
    o(f"v_lshl_add_u32 v8, v3, 3, v8")
    for u in range(4):
        o(f"s_xor_b32 s{S_A}, s{S_SL}, {u}")
        o(f"s_lshl_b32 s{S_A}, s{S_A}, 12")
        o(f"s_add_u32 s{S_A}, s{S_A}, {WOFF}")
        o(f"v_add_u32 v{vWA+u}, s{S_A}, v8")
    o(f"s_lshl_b32 s{S_A}, s{S_TILE}, 2")
    o(f"v_mov_b32 v11, s{S_A}")
    o(f"s_lshl_b32 s{S_D}, s{S_FB}, 12")
    o(f"s_add_u32 s{S_D}, s{S_D}, s{S_C}")
    o("s_waitcnt vmcnt(0)")
    o(f"s_cmp_ge_u32 s{S_WAVE}, {TEAM0}")
    o(f"s_cbranch_scc1 L_noinc")
    lds_inc(o, 11, F_TC)
    o("L_noinc:")
    lds_wait(o, "L_wt", 11, F_TC, 2, 3, 0)
    stamp(o, 2 if STAMP is not None and STAMP < TEAM0 else 3)
    for t in range(8):
        o(f"ds_read_b128 {vr(vX+4*t,4)}, v{vD+(t>>1)} offset:{(t&1)*32}")
    o("s_waitcnt lgkmcnt(0)")
    lds_inc(o, 11, F_TC)
    lds_wait(o, "L_ww", vZ, F_W, 8, 3)
    gstamp(o, 5)
    gemm_pair(o, vW, vX, aP, aQ, vWA, 0)
    gstamp(o, 6)
    for i in range(0, 16, 2):
        o(f"v_pk_fma_f32 {vr(aP+i,2)}, {vr(aP+i,2)}, {sr(S_CT,2)}, {sr(S_CT,2)} op_sel:[0,0,1] op_sel_hi:[1,0,1]")
    for i in range(0, 16, 2):
        o(f"v_pk_add_f32 {vr(aQ+i,2)}, {vr(aQ+i,2)}, {sr(S_CT,2)} op_sel:[0,1] op_sel_hi:[1,1]")
    lds_wait(o, "L_wu", 11, F_TC, 4, 3, 0)
    gstamp(o, 7)
    o(f"v_and_b32 v3, 7, v6")
    o(f"v_xor_b32 v3, v3, v7")
    o(f"v_lshlrev_b32 v3, 4, v3")
    o(f"v_lshl_add_u32 v3, v6, 7, v3")
    o(f"v_add_u32 v3, s{S_D}, v3")
    for q in range(4):
        d = vD + (q & 1)*4
        encode4(o, aP+4*q, d); encode4(o, aQ+4*q, d+2)
        if q: o(f"v_xor_b32 v3, {32*(q ^ (q-1))}, v3")
        o(f"ds_write_b128 v3, {vr(d,4)}")
    o(f"v_lshrrev_b32 v3, 3, v2")
    o(f"v_xor_b32 v10, v1, v3")
    o(f"v_lshlrev_b32 v10, 4, v10")
    o(f"v_lshl_add_u32 v10, v3, 7, v10")
    o(f"v_add_u32 v10, s{S_D}, v10")
    o(f"s_lshl_b32 s{S_B1}, s{S_TILE}, 5")
    o(f"s_add_u32 s{S_B1}, s{S_B1}, s{S_NODE0}")
    o(f"s_lshl_b32 s{S_B1}, s{S_B1}, 7")
    def tab_read():
        for i in range(4):
            o(f"ds_read_b128 {vr(aP+4*i,4)}, v10 offset:{i*1024}")
    def tab_store(lab, counted):
        o(f"v_lshlrev_b32 v3, 4, v2")
        o(f"s_cmp_lt_u32 s{S_WAVE}, 12")
        o(f"s_cbranch_scc1 {lab}_full")
        if counted: o("s_waitcnt lgkmcnt(0)")
        o("s_mov_b32 exec_hi, 0")
        o(f"buffer_store_dwordx4 {vr(aP,4)}, v3, {sr(R_TAB,4)}, s{S_B1} offen{SC}")
        o("s_mov_b64 exec, -1")
        o(f"s_branch {lab}")
        o(f"{lab}_full:")
        for i in range(4):
            if counted: o(f"s_waitcnt lgkmcnt({3-i})")
            o(f"buffer_store_dwordx4 {vr(aP+4*i,4)}, v3, {sr(R_TAB,4)}, s{S_B1} offen offset:{i*1024}{SC}")
        o(f"{lab}:")
    o(f"s_mul_i32 s{S_A}, s{S_FB}, {TSTRIDE}")
    o(f"s_add_u32 s{S_B1}, s{S_B1}, s{S_A}")
    gstamp(o, 8)
    if "nohold" not in OPT: lds_wait(o, "L_hold", vZ, F_GO, 1, 3)
    else: o("s_waitcnt lgkmcnt(0)")
    gstamp(o, 9)
    tab_read()
    tab_store("L_st_done", True)
    if STAMP is not None and STAMP < TEAM0: stamp(o, 3)
    gemm_pair(o, vW, vX, aP, aQ, vWA, 32768)
    gstamp(o, 10)
    for i in range(0, 16, 2):
        o(f"v_pk_mul_f32 {vr(aP+i,2)}, {vr(aP+i,2)}, {sr(S_CT,2)} op_sel_hi:[1,0]")
    for q in range(4):
        o(f"v_cvt_pk_bf16_f32 v{vW+4*q+2}, v{aQ+4*q}, v{aQ+4*q+1}")
        o(f"v_cvt_pk_bf16_f32 v{vW+4*q+3}, v{aQ+4*q+2}, v{aQ+4*q+3}")
    o(f"v_max3_f32 v3, |v{aP}|, |v{aP+1}|, |v{aP+2}|")
    for i in range(3, 15, 2):
        o(f"v_max3_f32 v3, v3, |v{aP+i}|, |v{aP+i+1}|")
    o(f"v_max_f32 v3, v3, |v{aP+15}|")
    o(f"s_mov_b32 s{S_A}, 0x42700000")
    o(f"s_cmp_ge_u32 s{S_WAVE}, 12")
    o(f"s_cselect_b32 s{S_EX}, 0xf, -1")
    o(f"v_cmp_lt_f32 vcc, s{S_A}, v3")
    o(f"s_mov_b32 s{S_EX+1}, s{S_EX}")
    o(f"s_and_b64 vcc, vcc, {sr(S_EX,2)}")
    o(f"s_cbranch_scc0 L_doexp")
    o(f"v_lshlrev_b32 v3, s{S_WAVE}, v15")
    o(f"ds_or_b32 v{vZ}, v3 offset:{F_RANGE}")
    o("s_branch L_noexp")
    o("L_doexp:")
    for i in range(16): o(f"v_exp_f32 v{aP+i}, -v{aP+i}")
    o("L_noexp:")
    for q in range(4):
        o(f"v_cvt_pk_bf16_f32 v{vW+4*q}, v{aP+4*q}, v{aP+4*q+1}")
        o(f"v_cvt_pk_bf16_f32 v{vW+4*q+1}, v{aP+4*q+2}, v{aP+4*q+3}")
    lds_inc(o, vZ, F_GD)
    def aux_write(lab):
        o(f"s_cmp_lt_u32 s{S_WAVE}, 14")
        o(f"s_cbranch_scc0 {lab}")
        o(f"s_lshr_b32 s{S_A}, s{S_WAVE}, 1")
        o(f"s_lshl_b32 s{S_A}, s{S_A}, 5")
        o(f"v_and_b32 v3, 31, v2")
        o(f"v_add_u32 v3, s{S_A}, v3")
        o(f"s_movk_i32 s{S_A}, {AUS}")
        o(f"v_cmpx_gt_u32 vcc, s{S_A}, v3")
        o(f"s_and_b32 s{S_B}, s{S_WAVE}, 1")
        o(f"s_mul_i32 s{S_B}, s{S_B}, {AUP}")
        o(f"s_add_u32 s{S_B}, s{S_B}, {AUX}")
        o(f"v_mul_u32_u24 v3, s{S_A}, v3")
        o(f"v_lshrrev_b32 v14, 5, v2")
        o(f"v_mul_u32_u24 v14, 24, v14")
        o(f"v_add3_u32 v3, v3, v14, s{S_B}")
        o(f"v_add_u32 v14, v3, v14")
        for q in range(4):
            o(f"ds_write2_b64 v3, {vr(vW+4*q,2)}, {vr(vW+4*q+2,2)} offset0:{6*q} offset1:{6*q+1}")
        o(f"ds_write2_b64 v14, {vr(vX,2)}, {vr(vX+2,2)} offset0:2 offset1:5")
        o(f"ds_write2_b64 v14, {vr(vX+4,2)}, {vr(vX+6,2)} offset0:14 offset1:17")
        o("s_mov_b64 exec, -1")
        o(f"{lab}:")
    o("L_rec:")
    if STAMP is not None and STAMP < 14: stamp(o, 4)
    vCNT, vIDX, vRA = 4, 5, 12
    o(f"v_and_b32 v{vIDX}, 3, v0")
    o(f"v_lshlrev_b32 v{vIDX}, 1, v{vIDX}")
    o(f"v_lshrrev_b32 v3, 2, v0")
    o(f"s_movk_i32 s{S_A}, {SEG}")
    o(f"v_mul_u32_u24 v{vRA}, s{S_A}, v3")
    o(f"v_and_b32 v14, 0xffc, v0")
    lds_wait(o, "L_wo", vZ, F_OFFL, 1, 3)
    o(f"ds_read_b32 v{vCNT}, v14 offset:{OFFL}")
    o(f"ds_read_b64 v[6:7], v{vZ} offset:{F_TAG}")
    o(f"s_mov_b32 s{S_A}, {REC_OFF}")
    o("s_waitcnt lgkmcnt(0)")
    o(f"v_readfirstlane_b32 s{S_NK}, v6")
    o(f"v_readfirstlane_b32 s{S_NH}, v7")
    o(f"v_and_b32 v3, 0x7ff, v{vCNT}")
    o(f"v_lshrrev_b32 v{vCNT}, 11, v{vCNT}")
    o(f"v_add_u32 v3, v3, v{vIDX}")
    o(f"v_lshl_add_u32 v{vRA}, v3, 3, v{vRA}")
    o(f"v_sub_u32 v{vIDX}, v{vCNT}, v{vIDX}")
    for r in range(NR):
        o(f"v_cmp_lt_i32 {sr(S_MSK+2*r,2)}, {8*(r>>1) + (r&1)}, v{vIDX}")
    for k in range(NL):
        o(f"s_mov_b64 exec, {sr(S_MSK+4*k,2)}")
        if k >= 2: o("s_cbranch_execz L_ld_done")
        o(f"buffer_load_dwordx4 {vr(vREC+4*k,4)}, v{vRA}, {sr(R_WS,4)}, s{S_A} offen offset:{k*64}{SC}")
    o("L_ld_done:")
    o("s_mov_b64 exec, -1")
    o(f"v_cmpx_lt_u32 vcc, {8*NL}, v{vCNT}")
    o(f"ds_write_b32 v{vZ}, v15 offset:{F_STRUCT}")
    o("s_mov_b64 exec, -1")
    o(f"s_cmp_lt_u32 s{S_WAVE}, 14")
    o(f"s_cbranch_scc0 L_noaux")
    lds_wait(o, "L_wg", vZ, F_GD, 14, 3)
    aux_write("L_noaux")
    stamp(o, 5)
    vRK = 24; vDA = 34
    o("s_waitcnt vmcnt(0)")
    for r in range(NR):
        o(f"s_mov_b64 exec, {sr(S_MSK+2*r,2)}")
        if r >= 3: o("s_cbranch_execz L_cnt_done")
        o(f"v_and_b32 v{vDA+r}, 0xffff, v{vREC+2*r}")
        o(f"ds_add_rtn_u32 v{vRK+r}, v{vDA+r}, v15 offset:{DEG}")
    o("L_cnt_done:")
    o("s_setprio 0")
    o("s_mov_b64 exec, -1")
    stamp(o, 6)
    o("s_waitcnt lgkmcnt(0)")
    o("s_barrier")
    stamp(o, 7)
    vN_D, vBIN, vR2, vPOS, vL, vTB = 80, 81, 82, 83, 84, 85
    vWX, vW2, vEX, vDen, vNum, vNQ, vT, vLO, vLA, vOB, vOA, vAB, vAU = 86, 124, 90, 92, 96, 100, 64, 72, 73, 74, 75, 76, 78
    o(f"s_cmp_eq_u32 s{S_WAVE}, 15")
    o(f"s_cbranch_scc0 L_nosort")
    o("s_setprio 3")
    sD, sB, sR, sP = 48, 52, 56, 60
    o(f"v_lshlrev_b32 v8, 2, v2")
    for i in range(4): o(f"ds_read_b32 v{sD+i}, v8 offset:{DEG+256*i}")
    publish_tf(o, 0)
    publish_tf(o, 1)
    o("s_waitcnt lgkmcnt(0)")
    for i in range(4):
        o(f"v_min_u32 v{sB+i}, 63, v{sD+i}")
        o(f"v_sub_u32 v{sB+i}, 63, v{sB+i}")
        o(f"v_lshlrev_b32 v{sB+i}, 2, v{sB+i}")
        if i == 3: o("s_mov_b64 exec, 0xff")
        o(f"ds_add_rtn_u32 v{sR+i}, v{sB+i}, v15 offset:{HIST2}")
    o("s_mov_b64 exec, -1")
    o(f"ds_read_b32 v6, v8 offset:{HIST2}")
    o(f"v_max3_u32 v3, v{sD}, v{sD+1}, v{sD+2}")
    o(f"v_max_u32 v3, v3, v{sD+3}")
    o(f"v_cmp_lt_u32 vcc, 63, v3")
    o(f"s_cmp_lg_u64 vcc, 0")
    o(f"s_cselect_b32 s{S_C}, 1, 0")
    o(f"v_lshrrev_b32 v10, 1, v2")
    o(f"v_sub_u32 v11, 31, v10")
    o(f"v_and_b32 v7, 1, v2")
    o(f"v_cmp_eq_u32 vcc, 1, v7")
    o(f"v_add_u32 v12, 192, v2")
    o(f"v_mov_b32 v7, 0xffff")
    o(f"v_cndmask_b32 v10, v10, v11, vcc")
    o(f"v_and_b32 v11, 32, v2")
    o(f"v_add_u32 v10, v10, v11")
    o(f"v_cmp_gt_u32 vcc, 4, v2")
    o(f"v_cmp_gt_u32 {sr(S_EX,2)}, 25, v10")
    o(f"v_lshlrev_b32 v10, 5, v10")
    o(f"v_cndmask_b32 v12, v7, v12, vcc")
    o("s_waitcnt lgkmcnt(0)")
    o(f"v_mov_b32 v14, v6")
    scan64(o, 14)
    o(f"v_sub_u32 v14, v14, v6")
    for i in range(4): o(f"ds_bpermute_b32 v{sP+i}, v{sB+i}, v14")
    o(f"v_lshl_or_b32 v{sB}, v{sD}, 16, v2")
    o(f"v_add_u32 v3, 64, v2")
    o(f"v_lshl_or_b32 v{sB+1}, v{sD+1}, 16, v3")
    o(f"v_add_u32 v3, 128, v2")
    o(f"v_lshl_or_b32 v{sB+2}, v{sD+2}, 16, v3")
    o(f"v_lshl_or_b32 v{sB+3}, v{sD+3}, 16, v12")
    o("s_waitcnt lgkmcnt(0)")
    for i in range(4):
        o(f"v_add_u32 v{sP+i}, v{sP+i}, v{sR+i}")
        o(f"v_lshlrev_b32 v3, 2, v{sP+i}")
        if i == 3: o("s_mov_b64 exec, 0xff")
        o(f"ds_write_b32 v3, v{sB+i} offset:{SNODE}")
    o("s_mov_b64 exec, -1")
    o(f"ds_read_u16 v{vL}, v10 offset:{SNODE+2}")
    for i in range(4):
        o(f"v_lshrrev_b32 v3, 3, v{sP+i}")
        o(f"v_sub_u32 v6, 31, v3")
        o(f"v_cmp_gt_u32 vcc, 16, v3")
        o(f"v_lshl_or_b32 v6, v6, 3, 4")
        o(f"v_lshlrev_b32 v3, 3, v3")
        o(f"v_cndmask_b32 v{sB+i}, v6, v3, vcc")
        o(f"v_and_b32 v{sP+i}, 7, v{sP+i}")
        o(f"v_lshlrev_b32 v{sP+i}, 3, v{sP+i}")
        o(f"v_add_u32 v{sP+i}, {ELL}, v{sP+i}")
    o("s_waitcnt lgkmcnt(0)")
    o(f"v_cndmask_b32 v{vL}, 0, v{vL}, {sr(S_EX,2)}")
    o(f"v_mov_b32 v{vTB}, v{vL}")
    scan64(o, vTB)
    o("s_nop 0")
    o(f"v_readlane_b32 s{S_A}, v{vTB}, 63")
    o(f"v_sub_u32 v{vTB}, v{vTB}, v{vL}")
    o(f"v_lshl_or_b32 v{vTB}, v{vTB}, 8, v{vL}")
    o(f"s_cmp_gt_u32 s{S_A}, {ELL_ITERS}")
    o(f"s_cselect_b32 s{S_C}, 1, s{S_C}")
    o(f"s_cmp_lg_u32 s{S_C}, 0")
    o(f"s_cbranch_scc0 L_fit")
    o(f"ds_write_b32 v{vZ}, v15 offset:{F_STRUCT}")
    o("s_branch L_sorted")
    o("L_fit:")
    for i in range(4): o(f"ds_bpermute_b32 v{sR+i}, v{sB+i}, v{vTB}")
    o(f"ds_write_b32 v8, v{vTB} offset:{TBL}")
    o("s_waitcnt lgkmcnt(1)")
    for i in range(4):
        o(f"v_lshrrev_b32 v3, 8, v{sR+i}")
        o(f"v_lshl_add_u32 v{sP+i}, v3, 6, v{sP+i}")
        o(f"v_lshl_or_b32 v{sP+i}, v{sR+i}, 24, v{sP+i}")
        o(f"ds_write_b32 v8, v{sP+i} offset:{SLOT+256*i}")
    o("s_branch L_sorted")
    o("L_nosort:")
    o(f"s_cmp_eq_u32 s{S_WAVE}, 14")
    o(f"s_cbranch_scc0 L_nopf")
    o(f"v_lshlrev_b32 v3, 7, v2")
    o(f"s_lshl_b32 s{S_B}, s{S_NODE0}, 7")
    for i in range(4):
        if i == 3: o("s_mov_b64 exec, 0xf")
        o(f"buffer_load_dword v{48+i}, v3, {sr(R_TAB,4)}, s{S_B} offen{SC}")
        if i < 3: o(f"s_add_u32 s{S_B}, s{S_B}, 8192")
    o("s_mov_b64 exec, -1")
    o("L_nopf:")
    o("L_sorted:")
    o("s_setprio 0")
    o(f"v_lshlrev_b32 v{vLO}, 4, v1")
    o(f"v_mul_u32_u24 v{vAB}, 24, v1")
    for p, w in ((0, vWX), (2, vW2)):
        o(f"v_lshlrev_b32 v{w}, 16, v{vWC+p}")
        o(f"v_lshlrev_b32 v{w+1}, 16, v{vWC+p+1}")
        o(f"v_and_b32 v{w+2}, 0xffff0000, v{vWC+p}")
        o(f"v_and_b32 v{w+3}, 0xffff0000, v{vWC+p+1}")
        o(f"v_pk_mul_f32 {vr(w,2)}, {vr(w,2)}, {sr(S_CT,2)} op_sel_hi:[1,0]")
        o(f"v_pk_mul_f32 {vr(w+2,2)}, {vr(w+2,2)}, {sr(S_CT,2)} op_sel_hi:[1,0]")
    o(f"v_add_u32 v{vAB}, {AUX}, v{vAB}")
    o(f"s_lshl_b32 s{S_A}, s{S_NODE0}, 8")
    o(f"s_lshl_b32 s{S_B}, s{S_SL0}, 6")
    o(f"s_add_u32 s{S_A}, s{S_A}, s{S_B}")
    o(f"v_lshl_add_u32 v{vOB}, v1, 3, s{S_A}")
    o(f"v_lshlrev_b32 v8, 2, v2")
    o(f"v_lshrrev_b32 v3, 3, v2")
    o(f"v_lshlrev_b32 v6, 2, v3")
    o(f"v_lshlrev_b32 v5, 3, v3")
    o(f"s_lshl_b32 s{S_A}, s{S_WAVE}, 5")
    o(f"v_add_u32 v14, s{S_A}, v6")
    o(f"s_sub_u32 s{S_A}, {15*32}, s{S_A}")
    o(f"v_add_u32 v12, s{S_A}, v6")
    o("s_waitcnt lgkmcnt(0)")
    o("s_barrier")
    stamp(o, 8)
    o(f"ds_read_b64 v[6:7], v{vZ} offset:{F_STRUCT}")
    o(f"ds_read_b32 v{vTB}, v8 offset:{TBL}")
    o(f"ds_read_b32 v80, v9 offset:{SLOT}")
    o(f"ds_read_b32 v81, v9 offset:{DEG}")
    for r in range(NR):
        o(f"s_mov_b64 exec, {sr(S_MSK+2*r,2)}")
        if r >= 3: o("s_cbranch_execz L_s8a_done")
        o(f"ds_read_b32 v{vDA+r}, v{vDA+r} offset:{SLOT}")
    o("L_s8a_done:")
    o("s_mov_b64 exec, -1")
    o(f"ds_read_u16 v{vNQ}, v14 offset:{SNODE}")
    o(f"ds_read_u16 v10, v12 offset:{SNODE+16*32}")
    o(f"ds_read_u16 v{vNQ+1}, v12 offset:{SNODE}")
    o(f"ds_read_u16 v11, v14 offset:{SNODE+16*32}")
    o("s_waitcnt lgkmcnt(0)")
    o(f"v_readfirstlane_b32 s{S_B}, v6")
    o(f"v_readfirstlane_b32 s{S_MODE}, v7")
    o(f"s_lshl_b32 s{S_A}, s{S_WAVE}, 1")
    o(f"v_readlane_b32 s{S_C}, v{vTB}, s{S_A}")
    o(f"s_or_b32 s{S_B}, s{S_B}, s{S_MODE}")
    o(f"s_cbranch_scc1 L_slow")
    for r in range(NR):
        o(f"s_mov_b64 exec, {sr(S_MSK+2*r,2)}")
        if r >= 3: o("s_cbranch_execz L_s8b_done")
        o(f"v_lshl_add_u32 v{vDA+r}, v{vRK+r}, 6, v{vDA+r}")
        o(f"v_and_b32 v{vDA+r}, 0xffffff, v{vDA+r}")
        o(f"ds_write_b64 v{vDA+r}, {vr(vREC+2*r,2)}")
    o("L_s8b_done:")
    o("s_mov_b64 exec, -1")
    o(f"s_cmp_lt_u32 s{S_WAVE}, 4")
    o(f"s_cbranch_scc0 L_pad_done")
    o(f"v_lshrrev_b32 v82, 24, v80")
    o(f"v_lshl_add_u32 v80, v81, 6, v80")
    o(f"v_and_b32 v80, 0xffffff, v80")
    o(f"v_mov_b32 v6, {DUMMY_ROW << 16}")
    o(f"v_mov_b32 v7, 0")
    o(f"s_movk_i32 s{S_B}, 200")
    o(f"v_cmpx_gt_u32 vcc, s{S_B}, v0")
    o("L_pad:")
    o(f"v_cmpx_gt_u32 vcc, v82, v81")
    o(f"s_cbranch_execz L_pad_done")
    o(f"ds_write_b64 v80, v[6:7]")
    o(f"v_add_u32 v80, 64, v80")
    o(f"v_add_u32 v81, 1, v81")
    o("s_branch L_pad")
    o("L_pad_done:")
    o("s_mov_b64 exec, -1")
    o(f"s_add_u32 s{S_A}, s{S_A}, 1")
    o(f"v_readlane_b32 s{S_L1}, v{vTB}, s{S_A}")
    o(f"s_xor_b32 s{S_A}, s{S_A}, 30")
    o(f"v_readlane_b32 s{S_L3}, v{vTB}, s{S_A}")
    o(f"s_sub_u32 s{S_A}, s{S_A}, 1")
    o(f"v_readlane_b32 s{S_B1}, v{vTB}, s{S_A}")
    o(f"s_and_b32 s{S_CNT}, s{S_C}, 0xff")
    o(f"s_lshr_b32 s{S_C}, s{S_C}, 8")
    o(f"s_and_b32 s{S_L1}, s{S_L1}, 0xff")
    o(f"s_and_b32 s{S_L3}, s{S_L3}, 0xff")
    o(f"s_and_b32 s{S_L2}, s{S_B1}, 0xff")
    o(f"s_lshr_b32 s{S_B1}, s{S_B1}, 8")
    o(f"s_lshl_b32 s{S_C}, s{S_C}, 6")
    o(f"s_add_u32 s{S_C}, s{S_C}, {ELL}")
    o(f"s_lshl_b32 s{S_B1}, s{S_B1}, 6")
    o(f"s_add_u32 s{S_B1}, s{S_B1}, {ELL}")
    o(f"v_add_u32 v{vLA}, s{S_C}, v5")
    stamp(o, 10)
    o(f"s_cmp_eq_u32 s{S_WAVE}, 14")
    o(f"s_cbranch_scc0 L_nopoll2")
    poll_tables(o, "L_pb", 0, 48)
    o("L_nopoll2:")
    o(f"s_cmp_ge_u32 s{S_WAVE}, 7")
    o(f"s_cselect_b32 s{S_NT}, 2, 1")
    o(f"s_mov_b32 s{S_PH}, 0")
    o(f"s_movk_i32 s{S_D}, 128")
    o("s_waitcnt lgkmcnt(0)")
    o(f"v_lshl_or_b32 v{vNQ}, v10, 16, v{vNQ}")
    o(f"v_lshl_or_b32 v{vNQ+1}, v11, 16, v{vNQ+1}")
    o("s_barrier")
    stamp(o, 11)
    o(f"s_movk_i32 s{S_A}, {AUS}")
    o(f"s_movk_i32 s{S_B}, 256")
    o("s_setprio 3")
    vDK = 16; vRKk = 104
    assert vDK + 4*PD <= 64 and vRKk + 2*PD <= 124
    def gaddr(R): o(f"v_mad_u32_u16 v{R}, v{R}, s{S_D}, v{vLO} op_sel:[1,0,0,0]")
    o("M_prime:")
    for k in range(PD):
        o(f"ds_read_b64 {vr(vRKk+2*k,2)}, v{vLA} offset:{k*64}")
    for k in range(PD):
        o(f"s_waitcnt lgkmcnt({PD-1-k})")
        gaddr(vRKk+2*k)
        o(f"buffer_load_dwordx4 {vr(vDK+4*k,4)}, v{vRKk+2*k}, {sr(R_TAB,4)}, s{S_PH} offen{GSC}")
    def promote():
        o(f"v_mad_u32_u16 v3, v{vNQ}, s{S_A}, v{vAB}")
        o(f"v_mad_u32_u16 v{vOA}, v{vNQ}, s{S_B}, v{vOB}")
        o(f"ds_read2_b64 {vr(vAU,4)}, v3 offset0:0 offset1:1")
        o(f"ds_read_b64 {vr(vAU+4,2)}, v3 offset:16")
        o(f"v_lshrrev_b32 v{vNQ}, 16, v{vNQ}")
        for i in range(0, 8, 2): o(f"v_mov_b64 {vr(vDen+i,2)}, 0")
        o("s_waitcnt lgkmcnt(0)")
        o(f"v_lshlrev_b32 v{vEX}, 16, v{vAU}")
        o(f"v_lshlrev_b32 v{vEX+1}, 16, v{vAU+1}")
        o(f"v_and_b32 v{vAU}, 0xffff0000, v{vAU}")
        o(f"v_and_b32 v{vAU+1}, 0xffff0000, v{vAU+1}")
    promote()
    if "nocut" in OPT:
        o(f"s_sub_u32 s{S_CNT}, s{S_CNT}, 1")
    else:
        o(f"s_mov_b32 s{S_TASK}, s{S_CNT}")
        o(f"s_add_u32 s{S_CUT}, s{S_CNT}, s{S_L1}")
        o(f"s_cmp_gt_u32 s{S_CUT}, {PD}")
        o(f"s_cselect_b32 s{S_SO}, s{S_PH}, 0x7f000000")
        o(f"s_cselect_b32 s{S_CUT}, s{S_CUT}, 0x7f000000")
        o(f"s_sub_u32 s{S_CUT}, s{S_CUT}, {PD}")
        o(f"s_min_u32 s{S_STEP}, s{S_TASK}, s{S_CUT}")
        o(f"s_sub_u32 s{S_CNT}, s{S_STEP}, 1")
    o(f"s_cbranch_scc1 M_sw{PD-1}")
    o("M_loop:")
    for k in range(PD):
        D = vDK + 4*k; R = vRKk + 2*k
        o(f"M_it{k}:")
        o(f"s_waitcnt vmcnt({PD-1})")
        o(f"v_lshlrev_b64 {vr(vT,2)}, 16, {vr(D,2)}")
        o(f"v_pk_fma_f32 {vr(vT+2,2)}, {vr(R,2)}, {vr(vWX+2,2)}, {vr(D,2)} op_sel:[1,0,0] op_sel_hi:[1,1,1]")
        o(f"v_pk_fma_f32 {vr(vT,2)}, {vr(R,2)}, {vr(vWX,2)}, {vr(vT,2)} op_sel:[1,0,0] op_sel_hi:[1,1,1]")
        o(f"ds_read_b64 {vr(R,2)}, v{vLA} offset:{(k+PD)*64}")
        o(f"v_exp_f32 v{vT+2}, v{vT+2}")
        o(f"v_exp_f32 v{vT+3}, v{vT+3}")
        o(f"v_exp_f32 v{vT}, v{vT}")
        o(f"v_exp_f32 v{vT+1}, v{vT+1}")
        o(f"v_lshlrev_b64 {vr(vT+4,2)}, 16, {vr(D+2,2)}")
        o(f"v_pk_add_f32 {vr(vT+2,2)}, {vr(vT+2,2)}, {vr(vAU,2)}")
        o(f"v_pk_add_f32 {vr(vT,2)}, {vr(vT,2)}, {vr(vEX,2)}")
        if k == PD-1:
            o(f"v_add_u32 v{vLA}, {PD*64}, v{vLA}")
        o(f"v_rcp_f32 v{vT+2}, v{vT+2}")
        o(f"v_rcp_f32 v{vT+3}, v{vT+3}")
        o(f"v_rcp_f32 v{vT}, v{vT}")
        o(f"v_rcp_f32 v{vT+1}, v{vT+1}")
        o(f"v_pk_add_f32 {vr(vDen+2,2)}, {vr(vDen+2,2)}, {vr(vT+2,2)}")
        o(f"v_pk_fma_f32 {vr(vNum+2,2)}, {vr(vT+2,2)}, {vr(D+2,2)}, {vr(vNum+2,2)}")
        o(f"v_pk_add_f32 {vr(vDen,2)}, {vr(vDen,2)}, {vr(vT,2)}")
        o(f"v_pk_fma_f32 {vr(vNum,2)}, {vr(vT,2)}, {vr(vT+4,2)}, {vr(vNum,2)}")
        o("s_waitcnt lgkmcnt(0)")
        gaddr(R)
        o(f"s_sub_u32 s{S_CNT}, s{S_CNT}, 1")
        o(f"buffer_load_dwordx4 {vr(D,4)}, v{R}, {sr(R_TAB,4)}, s{S_PH if 'nocut' in OPT else S_SO} offen{GSC}")
        o(f"s_cbranch_scc1 M_sw{k}")
    o("s_branch M_loop")
    for k in range(PD):
        o(f"M_sw{k}:")
        if "nocut" not in OPT:
            o(f"s_sub_u32 s{S_TASK}, s{S_TASK}, s{S_STEP}")
            o(f"s_sub_u32 s{S_CUT}, s{S_CUT}, s{S_STEP}")
            o(f"s_cmp_eq_u32 s{S_CUT}, 0")
            o(f"s_cselect_b32 s{S_SO}, 0x7f000000, s{S_SO}")
            o(f"s_cselect_b32 s{S_CUT}, 0x7f000000, s{S_CUT}")
            o(f"s_cmp_lg_u32 s{S_TASK}, 0")
            o(f"s_cbranch_scc1 M_n{k}")
        finalize(o, vDen, vNum, vEX, vAU, vAU+2, vAU+4, vT, vOA)
        o(f"s_sub_u32 s{S_NT}, s{S_NT}, 1")
        o(f"s_cmp_eq_u32 s{S_NT}, 0")
        o(f"s_cbranch_scc1 M_phase")
        o(f"s_cmp_eq_u32 s{S_PH}, 0")
        o(f"s_cbranch_scc1 M_p{k}")
        o("s_setprio 0")
        o(f"s_branch M_q{k}")
        o(f"M_p{k}:")
        o("s_setprio 2")
        o(f"M_q{k}:")
        promote()
        if "nocut" in OPT:
            o(f"s_sub_u32 s{S_CNT}, s{S_L1}, 1")
        else:
            o(f"s_mov_b32 s{S_TASK}, s{S_L1}")
            o(f"M_n{k}:")
            o(f"s_min_u32 s{S_STEP}, s{S_TASK}, s{S_CUT}")
            o(f"s_sub_u32 s{S_CNT}, s{S_STEP}, 1")
        o(f"s_cbranch_scc1 M_sw{k}")
        o(f"s_branch M_it{(k+1)%PD}")
    o("M_phase:")
    o(f"s_cmp_eq_u32 s{S_PH}, 0")
    o(f"s_cbranch_scc0 L_end")
    o("s_setprio 1")
    stamp(o, 13)
    poll_tables(o, "L_pd", 1, vT)
    o(f"s_mov_b32 s{S_PH}, {TSTRIDE}")
    o(f"v_mov_b64 {vr(vWX,2)}, {vr(vW2,2)}")
    o(f"v_mov_b64 {vr(vWX+2,2)}, {vr(vW2+2,2)}")
    o(f"v_add_u32 v{vAB}, {AUP}, v{vAB}")
    o(f"v_add_u32 v{vOB}, 64, v{vOB}")
    o(f"v_add_u32 v{vLA}, s{S_B1}, v5")
    o(f"v_mov_b32 v{vNQ}, v{vNQ+1}")
    o(f"s_mov_b32 s{S_CNT}, s{S_L2}")
    o(f"s_mov_b32 s{S_L1}, s{S_L3}")
    o(f"s_cmp_le_u32 s{S_WAVE}, 8")
    o(f"s_cselect_b32 s{S_NT}, 2, 1")
    o("s_branch M_prime")
    o("L_slow:")
    vG, vI, vA2, vR2_, vD2, vT2, vAcc = 16, 17, 18, 20, 24, 32, 19
    poll_tables(o, "S_pa", 0, 24)
    poll_tables(o, "S_pb", 1, 24)
    o(f"v_lshrrev_b32 v{vG}, 3, v0")
    o(f"s_mov_b32 s{S_PH}, 0")
    o(f"s_movk_i32 s{S_D}, {AUS}")
    o(f"s_movk_i32 s{S_CNT}, 128")
    o(f"s_mov_b32 s{S_B1}, 0")
    o("S_half:")
    o("s_barrier")
    for i in range(4): o(f"v_mov_b32 v{vD2+i}, 0")
    o(f"v_lshlrev_b32 v3, 4, v0")
    o(f"v_add_u32 v3, {ELL}, v3")
    for i in range(3): o(f"ds_write_b128 v3, {vr(vD2,4)} offset:{i*16384}")
    o(f"s_cmp_lt_u32 s{S_WAVE}, 2")
    o(f"s_cbranch_scc0 S_nofill")
    o(f"ds_write_b128 v3, {vr(vD2,4)} offset:{3*16384}")
    o("S_nofill:")
    o("s_waitcnt lgkmcnt(0)")
    o("s_barrier")
    o(f"s_mov_b32 s{S_PP}, 0")
    o("S_piece:")
    o(f"v_add_u32 v3, s{S_PP}, v{vG}")
    o(f"v_lshlrev_b32 v5, 2, v3")
    o(f"ds_read_b32 v4, v5 offset:{OFFL}")
    o(f"s_movk_i32 s{S_A}, {SEG}")
    o(f"v_mul_u32_u24 v{vA2}, s{S_A}, v3")
    o(f"v_mov_b32 v{vI}, 0")
    o("s_waitcnt lgkmcnt(0)")
    o(f"v_and_b32 v5, 0x7ff, v4")
    o(f"v_lshrrev_b32 v4, 11, v4")
    o(f"v_lshl_add_u32 v{vA2}, v5, 3, v{vA2}")
    o(f"s_mov_b32 s{S_A}, {REC_OFF}")
    o("S_rec:")
    o(f"v_cmpx_gt_u32 vcc, v4, v{vI}")
    o(f"s_cbranch_execz S_rec_done")
    o(f"buffer_load_dwordx2 {vr(vR2_,2)}, v{vA2}, {sr(R_WS,4)}, s{S_A} offen{SC}")
    o("s_waitcnt vmcnt(0)")
    o(f"v_bfe_u32 v5, v{vR2_}, 2, 14")
    o(f"v_mad_u32_u16 v{vR2_}, v{vR2_}, s{S_CNT}, v{vLO} op_sel:[1,0,0,0]")
    o(f"v_mad_u32_u24 v3, v5, s{S_D}, v{vAB}")
    o(f"v_lshlrev_b32 v{vAcc}, 8, v5")
    o(f"v_lshl_add_u32 v{vAcc}, v1, 5, v{vAcc}")
    o(f"v_add_u32 v{vAcc}, {ELL}, v{vAcc}")
    o(f"buffer_load_dwordx4 {vr(vD2,4)}, v{vR2_}, {sr(R_TAB,4)}, s{S_B1} offen{SC}")
    o(f"ds_read_b64 {vr(vAU,2)}, v3")
    o("s_waitcnt vmcnt(0) lgkmcnt(0)")
    T = vT2
    o(f"v_lshlrev_b64 {vr(T,2)}, 16, {vr(vD2,2)}")
    o(f"v_lshlrev_b64 {vr(T+4,2)}, 16, {vr(vD2+2,2)}")
    o(f"v_lshlrev_b32 v{T+6}, 16, v{vAU}")
    o(f"v_lshlrev_b32 v{T+7}, 16, v{vAU+1}")
    o(f"v_and_b32 v{vAU}, 0xffff0000, v{vAU}")
    o(f"v_and_b32 v{vAU+1}, 0xffff0000, v{vAU+1}")
    o(f"v_lshrrev_b32 v5, 5, v5")
    o(f"v_lshl_add_u32 v5, v5, 1, s{S_PH}")
    o(f"v_lshrrev_b32 v5, v5, s{S_MODE}")
    o(f"v_and_b32 v5, 1, v5")
    o(f"v_cmp_eq_u32 vcc, 0, v5")
    for r in (T+6, T+7, vAU, vAU+1):
        o(f"v_log_f32 v3, v{r}")
        o("s_nop 0")
        o(f"v_cndmask_b32 v{r}, v{r}, -v3, vcc")
    o(f"v_pk_add_f32 {vr(T,2)}, {vr(T,2)}, {vr(T+6,2)}")
    o(f"v_pk_add_f32 {vr(T+2,2)}, {vr(vD2,2)}, {vr(vAU,2)}")
    o(f"v_pk_fma_f32 {vr(T,2)}, {vr(vR2_,2)}, {vr(vWX,2)}, {vr(T,2)} op_sel:[1,0,0] op_sel_hi:[1,1,1]")
    o(f"v_pk_fma_f32 {vr(T+2,2)}, {vr(vR2_,2)}, {vr(vWX+2,2)}, {vr(T+2,2)} op_sel:[1,0,0] op_sel_hi:[1,1,1]")
    for i in range(4): o(f"v_exp_f32 v{T+i}, v{T+i}")
    o("s_nop 0")
    o(f"v_pk_add_f32 {vr(T,2)}, {vr(T,2)}, 1.0 op_sel_hi:[1,0]")
    o(f"v_pk_add_f32 {vr(T+2,2)}, {vr(T+2,2)}, 1.0 op_sel_hi:[1,0]")
    for i in range(4): o(f"v_rcp_f32 v{T+i}, v{T+i}")
    o("s_nop 0")
    o(f"v_pk_mul_f32 {vr(T+4,2)}, {vr(T+4,2)}, {vr(T,2)}")
    o(f"v_pk_mul_f32 {vr(T+6,2)}, {vr(vD2+2,2)}, {vr(T+2,2)}")
    for i in range(8): o(f"ds_add_f32 v{vAcc}, v{T+i} offset:{4*i}")
    o("s_mov_b64 exec, -1")
    o(f"v_add_u32 v{vI}, 1, v{vI}")
    o(f"v_add_u32 v{vA2}, 8, v{vA2}")
    o("s_branch S_rec")
    o("S_rec_done:")
    o("s_mov_b64 exec, -1")
    o(f"s_add_u32 s{S_PP}, s{S_PP}, 128")
    o(f"s_cmp_lt_u32 s{S_PP}, 256")
    o("s_cbranch_scc1 S_piece")
    o("s_waitcnt lgkmcnt(0)")
    o("s_barrier")
    o(f"s_mov_b32 s{S_PP}, 0")
    o(f"s_movk_i32 s{S_C}, {NPB}")
    o("S_fin:")
    o(f"v_add_u32 v5, s{S_PP}, v{vG}")
    o(f"v_mad_u32_u24 v3, v5, s{S_D}, v{vAB}")
    o(f"v_lshlrev_b32 v{vAcc}, 8, v5")
    o(f"v_lshl_add_u32 v{vAcc}, v1, 5, v{vAcc}")
    o(f"v_add_u32 v{vAcc}, {ELL}, v{vAcc}")
    o(f"v_lshl_add_u32 v{vOA}, v5, 8, v{vOB}")
    o(f"v_cmpx_gt_u32 vcc, s{S_C}, v5")
    o(f"s_cbranch_execz S_fin_next")
    o(f"ds_read2_b64 {vr(vAU+2,4)}, v3 offset0:1 offset1:2")
    o(f"ds_read_b128 {vr(24,4)}, v{vAcc}")
    o(f"ds_read_b128 {vr(28,4)}, v{vAcc} offset:16")
    o("s_waitcnt lgkmcnt(0)")
    finalize(o, 24, 28, None, None, vAU+2, vAU+4, vT, vOA)
    o("S_fin_next:")
    o("s_mov_b64 exec, -1")
    o(f"s_add_u32 s{S_PP}, s{S_PP}, 128")
    o(f"s_cmp_lt_u32 s{S_PP}, 256")
    o("s_cbranch_scc1 S_fin")
    o(f"v_mov_b64 {vr(vWX,2)}, {vr(vW2,2)}")
    o(f"v_mov_b64 {vr(vWX+2,2)}, {vr(vW2+2,2)}")
    o(f"v_add_u32 v{vAB}, {AUP}, v{vAB}")
    o(f"v_add_u32 v{vOB}, 64, v{vOB}")
    o(f"s_mov_b32 s{S_B1}, {TSTRIDE}")
    o(f"s_add_u32 s{S_PH}, s{S_PH}, 1")
    o(f"s_cmp_lt_u32 s{S_PH}, 2")
    o("s_cbranch_scc1 S_half")
    o("L_end:")
    stamp(o, 12)
    stamp_flush(o, 14)
    o("L_exit:")
    o("s_endpgm")

def main():
    global STAMP, PD, OUTF, GSC
    for a in sys.argv[2:]:
        if a.startswith("stamp="): STAMP = int(a[6:])
        elif a.startswith("pd="): PD = int(a[3:])
        elif a.startswith("outf="): OUTF = " " + a[5:].replace("+", " ")
        elif a.startswith("gsc="): GSC = (" " + a[4:].replace("+", " ")).rstrip()
        else: OPT.add(a)
    ref = open(f"cdna_kernels/{NAME}.s.ref").read().split("\n")
    head = [l for l in ref if l.startswith(";") and "@launch" not in l]
    out = "\n".join(head) + "\n"
    out += f"; @launch grid=(256,1,1) block=(1024,1,1) lds={LDS_SIZE}\n"
    out += f'.amdgcn_target "amdgcn-amd-amdhsa--gfx950"\n.text\n.globl {NAME}_kernel\n.p2align 8\n.type {NAME}_kernel,@function\n{NAME}_kernel:\n'
    o = Asm(); kernel(o); out += o.text()
    out += f""".section .rodata,"a"
.p2align 6
.amdhsa_kernel {NAME}_kernel
  .amdhsa_next_free_vgpr 128
  .amdhsa_next_free_sgpr {102 if STAMP is not None else 90}
  .amdhsa_accum_offset 128
  .amdhsa_group_segment_fixed_size 0
  .amdhsa_kernarg_size 96
  .amdhsa_user_sgpr_count 2
  .amdhsa_user_sgpr_kernarg_segment_ptr 1
  .amdhsa_system_sgpr_workgroup_id_x 1
.end_amdhsa_kernel
"""
    path = sys.argv[1] if len(sys.argv) > 1 else f"cdna_kernels/{NAME}.s"
    open(path, "w").write(out)
    print("wrote", path, "LDS", LDS_SIZE, "ELL_ITERS", ELL_ITERS)
main()
```

```python
import sys

NAME = "standalone__edge_featured_mpnn_gatedgcn__graph"
N = 25000; E = 400000
NPB = 196; CH = 1564
TROWS = 25096; TSTRIDE = TROWS*128
DUMMY_ROW = 25088
SEG = 12544
REC_OFF = 4*TSTRIDE
OFF_OFF = REC_OFF + 256*SEG
TF_OFF = OFF_OFF + 128*2048
WS_USED = TF_OFF + 4096
LOG2E_NEG = 0xBFB8AA3B; TINY = 0x03800000; EPS = 0x358637BD
SC = " sc1"
PSC = " sc1"; ESC = " sc1"; RSC = " sc1"
OUTF = " sc1"
GSC = " sc1"
PD = 4
PFW = 8
VE = 72
PESL = 0
WSO = 0
PR = (3, 2, 1, 0)
TSL = 2
TEAM0 = 9
MIR = 13
SL0 = 0; SL1 = 1
NL = 5
NR = 2*NL
HISTA = 0; BASE = 512; DEG = 1024; HIST2 = 2048; FLAG = 2304; SLOT = 2432; TBL = SLOT + 1024; SNODE = TBL + 256; OFFL = SNODE + 1024 + 128
XT = OFFL + 1024; XTS = 8320
WOFF = XT + 7*XTS
RECS = WOFF + 65536
LDS_END = RECS + SEG
AUX = XT; AUS = 200; AUP = 200*AUS
ELL = AUX + 2*AUP
ELL_ITERS = 512
LDS_SIZE = LDS_END + 2048
assert ELL % 16 == 0 and XT % 128 == 0
F_STRUCT, F_RANGE, F_SOFT, F_OFFL, F_W, F_GO, F_TAG, F_TC, F_GD, F_WI = FLAG, FLAG+4, FLAG+8, FLAG+12, FLAG+16, FLAG+20, FLAG+24, FLAG+32, FLAG+64, FLAG+68

STAMP = None; OPT = set(); PFN = 181
def st_reg(i): return 90 + 2*i if i < 6 else 36 + 2*(i-6) if i < 12 else 24 + 2*(i-12)
def gstamp(o, i):
    if "gd" in OPT: stamp(o, i, True)
def stamp(o, i, force=False):
    if STAMP is None: return
    if "gd" in OPT and not force and 5 <= i <= 10: return
    if "clk" in OPT:
        if i in (1, 2): return
        if i == 11: o(f"s_memtime s[{st_reg(1)}:{st_reg(1)+1}]")
        if i == 12: o(f"s_memtime s[{st_reg(2)}:{st_reg(2)+1}]")
    o(f"s_memrealtime s[{st_reg(i)}:{st_reg(i)+1}]")
    o("s_waitcnt lgkmcnt(0)")
def stamp_flush(o, n):
    if STAMP is None: return
    o(f"s_cmp_eq_u32 s{S_WAVE}, {STAMP}")
    o(f"s_cbranch_scc0 L_stf")
    o(f"s_mov_b64 exec, 1")
    o(f"s_mov_b32 s{R_WS+2}, {64<<20}")
    o(f"s_lshl_b32 s{S_A}, s{S_WG}, 7")
    o(f"s_add_u32 s{S_A}, s{S_A}, {32<<20}")
    o(f"v_mov_b32 v0, 0")
    for i in range(n):
        o(f"v_mov_b32 v2, s{st_reg(i)}")
        o(f"v_mov_b32 v3, s{st_reg(i)+1}")
        o(f"buffer_store_dwordx2 v[2:3], v0, {sr(R_WS,4)}, s{S_A} offen offset:{8*i}")
    o(f"s_getreg_b32 s{S_B}, hwreg(HW_REG_XCC_ID)")
    o(f"s_getreg_b32 s{S_C}, hwreg(HW_REG_HW_ID)")
    o(f"v_mov_b32 v2, s{S_B}")
    o(f"v_mov_b32 v3, s{S_C}")
    o(f"buffer_store_dwordx2 v[2:3], v0, {sr(R_WS,4)}, s{S_A} offen offset:{8*14}")
    o(f"L_stf:")

class Asm:
    def __init__(self): self.lines = []
    def __call__(self, s):
        for l in s.split("\n"):
            l = l.strip()
            if l: self.lines.append(("" if l.endswith(":") else "    ") + l)
    def text(self): return "\n".join(self.lines) + "\n"

def vr(a, n): return f"v[{a}:{a+n-1}]"
def sr(a, n): return f"s[{a}:{a+n-1}]"

def srd(o, d, base, nbytes):
    o(f"s_mov_b32 s{d}, s{base}")
    o(f"s_and_b32 s{d+1}, s{base+1}, 0xffff")
    o(f"s_mov_b32 s{d+2}, {nbytes}")
    o(f"s_mov_b32 s{d+3}, 0x20000")

def scan64(o, v):
    for sh in (1, 2, 4, 8):
        o("s_nop 1")
        o(f"v_add_u32_dpp v{v}, v{v}, v{v} row_shr:{sh} row_mask:0xf bank_mask:0xf bound_ctrl:0")
    o("s_nop 1")
    o(f"v_add_u32_dpp v{v}, v{v}, v{v} row_bcast:15 row_mask:0xa bank_mask:0xf")
    o("s_nop 1")
    o(f"v_add_u32_dpp v{v}, v{v}, v{v} row_bcast:31 row_mask:0xc bank_mask:0xf")

def gemm_pair(o, vW, vX, aP, aQ, vWaddr, base_off, extra=None):
    def rd(t):
        for m in range(2):
            b = vW + (t & 1)*8 + m*4
            off = base_off + m*16384 + (t & 1)*2048
            o(f"ds_read_b64_tr_b16 {vr(b,2)}, v{vWaddr + (t >> 1)} offset:{off}")
            o(f"ds_read_b64_tr_b16 {vr(b+2,2)}, v{vWaddr + (t >> 1)} offset:{off + 512}")
    rd(0); rd(1)
    for t in range(8):
        o(f"s_waitcnt lgkmcnt({4 if t < 7 else 0})")
        for m, acc in enumerate((aP, aQ)):
            b = vW + (t & 1)*8 + m*4
            c = "0" if t == 0 else vr(acc, 16)
            o(f"v_mfma_f32_32x32x16_bf16 {vr(acc,16)}, {vr(b,4)}, {vr(vX+4*t,4)}, {c}")
        if t + 2 < 8: rd(t+2)
        if extra: extra(t)
    o("s_nop 15")

def encode4(o, a, d):
    for i in range(4):
        o(f"v_add_u32 v{a+i}, s{S_HALF}, v{a+i}")
    for i in range(1, 4):
        o(f"v_sub_u32_sdwa v{a+i}, v{a+i}, v{a+i-1} dst_sel:DWORD dst_unused:UNUSED_PAD src0_sel:DWORD src1_sel:WORD_1")
    o(f"v_perm_b32 v{d}, v{a+1}, v{a}, s{S_PERM}")
    o(f"v_perm_b32 v{d+1}, v{a+3}, v{a+2}, s{S_PERM}")

S_WG = 2; S_NK = 3
S_X, S_E, S_SRC, S_DST, S_WA, S_WB, S_WC, S_WU, S_WV, S_OUT, S_DBG, S_WS = 4, 6, 8, 10, 12, 14, 16, 18, 20, 22, 24, 26
S_MSK = 4
R_WS = 28; R_W = 32; R_T0 = 36; R_T1 = 40; R_T2 = 44; R_X = 48; R_TAB = 52; R_OUT = 56; R_DBG = 60
S_WAVE = 64; S_HALF = 65; S_PERM = 66; S_SL0 = 67
S_CT = 68; S_EX = 70; S_EPS = 72
S_A = 74; S_B = 75; S_C = 76; S_D = 77
S_BUCKET = 78; S_NODE0 = 79
S_CNT = 80; S_L1 = 81; S_L2 = 82; S_L3 = 83; S_NT = 84; S_MODE = 85; S_NH = 86; S_SPIN = 87; S_PH = 88; S_B1 = 89
S_T0 = S_CNT; S_T1 = S_NT; S_T2 = S_MODE; S_T3 = S_PH; S_RL = S_EX
S_SL = S_L1; S_TILE = S_L2; S_FB = S_L3
S_PP = S_L2
S_SO = 4; S_TASK = 5; S_CUT = 6; S_STEP = 7
vZ = 13

def spin_bound(o, lds=False): o(f"s_mov_b32 s{S_SPIN}, {0x400000 if lds else 0x10000}")
def spin_tail(o, lab, sleep):
    if sleep: o(f"s_sleep {sleep}")
    o(f"s_sub_u32 s{S_SPIN}, s{S_SPIN}, 1")
    o(f"s_cbranch_scc0 {lab}")

def lds_wait(o, lab, vA, off, target, vT, sleep=1):
    sleep = SL1 if sleep else SL0
    spin_bound(o, True)
    o(f"{lab}:")
    o(f"ds_read_b32 v{vT}, v{vA} offset:{off}")
    o("s_waitcnt lgkmcnt(0)")
    o(f"v_readfirstlane_b32 s{S_A}, v{vT}")
    o(f"s_cmp_ge_u32 s{S_A}, {target}")
    o(f"s_cbranch_scc1 {lab}_ok")
    spin_tail(o, lab, sleep)
    o(f"{lab}_ok:")

def lds_inc(o, vA, off):
    o("s_mov_b64 exec, 1")
    o(f"ds_add_u32 v{vA}, v15 offset:{off}")
    o("s_mov_b64 exec, -1")

def soft_barrier(o, lab, target, vT):
    o("s_waitcnt lgkmcnt(0)")
    lds_inc(o, vZ, F_SOFT)
    lds_wait(o, lab, vZ, F_SOFT, target, vT, 0)

def get_tag(o, lab):
    spin_bound(o)
    o(f"{lab}:")
    o(f"buffer_load_dwordx2 v[6:7], v{vZ}, {sr(R_DBG,4)}, 0 offen{PSC}")
    o("s_waitcnt vmcnt(0)")
    o(f"v_readfirstlane_b32 s{S_NK}, v6")
    o(f"v_readfirstlane_b32 s{S_NH}, v7")
    o(f"s_cmp_lg_u32 s{S_NH}, 0")
    o(f"s_cbranch_scc1 {lab}_ok")
    spin_tail(o, lab, 4)
    o(f"{lab}_ok:")

def poll_tables(o, lab, ph, v):
    o(f"v_lshlrev_b32 v3, 4, v2")
    o(f"s_lshl_b32 s{S_C}, s{S_SL0}, 10")
    o(f"s_add_u32 s{S_C}, s{S_C}, {TF_OFF + 1024*ph}")
    spin_bound(o)
    o(f"{lab}:")
    o(f"buffer_load_dwordx4 {vr(v,4)}, v3, {sr(R_WS,4)}, s{S_C} offen{PSC}")
    o("s_waitcnt vmcnt(0)")
    o(f"v_xor_b32 v{v}, s{S_NK}, v{v}")
    o(f"v_xor_b32 v{v+1}, s{S_NH}, v{v+1}")
    o(f"v_xor_b32 v{v+2}, s{S_NK}, v{v+2}")
    o(f"v_xor_b32 v{v+3}, s{S_NH}, v{v+3}")
    o(f"v_or3_b32 v{v}, v{v}, v{v+1}, v{v+2}")
    o(f"v_or_b32 v{v}, v{v}, v{v+3}")
    o(f"v_cmp_ne_u32 vcc, 0, v{v}")
    o(f"s_cbranch_vccz {lab}_ok")
    spin_tail(o, lab, TSL)
    o(f"{lab}_ok:")

def publish_tf(o, ph):
    o(f"s_lshl_b32 s{S_B}, s{S_SL0}, 7")
    o(f"s_add_u32 s{S_B}, s{S_B}, s{S_BUCKET}")
    o(f"s_lshl_b32 s{S_B}, s{S_B}, 3")
    o(f"s_add_u32 s{S_B}, s{S_B}, {TF_OFF + 1024*ph}")
    o(f"v_mov_b32 v6, s{S_NK}")
    o(f"v_mov_b32 v7, s{S_NH}")
    o("s_mov_b64 exec, 1")
    o(f"buffer_store_dwordx2 v[6:7], v{vZ}, {sr(R_WS,4)}, s{S_B} offen sc1")
    o("s_mov_b64 exec, -1")

def finalize(o, vDen, vNum, vIX, vIY, vU, vXr, vT, vOA):
    if vIX is not None:
        o(f"v_pk_fma_f32 {vr(vDen,2)}, {vr(vDen,2)}, {vr(vIX,2)}, {sr(S_EPS,2)}")
        o(f"v_pk_fma_f32 {vr(vDen+2,2)}, {vr(vDen+2,2)}, {vr(vIY,2)}, {sr(S_EPS,2)}")
        o(f"v_pk_mul_f32 {vr(vNum,2)}, {vr(vNum,2)}, {vr(vIX,2)}")
        o(f"v_pk_mul_f32 {vr(vNum+2,2)}, {vr(vNum+2,2)}, {vr(vIY,2)}")
    else:
        o(f"v_pk_add_f32 {vr(vDen,2)}, {vr(vDen,2)}, {sr(S_EPS,2)}")
        o(f"v_pk_add_f32 {vr(vDen+2,2)}, {vr(vDen+2,2)}, {sr(S_EPS,2)}")
    o(f"v_lshlrev_b32 v{vT}, 16, v{vU}")
    o(f"v_lshlrev_b32 v{vT+1}, 16, v{vU+1}")
    o(f"v_and_b32 v{vT+2}, 0xffff0000, v{vU}")
    o(f"v_and_b32 v{vT+3}, 0xffff0000, v{vU+1}")
    for i in range(4): o(f"v_rcp_f32 v{vDen+i}, v{vDen+i}")
    o(f"v_lshlrev_b32 v{vT+4}, 16, v{vXr}")
    o(f"v_lshlrev_b32 v{vT+5}, 16, v{vXr+1}")
    o(f"v_pk_fma_f32 {vr(vT,2)}, {vr(vNum,2)}, {vr(vDen,2)}, {vr(vT,2)}")
    o(f"v_pk_fma_f32 {vr(vT+2,2)}, {vr(vNum+2,2)}, {vr(vDen+2,2)}, {vr(vT+2,2)}")
    o(f"v_and_b32 v{vT+6}, 0xffff0000, v{vXr}")
    o(f"v_and_b32 v{vT+7}, 0xffff0000, v{vXr+1}")
    for i in range(4): o(f"v_max_f32 v{vT+i}, 0, v{vT+i}")
    o(f"v_pk_add_f32 {vr(vT,2)}, {vr(vT,2)}, {vr(vT+4,2)}")
    o(f"v_pk_add_f32 {vr(vT+2,2)}, {vr(vT+2,2)}, {vr(vT+6,2)}")
    o(f"v_cvt_pk_bf16_f32 v{vT+4}, v{vT}, v{vT+2}")
    o(f"v_cvt_pk_bf16_f32 v{vT+5}, v{vT+1}, v{vT+3}")
    o(f"buffer_store_dwordx2 {vr(vT+4,2)}, v{vOA}, {sr(R_OUT,4)}, 0 offen{OUTF}")

def tag_parts(o):
    o(f"s_lshr_b32 s{S_T0}, s{S_NK}, 12")
    o(f"s_lshr_b32 s{S_T1}, s{S_NK}, 18")
    o(f"s_lshr_b32 s{S_T2}, s{S_NH}, 16")

def xsrc(o, d=12, t=3, u=4):
    o(f"v_lshrrev_b32 v{d}, 4, v2")
    o(f"v_lshlrev_b32 v{t}, 2, v{d}")
    o(f"v_and_b32 v{u}, 15, v2")
    o(f"v_xor_b32 v{t}, v{t}, v{u}")
    o(f"v_lshlrev_b32 v{t}, 4, v{t}")
    o(f"v_lshl_add_u32 v{d}, v{d}, 8, v{t}")

def kernel(o):
    vX = 16; vW = 48; aP = 64; aQ = 80; vD = 96; vREC = 104
    vWA = 120
    vWC = 124
    vSTG = 8
    NTM = 16 - TEAM0
    o(f"s_cmp_ge_u32 s{S_WG}, 256")
    o(f"s_cbranch_scc1 L_exit")
    stamp(o, 0)
    o(f"s_load_dwordx16 s[4:19], s[0:1], 0")
    o(f"s_load_dwordx8 s[20:27], s[0:1], 64")
    o(f"s_getpc_b64 {sr(S_EX,2)}")
    o(f"v_lshlrev_b32 v3, 6, v0")
    o(f"s_movk_i32 s{S_A}, {1 if 'nocpf' in OPT else PFN}")
    o(f"v_cmpx_gt_u32 vcc, s{S_A}, v0")
    o(f"global_load_dword v119, v3, {sr(S_EX,2)}")
    o("s_mov_b64 exec, -1")
    o(f"v_lshrrev_b32 v1, 6, v0")
    o(f"v_and_b32 v2, 63, v0")
    o(f"v_readfirstlane_b32 s{S_WAVE}, v1")
    o(f"v_lshlrev_b32 v9, 2, v0")
    o(f"v_mov_b32 v{vZ}, 0")
    o(f"s_movk_i32 s{S_A}, {SLOT//4}")
    o(f"v_cmpx_gt_u32 vcc, s{S_A}, v0")
    o(f"ds_write_b32 v9, v{vZ}")
    o("s_mov_b64 exec, -1")
    o(f"s_cmp_lt_u32 s{S_WAVE}, {TEAM0}")
    o(f"s_cbranch_scc1 L_noprio")
    o("s_setprio 3")
    o("L_noprio:")
    o(f"s_mov_b32 s{S_HALF}, 0x8000")
    o(f"s_mov_b32 s{S_PERM}, 0x07060302")
    o(f"s_mov_b32 s{S_CT}, {LOG2E_NEG:#x}")
    o(f"s_mov_b32 s{S_CT+1}, {TINY:#x}")
    o(f"s_mov_b32 s{S_EPS}, {EPS:#x}")
    o(f"s_mov_b32 s{S_EPS+1}, {EPS:#x}")
    o(f"s_bfe_u32 s{S_SL0}, s{S_WG}, 0x10002")
    o(f"s_lshl_b32 s{S_SL0}, s{S_SL0}, 1")
    o(f"s_lshr_b32 s{S_BUCKET}, s{S_WG}, 3")
    o(f"s_and_b32 s{S_A}, s{S_WG}, 3")
    o(f"s_lshl_b32 s{S_A}, s{S_A}, 5")
    o(f"s_add_u32 s{S_BUCKET}, s{S_BUCKET}, s{S_A}")
    o(f"s_mul_i32 s{S_NODE0}, s{S_BUCKET}, {NPB}")
    o(f"v_mov_b32 v15, 1")
    o(f"v_and_b32 v1, 7, v2")
    o(f"v_lshlrev_b32 v14, 3, v1")
    o(f"v_subrev_u32 v4, {TEAM0*64}, v0")
    o(f"v_lshlrev_b32 v3, 4, v4")
    o(f"v_lshlrev_b32 v5, 3, v4")
    o(f"s_mul_i32 s{S_C}, s{S_WG}, {CH*4}")
    o(f"s_mul_i32 s{S_B}, s{S_WG}, {CH*2}")
    o(f"v_lshrrev_b32 v12, 3, v2")
    o(f"v_lshrrev_b32 v6, 2, v2")
    o(f"v_and_b32 v6, 4, v6")
    o(f"v_xor_b32 v6, v6, v1")
    o(f"v_lshlrev_b32 v6, 4, v6")
    o(f"v_lshl_add_u32 v12, v12, 8, v6")
    o("s_waitcnt lgkmcnt(0)")
    if WSO:
        o(f"s_add_u32 s{S_WS}, s{S_WS}, {WSO}")
        o(f"s_addc_u32 s{S_WS+1}, s{S_WS+1}, 0")
    srd(o, R_DBG, S_DBG, 256)
    o(f"s_cmp_eq_u32 s{S_WAVE}, 8")
    o(f"s_cbranch_scc0 L_notag")
    o(f"s_cmp_eq_u32 s{S_WG}, 0")
    o(f"s_cbranch_scc0 L_notag")
    o(f"s_memrealtime {sr(S_EX,2)}")
    o("s_waitcnt lgkmcnt(0)")
    o(f"s_lshl_b32 s{S_A}, s{S_EX}, 22")
    o(f"s_lshr_b64 {sr(S_EX,2)}, {sr(S_EX,2)}, 10")
    o(f"s_or_b32 s{S_D}, s{S_EX}, 0x80000000")
    o(f"v_mov_b32 v6, s{S_A}")
    o(f"v_mov_b32 v7, s{S_D}")
    o("s_mov_b64 exec, 1")
    o(f"buffer_store_dwordx2 v[6:7], v{vZ}, {sr(R_DBG,4)}, 0 offen sc1")
    o("s_mov_b64 exec, -1")
    o("L_notag:")
    srd(o, R_T0, S_DST, E*4)
    srd(o, R_T1, S_SRC, E*4)
    srd(o, R_T2, S_E, E*2)
    vDST, vSRC, vE, vB, vR, vRec = 16, 20, 24, 28, 32, 36
    o(f"s_cmp_lt_u32 s{S_WAVE}, {TEAM0}")
    o(f"s_cbranch_scc1 L_noedge")
    o(f"buffer_load_dwordx4 {vr(vDST,4)}, v3, {sr(R_T0,4)}, s{S_C} offen")
    o(f"buffer_load_dwordx4 {vr(vSRC,4)}, v3, {sr(R_T1,4)}, s{S_C} offen")
    o(f"buffer_load_dwordx2 {vr(vE,2)}, v5, {sr(R_T2,4)}, s{S_B} offen")
    o("L_noedge:")
    if "b0late" not in OPT: o("s_barrier")
    o(f"s_cmp_lt_u32 s{S_WAVE}, 8")
    o(f"s_cbranch_scc0 L_now")
    o(f"s_bitcmp1_b32 s{S_WAVE}, 2")
    o(f"s_cselect_b32 s{S_A}, s{S_WA}, s{S_WB}")
    o(f"s_cselect_b32 s{S_B}, s{S_WA+1}, s{S_WB+1}")
    o(f"s_cselect_b32 s{S_C}, s{S_WU}, s{S_WV}")
    o(f"s_cselect_b32 s{S_D}, s{S_WU+1}, s{S_WV+1}")
    o(f"s_bitcmp1_b32 s{S_WAVE}, 1")
    o(f"s_cselect_b32 s{R_W}, s{S_C}, s{S_A}")
    o(f"s_cselect_b32 s{R_W+1}, s{S_D}, s{S_B}")
    o(f"s_and_b32 s{R_W+1}, s{R_W+1}, 0xffff")
    o(f"s_mov_b32 s{R_W+2}, 32768")
    o(f"s_mov_b32 s{R_W+3}, 0x20000")
    o(f"s_and_b32 s{S_A}, s{S_WAVE}, 1")
    o(f"s_lshl_b32 s{S_A}, s{S_A}, 14")
    o(f"s_lshl_b32 s{S_B}, s{S_SL0}, 6")
    o(f"s_add_u32 s{S_A}, s{S_A}, s{S_B}")
    o(f"s_lshl_b32 s{S_C}, s{S_WAVE}, 13")
    for i in range(8):
        o(f"s_add_u32 m0, s{S_C}, {WOFF + 1024*i}")
        o(f"s_add_u32 s{S_D}, s{S_A}, {2048*i}")
        o(f"buffer_load_dwordx4 v12, {sr(R_W,4)}, s{S_D} offen lds")
    if "b0late" not in OPT: lds_inc(o, vZ, F_WI)
    o("L_now:")
    if "b0late" in OPT: o("s_barrier")
    srd(o, R_W, S_WC, 256)
    o(f"s_lshl_b32 s{S_B}, s{S_SL0}, 6")
    o(f"buffer_load_dwordx2 {vr(vWC,2)}, v14, {sr(R_W,4)}, s{S_B} offen")
    o(f"buffer_load_dwordx2 {vr(vWC+2,2)}, v14, {sr(R_W,4)}, s{S_B} offen offset:64")
    srd(o, R_X, S_X, N*256)
    srd(o, R_WS, S_WS, WS_USED)
    srd(o, R_OUT, S_OUT, N*256)
    o(f"s_mul_i32 s{S_A}, s{S_SL0}, {TSTRIDE}")
    o(f"s_add_u32 s{R_TAB}, s{S_WS}, s{S_A}")
    o(f"s_addc_u32 s{R_TAB+1}, s{S_WS+1}, 0")
    o(f"s_and_b32 s{R_TAB+1}, s{R_TAB+1}, 0xffff")
    o(f"s_mov_b32 s{R_TAB+2}, {2*TSTRIDE}")
    o(f"s_mov_b32 s{R_TAB+3}, 0x20000")
    o(f"s_cmp_lt_u32 s{S_WAVE}, {TEAM0}")
    o(f"s_cbranch_scc1 L_gemm")
    o(f"s_cmp_eq_u32 s{S_WG}, 255")
    o(f"s_movk_i32 s{S_C}, {CH//4}")
    o(f"s_cselect_b32 s{S_C}, {(E-255*CH)//4}, s{S_C}")
    o(f"s_mov_b32 s{S_B}, 85599")
    o(f"s_movk_i32 s{S_D}, {NPB}")
    o("s_waitcnt vmcnt(2)")
    o(f"s_cmp_eq_u32 s{S_WAVE}, 15")
    o(f"s_cbranch_scc0 L_notl")
    o(f"buffer_load_dwordx2 v[48:49], v{vZ}, {sr(R_DBG,4)}, 0 offen{PSC}")
    o("L_notl:")
    stamp(o, 1)
    for r in range(4):
        o(f"v_mul_u32_u24 v{vB+r}, s{S_B}, v{vDST+r}")
        o(f"v_lshrrev_b32 v{vB+r}, 24, v{vB+r}")
        o(f"v_mul_u32_u24 v3, s{S_D}, v{vB+r}")
        o(f"v_sub_u32 v3, v{vDST+r}, v3")
        o(f"v_lshlrev_b32 v3, 2, v3")
        o(f"v_lshl_or_b32 v{vRec+2*r}, v{vSRC+r}, 16, v3")
        o(f"v_lshlrev_b32 v{vB+r}, 2, v{vB+r}")
        if r & 1: o(f"v_and_b32 v{vRec+2*r+1}, 0xffff0000, v{vE+(r>>1)}")
        else:     o(f"v_lshlrev_b32 v{vRec+2*r+1}, 16, v{vE+(r>>1)}")
    o(f"v_cmpx_gt_u32 vcc, s{S_C}, v4")
    for r in range(4):
        o(f"ds_add_rtn_u32 v{vR+r}, v{vB+r}, v15 offset:{HISTA}")
    o("s_mov_b64 exec, -1")
    o(f"v_lshlrev_b32 v8, 3, v2")
    o(f"s_cmp_eq_u32 s{S_WAVE}, 14")
    o(f"s_cbranch_scc0 L_noxd")
    xsrc(o, 46, 44, 45)
    o(f"s_add_u32 s{S_A}, s{S_NODE0}, {16*TEAM0}")
    o(f"s_lshl_b32 s{S_A}, s{S_A}, 8")
    for w in range(TEAM0, 13):
        for i in range(4 if w < 12 else 1):
            o(f"s_mov_b32 m0, {XT + (w >> 1)*XTS + (w & 1)*4160 + 16*i}")
            o("s_nop 0")
            o(f"buffer_load_dwordx4 v46, {sr(R_X,4)}, s{S_A} offen offset:{i*1024} lds")
        if w < 12: o(f"s_add_u32 s{S_A}, s{S_A}, 4096")
    o("L_noxd:")
    soft_barrier(o, "L_sb1", NTM, 3)
    o(f"s_cmp_eq_u32 s{S_WAVE}, 15")
    o(f"s_cbranch_scc0 L_notl2")
    o(f"buffer_load_dwordx2 v[70:71], v{vZ}, {sr(R_DBG,4)}, 0 offen{PSC}")
    o("L_notl2:")
    o(f"ds_read_b64 v[6:7], v8 offset:{HISTA}")
    o("s_waitcnt lgkmcnt(0)")
    o(f"v_add_u32 v11, v6, v7")
    scan64(o, 11)
    o(f"v_sub_u32 v11, v11, v7")
    o(f"v_sub_u32 v10, v11, v6")
    o(f"ds_write_b64 v8, v[10:11] offset:{BASE}")
    for r in range(4):
        o(f"ds_read_b32 v{vDST+r}, v{vB+r} offset:{BASE}")
    o(f"v_lshl_or_b32 v10, v6, 11, v10")
    o(f"v_lshl_or_b32 v11, v7, 11, v11")
    o(f"v_mov_b32 v3, {RECS}")
    o("s_waitcnt lgkmcnt(0)")
    o(f"v_cmpx_gt_u32 vcc, s{S_C}, v4")
    for r in range(4):
        o(f"v_add_u32 v{vDST+r}, v{vDST+r}, v{vR+r}")
        o(f"v_lshl_add_u32 v{vDST+r}, v{vDST+r}, 3, v3")
        o(f"ds_write_b64 v{vDST+r}, {vr(vRec+2*r,2)}")
    o("s_mov_b64 exec, -1")
    o("s_waitcnt lgkmcnt(0)")
    lds_inc(o, vZ, F_SOFT)
    stamp(o, 2)
    o(f"s_cmp_lt_u32 s{S_WAVE}, 14")
    o(f"s_cbranch_scc1 L_gemm")
    o(f"s_cmp_eq_u32 s{S_WAVE}, 14")
    o(f"s_cbranch_scc1 L_w14")
    o("s_waitcnt vmcnt(1)")
    o(f"v_readfirstlane_b32 s{S_NK}, v48")
    o(f"v_readfirstlane_b32 s{S_NH}, v49")
    o(f"s_cmp_lg_u32 s{S_NH}, 0")
    o(f"s_cbranch_scc1 L_ga_ok")
    o("s_waitcnt vmcnt(0)")
    o(f"v_readfirstlane_b32 s{S_NK}, v70")
    o(f"v_readfirstlane_b32 s{S_NH}, v71")
    o(f"s_cmp_lg_u32 s{S_NH}, 0")
    o(f"s_cbranch_scc1 L_ga_ok")
    get_tag(o, "L_ga")
    o(f"v_or_b32 v{VE}, s{S_NK}, v10")
    o(f"v_mov_b32 v{VE+1}, s{S_NH}")
    o(f"v_or_b32 v{VE+2}, s{S_NK}, v11")
    o(f"v_mov_b32 v{VE+3}, s{S_NH}")
    o(f"v_mov_b32 v6, s{S_NK}")
    o(f"v_mov_b32 v7, s{S_NH}")
    o(f"v_lshlrev_b32 v4, 4, v2")
    if "entlast" not in OPT:
        o(f"s_lshl_b32 s{S_B}, s{S_WG}, 10")
        o(f"s_add_u32 s{S_B}, s{S_B}, {OFF_OFF}")
        o(f"buffer_store_dwordx4 {vr(VE,4)}, v4, {sr(R_WS,4)}, s{S_B} offen{SC}")
    o(f"ds_write_b64 v{vZ}, v[6:7] offset:{F_TAG}")
    stamp(o, 3)
    lds_wait(o, "L_sb2", vZ, F_SOFT, 2*NTM, 3, 0)
    o(f"v_add_u32 v12, {RECS}, v4")
    for i in range(13):
        o(f"ds_read_b128 {vr(16+4*i,4)}, v12 offset:{i*1024}")
    tag_parts(o)
    o(f"s_mul_i32 s{S_B}, s{S_WG}, {SEG}")
    o(f"s_add_u32 s{S_B}, s{S_B}, {REC_OFF}")
    o(f"v_mov_b32 v6, 0xfc00")
    o(f"v_mov_b32 v7, 0xffff")
    for i in range(13):
        if i and i % 4 == 0: o(f"s_add_u32 s{S_B}, s{S_B}, 4096")
        o(f"s_waitcnt lgkmcnt({12-i})")
        o(f"v_bfi_b32 v{16+4*i}, v6, s{S_T0}, v{16+4*i}")
        o(f"v_bfi_b32 v{17+4*i}, v7, s{S_NH}, v{17+4*i}")
        o(f"v_bfi_b32 v{18+4*i}, v6, s{S_T1}, v{18+4*i}")
        o(f"v_bfi_b32 v{19+4*i}, v7, s{S_T2}, v{19+4*i}")
        if i == 12: o("s_mov_b64 exec, 0xffff")
        o(f"buffer_store_dwordx4 {vr(16+4*i,4)}, v4, {sr(R_WS,4)}, s{S_B} offen offset:{(i&3)*1024}{SC}")
    o("s_mov_b64 exec, -1")
    if "entlast" in OPT:
        if "drain" in OPT: o("s_waitcnt vmcnt(0)")
        o(f"s_lshl_b32 s{S_B}, s{S_WG}, 10")
        o(f"s_add_u32 s{S_B}, s{S_B}, {OFF_OFF}")
        o(f"buffer_store_dwordx4 {vr(VE,4)}, v4, {sr(R_WS,4)}, s{S_B} offen{SC}")
    stamp(o, 4)
    o(f"s_cmp_eq_u32 s{S_BUCKET}, 127")
    o(f"s_cbranch_scc0 L_rec")
    o(f"v_lshrrev_b32 v3, 3, v2")
    o(f"s_mov_b32 s{S_B}, {TSTRIDE}")
    o(f"v_mul_lo_u32 v3, v3, s{S_B}")
    o(f"v_lshl_add_u32 v3, v1, 4, v3")
    o(f"s_mov_b32 s{S_B}, {DUMMY_ROW*128}")
    o(f"v_mov_b32 v20, 0x7f007f00")
    o(f"v_mov_b32 v21, 0x7f007f00")
    o(f"v_mov_b32 v22, 0")
    o(f"v_mov_b32 v23, 0")
    o("s_mov_b64 exec, 0xffff")
    o(f"buffer_store_dwordx4 {vr(20,4)}, v3, {sr(R_TAB,4)}, s{S_B} offen{SC}")
    o("s_mov_b64 exec, -1")
    o("s_branch L_rec")
    o("L_w14:")
    def tcinc():
        o(f"v_mov_b32 v4, 2")
        o("s_mov_b64 exec, 1")
        o(f"ds_add_u32 v{vZ}, v15 offset:{F_TC+16}")
        o(f"ds_add_u32 v{vZ}, v4 offset:{F_TC+20}")
        o(f"ds_add_u32 v{vZ}, v4 offset:{F_TC+24}")
        o("s_mov_b64 exec, -1")
    def pollissue():
        for i in range(4):
            o(f"buffer_load_dwordx2 {vr(16+2*i,2)}, v3, {sr(R_WS,4)}, s{S_B} offen offset:{1024*i}{ESC}")
    o(f"v_lshlrev_b32 v3, 12, v2")
    o(f"s_lshl_b32 s{S_B}, s{S_BUCKET}, 3")
    o(f"s_add_u32 s{S_B}, s{S_B}, {OFF_OFF}")
    if "pe" in OPT:
        if PESL: o(f"s_sleep {PESL}")
        pollissue()
        o("s_waitcnt vmcnt(4)")
    else:
        o("s_waitcnt vmcnt(0)")
    tcinc()
    lds_wait(o, "L_wtag", vZ, F_TAG+4, 1, 5)
    o(f"ds_read_b32 v5, v{vZ} offset:{F_TAG}")
    o(f"s_mov_b32 s{S_NH}, s{S_A}")
    o("s_waitcnt lgkmcnt(0)")
    o(f"v_readfirstlane_b32 s{S_NK}, v5")
    spin_bound(o)
    if "pe" in OPT: o("s_branch L_pa1")
    o("L_pa:")
    pollissue()
    o("L_pa1:")
    o("s_waitcnt vmcnt(0)")
    for i in range(4):
        o(f"v_xor_b32 v{24+i}, s{S_NK}, v{16+2*i}")
        o(f"v_xor_b32 v{17+2*i}, s{S_NH}, v{17+2*i}")
    o(f"v_or3_b32 v6, v24, v25, v26")
    o(f"v_or_b32 v6, v6, v27")
    o(f"v_lshrrev_b32 v6, 22, v6")
    o(f"v_or3_b32 v6, v6, v17, v19")
    o(f"v_or3_b32 v6, v6, v21, v23")
    o(f"v_cmpx_ne_u32 vcc, 0, v6")
    o(f"s_cbranch_execz L_pa_ok")
    spin_tail(o, "L_pa", 2)
    o("L_pa_ok:")
    o("s_mov_b64 exec, -1")
    if "cpf3" in OPT:
        o(f"s_getpc_b64 {sr(S_EX,2)}")
        o(f"s_add_u32 s{S_EX}, s{S_EX}, L_rec-L_pa_ok-16")
        o(f"s_addc_u32 s{S_EX+1}, s{S_EX+1}, 0")
        o(f"v_lshlrev_b32 v3, 7, v2")
        o(f"s_mov_b32 exec_hi, 0xfff")
        o(f"global_load_dword v52, v3, {sr(S_EX,2)}")
        o("s_mov_b64 exec, -1")
    stamp(o, 3)
    o(f"v_lshlrev_b32 v3, 4, v2")
    o(f"ds_write_b128 v3, {vr(24,4)} offset:{OFFL}")
    o("s_waitcnt lgkmcnt(0)")
    o(f"ds_write_b32 v{vZ}, v15 offset:{F_OFFL}")
    o("s_branch L_rec")
    o("L_gemm:")
    if "gp" not in OPT and "gp2" not in OPT: o("s_setprio 0")
    if "gp2" in OPT:
        o(f"s_cmp_lt_u32 s{S_WAVE}, 4")
        o("s_cbranch_scc1 L_gp")
        o("s_setprio 1")
        o(f"s_cmp_lt_u32 s{S_WAVE}, 8")
        o("s_cbranch_scc1 L_gp")
        o("s_setprio 2")
        o("L_gp:")
    xsrc(o)
    if "nowi" not in OPT and "b0late" not in OPT: lds_wait(o, "L_wi", vZ, F_WI, 8, 3, 0)
    o(f"s_lshr_b32 s{S_TILE}, s{S_WAVE}, 1")
    o(f"s_and_b32 s{S_FB}, s{S_WAVE}, 1")
    o(f"s_add_u32 s{S_SL}, s{S_SL0}, s{S_FB}")
    o(f"s_lshl_b32 s{S_A}, s{S_WAVE}, 4")
    o(f"s_add_u32 s{S_A}, s{S_A}, s{S_NODE0}")
    o(f"s_lshl_b32 s{S_A}, s{S_A}, 8")
    o(f"s_mul_i32 s{S_C}, s{S_TILE}, {XTS}")
    o(f"s_add_u32 s{S_C}, s{S_C}, {XT}")
    o(f"s_mul_i32 s{S_B}, s{S_FB}, 4160")
    o(f"s_add_u32 s{S_B}, s{S_B}, s{S_C}")
    o(f"s_cmp_ge_u32 s{S_WAVE}, {TEAM0}")
    o(f"s_cbranch_scc1 L_xdone")
    for i in range(4):
        o(f"s_add_u32 m0, s{S_B}, {16*i}")
        o("s_nop 0")
        o(f"buffer_load_dwordx4 v12, {sr(R_X,4)}, s{S_A} offen offset:{i*1024} lds")
    o("L_xdone:")
    o(f"s_cmp_lt_u32 s{S_WAVE}, 8")
    o(f"s_cbranch_scc0 L_w4")
    o("s_waitcnt vmcnt(4)")
    lds_inc(o, vZ, F_W)
    o("L_w4:")
    if STAMP is not None and STAMP < TEAM0: stamp(o, 1)
    o(f"v_and_b32 v6, 31, v2")
    o(f"v_lshrrev_b32 v7, 5, v2")
    o(f"v_lshrrev_b32 v3, 2, v6")
    o(f"s_movk_i32 s{S_A}, 1040")
    o(f"v_mul_u32_u24 v3, s{S_A}, v3")
    o(f"v_and_b32 v12, 3, v6")
    o(f"v_lshl_add_u32 v3, v12, 8, v3")
    o(f"v_lshl_add_u32 v3, v7, 4, v3")
    o(f"v_add_u32 v3, s{S_C}, v3")
    o(f"v_xor_b32 v12, s{S_SL}, v12")
    for u in range(4):
        o(f"v_xor_b32 v4, {u}, v12")
        o(f"v_lshl_add_u32 v{vD+u}, v4, 6, v3")
    o(f"v_bfe_u32 v3, v2, 2, 2")
    o(f"v_lshl_add_u32 v8, v7, 3, v3")
    o(f"v_lshlrev_b32 v8, 7, v8")
    o(f"v_lshrrev_b32 v3, 1, v3")
    o(f"v_xor_b32 v3, s{S_FB}, v3")
    o(f"v_lshl_add_u32 v8, v3, 6, v8")
    o(f"v_bfe_u32 v3, v2, 4, 1")
    o(f"v_lshl_add_u32 v8, v3, 5, v8")
    o(f"v_and_b32 v3, 3, v2")
    o(f"v_lshl_add_u32 v8, v3, 3, v8")
    for u in range(4):
        o(f"s_xor_b32 s{S_A}, s{S_SL}, {u}")
        o(f"s_lshl_b32 s{S_A}, s{S_A}, 12")
        o(f"s_add_u32 s{S_A}, s{S_A}, {WOFF}")
        o(f"v_add_u32 v{vWA+u}, s{S_A}, v8")
    o(f"s_lshl_b32 s{S_A}, s{S_TILE}, 2")
    o(f"v_mov_b32 v11, s{S_A}")
    o(f"s_lshl_b32 s{S_D}, s{S_FB}, 12")
    o(f"s_add_u32 s{S_D}, s{S_D}, s{S_C}")
    o("s_waitcnt vmcnt(0)")
    o(f"s_cmp_ge_u32 s{S_WAVE}, {TEAM0}")
    o(f"s_cbranch_scc1 L_noinc")
    lds_inc(o, 11, F_TC)
    o("L_noinc:")
    lds_wait(o, "L_wt", 11, F_TC, 2, 3, 0)
    stamp(o, 2 if STAMP is not None and STAMP < TEAM0 else 3)
    for t in range(8):
        o(f"ds_read_b128 {vr(vX+4*t,4)}, v{vD+(t>>1)} offset:{(t&1)*32}")
    o("s_waitcnt lgkmcnt(0)")
    lds_inc(o, 11, F_TC)
    lds_wait(o, "L_ww", vZ, F_W, 8, 3)
    gstamp(o, 5)
    gemm_pair(o, vW, vX, aP, aQ, vWA, 0)
    gstamp(o, 6)
    for i in range(0, 16, 2):
        o(f"v_pk_fma_f32 {vr(aP+i,2)}, {vr(aP+i,2)}, {sr(S_CT,2)}, {sr(S_CT,2)} op_sel:[0,0,1] op_sel_hi:[1,0,1]")
    for i in range(0, 16, 2):
        o(f"v_pk_add_f32 {vr(aQ+i,2)}, {vr(aQ+i,2)}, {sr(S_CT,2)} op_sel:[0,1] op_sel_hi:[1,1]")
    lds_wait(o, "L_wu", 11, F_TC, 4, 3, 0)
    gstamp(o, 7)
    o(f"v_and_b32 v3, 7, v6")
    o(f"v_xor_b32 v3, v3, v7")
    o(f"v_lshlrev_b32 v3, 4, v3")
    o(f"v_lshl_add_u32 v3, v6, 7, v3")
    o(f"v_add_u32 v3, s{S_D}, v3")
    for q in range(4):
        d = vD + (q & 1)*4
        encode4(o, aP+4*q, d); encode4(o, aQ+4*q, d+2)
        if q: o(f"v_xor_b32 v3, {32*(q ^ (q-1))}, v3")
        o(f"ds_write_b128 v3, {vr(d,4)}")
    o(f"v_lshrrev_b32 v3, 3, v2")
    o(f"v_xor_b32 v10, v1, v3")
    o(f"v_lshlrev_b32 v10, 4, v10")
    o(f"v_lshl_add_u32 v10, v3, 7, v10")
    o(f"v_add_u32 v10, s{S_D}, v10")
    o(f"s_lshl_b32 s{S_B1}, s{S_TILE}, 5")
    o(f"s_add_u32 s{S_B1}, s{S_B1}, s{S_NODE0}")
    o(f"s_lshl_b32 s{S_B1}, s{S_B1}, 7")
    def tab_read():
        for i in range(4):
            o(f"ds_read_b128 {vr(aP+4*i,4)}, v10 offset:{i*1024}")
    def tab_store(lab, counted):
        o(f"v_lshlrev_b32 v3, 4, v2")
        o(f"s_cmp_lt_u32 s{S_WAVE}, 12")
        o(f"s_cbranch_scc1 {lab}_full")
        if counted: o("s_waitcnt lgkmcnt(0)")
        o("s_mov_b32 exec_hi, 0")
        o(f"buffer_store_dwordx4 {vr(aP,4)}, v3, {sr(R_TAB,4)}, s{S_B1} offen{SC}")
        o("s_mov_b64 exec, -1")
        o(f"s_branch {lab}")
        o(f"{lab}_full:")
        for i in range(4):
            if counted: o(f"s_waitcnt lgkmcnt({3-i})")
            o(f"buffer_store_dwordx4 {vr(aP+4*i,4)}, v3, {sr(R_TAB,4)}, s{S_B1} offen offset:{i*1024}{SC}")
        o(f"{lab}:")
    o(f"s_mul_i32 s{S_A}, s{S_FB}, {TSTRIDE}")
    o(f"s_add_u32 s{S_B1}, s{S_B1}, s{S_A}")
    gstamp(o, 8)
    o("s_waitcnt lgkmcnt(0)")
    gstamp(o, 9)
    if "ist" not in OPT:
        tab_read()
        tab_store("L_st_done", True)
        gemm_pair(o, vW, vX, aP, aQ, vWA, 32768)
    else:
        for i in range(4):
            o(f"ds_read_b128 {vr(104+4*i,4)}, v10 offset:{i*1024}")
        o(f"v_lshlrev_b32 v4, 4, v2")
        o(f"s_cmp_lt_u32 s{S_WAVE}, 12")
        o(f"s_cselect_b32 s{S_T0}, -1, 0")
        def extra(t):
            if t < 4:
                o(f"s_mov_b32 exec_hi, s{S_T0}")
                if t: o(f"s_mov_b32 exec_lo, s{S_T0}")
                o(f"buffer_store_dwordx4 {vr(104+4*t,4)}, v4, {sr(R_TAB,4)}, s{S_B1} offen offset:{t*1024}{SC}")
                o("s_mov_b64 exec, -1")
        gemm_pair(o, vW, vX, aP, aQ, vWA, 32768, extra)
    gstamp(o, 10)
    for i in range(0, 16, 2):
        o(f"v_pk_mul_f32 {vr(aP+i,2)}, {vr(aP+i,2)}, {sr(S_CT,2)} op_sel_hi:[1,0]")
    for q in range(4):
        o(f"v_cvt_pk_bf16_f32 v{vW+4*q+2}, v{aQ+4*q}, v{aQ+4*q+1}")
        o(f"v_cvt_pk_bf16_f32 v{vW+4*q+3}, v{aQ+4*q+2}, v{aQ+4*q+3}")
    o(f"v_max3_f32 v3, |v{aP}|, |v{aP+1}|, |v{aP+2}|")
    for i in range(3, 15, 2):
        o(f"v_max3_f32 v3, v3, |v{aP+i}|, |v{aP+i+1}|")
    o(f"v_max_f32 v3, v3, |v{aP+15}|")
    o(f"s_mov_b32 s{S_A}, 0x42700000")
    o(f"s_cmp_ge_u32 s{S_WAVE}, 12")
    o(f"s_cselect_b32 s{S_EX}, 0xf, -1")
    o(f"v_cmp_lt_f32 vcc, s{S_A}, v3")
    o(f"s_mov_b32 s{S_EX+1}, s{S_EX}")
    o(f"s_and_b64 vcc, vcc, {sr(S_EX,2)}")
    o(f"s_cbranch_scc0 L_doexp")
    o(f"v_lshlrev_b32 v3, s{S_WAVE}, v15")
    o(f"ds_or_b32 v{vZ}, v3 offset:{F_RANGE}")
    o("s_branch L_noexp")
    o("L_doexp:")
    for i in range(16): o(f"v_exp_f32 v{aP+i}, -v{aP+i}")
    o("L_noexp:")
    for q in range(4):
        o(f"v_cvt_pk_bf16_f32 v{vW+4*q}, v{aP+4*q}, v{aP+4*q+1}")
        o(f"v_cvt_pk_bf16_f32 v{vW+4*q+1}, v{aP+4*q+2}, v{aP+4*q+3}")
    lds_inc(o, vZ, F_GD)
    def aux_write(lab):
        o(f"s_cmp_lt_u32 s{S_WAVE}, 14")
        o(f"s_cbranch_scc0 {lab}")
        o(f"s_lshr_b32 s{S_A}, s{S_WAVE}, 1")
        o(f"s_lshl_b32 s{S_A}, s{S_A}, 5")
        o(f"v_and_b32 v3, 31, v2")
        o(f"v_add_u32 v3, s{S_A}, v3")
        o(f"s_movk_i32 s{S_A}, {AUS}")
        o(f"v_cmpx_gt_u32 vcc, s{S_A}, v3")
        o(f"s_and_b32 s{S_B}, s{S_WAVE}, 1")
        o(f"s_mul_i32 s{S_B}, s{S_B}, {AUP}")
        o(f"s_add_u32 s{S_B}, s{S_B}, {AUX}")
        o(f"v_mul_u32_u24 v3, s{S_A}, v3")
        o(f"v_lshrrev_b32 v14, 5, v2")
        o(f"v_mul_u32_u24 v14, 24, v14")
        o(f"v_add3_u32 v3, v3, v14, s{S_B}")
        o(f"v_add_u32 v14, v3, v14")
        for q in range(4):
            o(f"ds_write2_b64 v3, {vr(vW+4*q,2)}, {vr(vW+4*q+2,2)} offset0:{6*q} offset1:{6*q+1}")
        o(f"ds_write2_b64 v14, {vr(vX,2)}, {vr(vX+2,2)} offset0:2 offset1:5")
        o(f"ds_write2_b64 v14, {vr(vX+4,2)}, {vr(vX+6,2)} offset0:14 offset1:17")
        o("s_mov_b64 exec, -1")
        o(f"{lab}:")
    o("L_rec:")
    if STAMP is not None and STAMP < 14: stamp(o, 4)
    vCNT, vIDX, vRA = 4, 5, 12
    o(f"v_and_b32 v{vIDX}, 3, v0")
    o(f"v_lshrrev_b32 v3, 2, v0")
    o(f"s_movk_i32 s{S_A}, {SEG}")
    o(f"v_mul_u32_u24 v{vRA}, s{S_A}, v3")
    o(f"v_lshl_add_u32 v{vRA}, v{vIDX}, 4, v{vRA}")
    o(f"v_lshlrev_b32 v{vIDX}, 1, v{vIDX}")
    o(f"v_and_b32 v14, 0xffc, v0")
    lds_wait(o, "L_wo", vZ, F_OFFL, 1, 3)
    o(f"ds_read_b32 v{vCNT}, v14 offset:{OFFL}")
    o(f"ds_read_b64 v[6:7], v{vZ} offset:{F_TAG}")
    o("s_waitcnt lgkmcnt(0)")
    o(f"v_readfirstlane_b32 s{S_NK}, v6")
    o(f"v_readfirstlane_b32 s{S_NH}, v7")
    o(f"v_and_b32 v3, 0x7fe, v{vCNT}")
    o(f"v_lshl_add_u32 v{vRA}, v3, 3, v{vRA}")
    o(f"v_and_b32 v3, 1, v{vCNT}")
    o(f"v_sub_u32 v{vIDX}, v{vIDX}, v3")
    o(f"v_lshrrev_b32 v{vCNT}, 11, v{vCNT}")
    o(f"v_cmp_le_i32 vcc, 0, v{vIDX}")
    o(f"v_sub_u32 v{vIDX}, v{vCNT}, v{vIDX}")
    for r in range(NR):
        o(f"v_cmp_lt_i32 {sr(S_MSK+2*r,2)}, {8*(r>>1) + (r&1)}, v{vIDX}")
    o(f"s_mov_b64 {sr(S_EX,2)}, {sr(S_MSK,2)}")
    o(f"s_and_b64 {sr(S_MSK,2)}, {sr(S_MSK,2)}, vcc")
    def rec_issue(lab):
        o(f"s_mov_b32 s{S_A}, {REC_OFF}")
        for k in range(NL):
            o(f"s_mov_b64 exec, {sr(S_MSK+4*k,2) if k else sr(S_EX,2)}")
            if k >= 2: o(f"s_cbranch_execz {lab}")
            o(f"buffer_load_dwordx4 {vr(vREC+4*k,4)}, v{vRA}, {sr(R_WS,4)}, s{S_A} offen offset:{k*64}{RSC}")
        o(f"{lab}:")
        o("s_mov_b64 exec, -1")
    rec_issue("L_ld_done")
    o(f"v_cmpx_lt_u32 vcc, {8*NL-1}, v{vCNT}")
    o(f"ds_write_b32 v{vZ}, v15 offset:{F_STRUCT}")
    o("s_mov_b64 exec, -1")
    o(f"s_cmp_lt_u32 s{S_WAVE}, 14")
    o(f"s_cbranch_scc0 L_noaux")
    lds_wait(o, "L_wg", vZ, F_GD, 14, 3)
    aux_write("L_noaux")
    stamp(o, 5)
    vRK = 24; vDA = 34
    tag_parts(o)
    o(f"s_and_b32 s{S_T0}, s{S_T0}, 0xfc00")
    o(f"s_and_b32 s{S_T1}, s{S_T1}, 0xfc00")
    o(f"s_lshl_b32 s{S_T1}, s{S_T1}, 16")
    o(f"s_or_b32 s{S_T0}, s{S_T0}, s{S_T1}")
    o(f"s_mov_b32 s{S_T1}, 0x05040100")
    o(f"v_mov_b32 v7, 0xfc00fc00")
    spin_bound(o)
    o("L_chk:")
    o(f"v_mov_b32 v6, 0")
    o("s_waitcnt vmcnt(0)")
    for k in range(NL):
        o(f"s_mov_b64 exec, {sr(S_MSK+4*k,2) if k else sr(S_EX,2)}")
        if k >= 2: o(f"s_cbranch_execz L_chk_done")
        o(f"v_perm_b32 v3, v{vREC+4*k+2}, v{vREC+4*k}, s{S_T1}")
        o(f"v_perm_b32 v14, v{vREC+4*k+3}, v{vREC+4*k+1}, s{S_T1}")
        o(f"v_xor_b32 v3, s{S_T0}, v3")
        o(f"v_xor_b32 v14, s{S_NH}, v14")
        o(f"v_and_or_b32 v3, v3, v7, v14")
        o(f"v_or_b32 v6, v6, v3")
    o("L_chk_done:")
    o("s_mov_b64 exec, -1")
    o(f"v_cmp_ne_u32 vcc, 0, v6")
    o(f"s_cbranch_vccz L_chk_ok")
    rec_issue("L_ld_again")
    o(f"s_sub_u32 s{S_SPIN}, s{S_SPIN}, 1")
    o(f"s_cbranch_scc0 L_chk")
    o("L_chk_ok:")
    for r in range(NR):
        o(f"s_mov_b64 exec, {sr(S_MSK+2*r,2)}")
        if r >= 3: o("s_cbranch_execz L_cnt_done")
        o(f"v_and_b32 v{vDA+r}, 0x3ff, v{vREC+2*r}")
        o(f"v_and_b32 v{vREC+2*r+1}, 0xffff0000, v{vREC+2*r+1}")
        o(f"ds_add_rtn_u32 v{vRK+r}, v{vDA+r}, v15 offset:{DEG}")
    o("L_cnt_done:")
    o("s_setprio 0")
    o("s_mov_b64 exec, -1")
    stamp(o, 6)
    o("s_waitcnt lgkmcnt(0)")
    o("s_barrier")
    stamp(o, 7)
    vN_D, vBIN, vR2, vPOS, vL, vTB = 80, 81, 82, 83, 84, 85
    vWX, vW2, vEX, vDen, vNum, vNQ, vT, vLO, vLA, vOB, vOA, vAB, vAU = 86, 124, 90, 92, 96, 100, 64, 72, 73, 74, 75, 76, 78
    o(f"s_cmp_eq_u32 s{S_WAVE}, 15")
    o(f"s_cbranch_scc0 L_nosort")
    o("s_setprio 3")
    sD, sB, sR, sP = 48, 52, 56, 60
    o(f"v_lshlrev_b32 v8, 2, v2")
    for i in range(4): o(f"ds_read_b32 v{sD+i}, v8 offset:{DEG+256*i}")
    publish_tf(o, 0)
    publish_tf(o, 1)
    o("s_waitcnt lgkmcnt(0)")
    for i in range(4):
        o(f"v_min_u32 v{sB+i}, 63, v{sD+i}")
        o(f"v_sub_u32 v{sB+i}, 63, v{sB+i}")
        o(f"v_lshlrev_b32 v{sB+i}, 2, v{sB+i}")
        if i == 3: o("s_mov_b64 exec, 0xff")
        o(f"ds_add_rtn_u32 v{sR+i}, v{sB+i}, v15 offset:{HIST2}")
    o("s_mov_b64 exec, -1")
    o(f"ds_read_b32 v6, v8 offset:{HIST2}")
    o(f"v_max3_u32 v3, v{sD}, v{sD+1}, v{sD+2}")
    o(f"v_max_u32 v3, v3, v{sD+3}")
    o(f"v_cmp_lt_u32 vcc, 63, v3")
    o(f"s_cmp_lg_u64 vcc, 0")
    o(f"s_cselect_b32 s{S_C}, 1, 0")
    o(f"v_lshrrev_b32 v10, 1, v2")
    o(f"v_sub_u32 v11, 31, v10")
    o(f"v_and_b32 v7, 1, v2")
    o(f"v_cmp_eq_u32 vcc, 1, v7")
    o(f"v_add_u32 v12, 192, v2")
    o(f"v_mov_b32 v7, 0xffff")
    o(f"v_cndmask_b32 v10, v10, v11, vcc")
    o(f"v_and_b32 v11, 32, v2")
    o(f"v_add_u32 v10, v10, v11")
    o(f"v_cmp_gt_u32 vcc, 4, v2")
    o(f"v_cmp_gt_u32 {sr(S_EX,2)}, 25, v10")
    o(f"v_lshlrev_b32 v10, 5, v10")
    o(f"v_cndmask_b32 v12, v7, v12, vcc")
    o("s_waitcnt lgkmcnt(0)")
    o(f"v_mov_b32 v14, v6")
    scan64(o, 14)
    o(f"v_sub_u32 v14, v14, v6")
    for i in range(4): o(f"ds_bpermute_b32 v{sP+i}, v{sB+i}, v14")
    o(f"v_lshl_or_b32 v{sB}, v{sD}, 16, v2")
    o(f"v_add_u32 v3, 64, v2")
    o(f"v_lshl_or_b32 v{sB+1}, v{sD+1}, 16, v3")
    o(f"v_add_u32 v3, 128, v2")
    o(f"v_lshl_or_b32 v{sB+2}, v{sD+2}, 16, v3")
    o(f"v_lshl_or_b32 v{sB+3}, v{sD+3}, 16, v12")
    o("s_waitcnt lgkmcnt(0)")
    for i in range(4):
        o(f"v_add_u32 v{sP+i}, v{sP+i}, v{sR+i}")
        o(f"v_lshlrev_b32 v3, 2, v{sP+i}")
        if i == 3: o("s_mov_b64 exec, 0xff")
        o(f"ds_write_b32 v3, v{sB+i} offset:{SNODE}")
    o("s_mov_b64 exec, -1")
    o(f"ds_read_u16 v{vL}, v10 offset:{SNODE+2}")
    for i in range(4):
        o(f"v_lshrrev_b32 v3, 3, v{sP+i}")
        o(f"v_sub_u32 v6, 31, v3")
        o(f"v_cmp_gt_u32 vcc, 16, v3")
        o(f"v_lshl_or_b32 v6, v6, 3, 4")
        o(f"v_lshlrev_b32 v3, 3, v3")
        o(f"v_cndmask_b32 v{sB+i}, v6, v3, vcc")
        o(f"v_and_b32 v{sP+i}, 7, v{sP+i}")
        o(f"v_lshlrev_b32 v{sP+i}, 3, v{sP+i}")
        o(f"v_add_u32 v{sP+i}, {ELL}, v{sP+i}")
    o("s_waitcnt lgkmcnt(0)")
    o(f"v_cndmask_b32 v{vL}, 0, v{vL}, {sr(S_EX,2)}")
    o(f"v_mov_b32 v{vTB}, v{vL}")
    scan64(o, vTB)
    o("s_nop 0")
    o(f"v_readlane_b32 s{S_A}, v{vTB}, 63")
    o(f"v_sub_u32 v{vTB}, v{vTB}, v{vL}")
    o(f"v_lshl_or_b32 v{vTB}, v{vTB}, 8, v{vL}")
    o(f"s_cmp_gt_u32 s{S_A}, {ELL_ITERS}")
    o(f"s_cselect_b32 s{S_C}, 1, s{S_C}")
    o(f"s_cmp_lg_u32 s{S_C}, 0")
    o(f"s_cbranch_scc0 L_fit")
    o(f"ds_write_b32 v{vZ}, v15 offset:{F_STRUCT}")
    o("s_branch L_sorted")
    o("L_fit:")
    for i in range(4): o(f"ds_bpermute_b32 v{sR+i}, v{sB+i}, v{vTB}")
    o(f"ds_write_b32 v8, v{vTB} offset:{TBL}")
    o("s_waitcnt lgkmcnt(1)")
    for i in range(4):
        o(f"v_lshrrev_b32 v3, 8, v{sR+i}")
        o(f"v_lshl_add_u32 v{sP+i}, v3, 6, v{sP+i}")
        o(f"v_lshl_or_b32 v{sP+i}, v{sR+i}, 24, v{sP+i}")
        o(f"ds_write_b32 v8, v{sP+i} offset:{SLOT+256*i}")
    o("s_branch L_sorted")
    o("L_nosort:")
    o(f"s_cmp_eq_u32 s{S_WAVE}, {99 if 'nopf' in OPT else 14}")
    o(f"s_cbranch_scc0 L_nopf")
    o(f"v_lshlrev_b32 v3, 7, v2")
    o(f"s_lshl_b32 s{S_B}, s{S_NODE0}, 7")
    for i in range(4):
        if i == 3: o("s_mov_b64 exec, 0xf")
        o(f"buffer_load_dword v{48+i}, v3, {sr(R_TAB,4)}, s{S_B} offen{SC}")
        if i < 3: o(f"s_add_u32 s{S_B}, s{S_B}, 8192")
    o("s_mov_b64 exec, -1")
    if "cpf2" in OPT:
        o(f"s_getpc_b64 {sr(S_EX,2)}")
        o(f"v_lshlrev_b32 v3, 7, v2")
        o(f"s_mov_b32 exec_lo, -1")
        o(f"s_mov_b32 exec_hi, 0")
        o(f"global_load_dword v52, v3, {sr(S_EX,2)}")
        o("s_mov_b64 exec, -1")
    o("L_nopf:")
    o("L_sorted:")
    o("s_setprio 0")
    o(f"v_lshlrev_b32 v{vLO}, 4, v1")
    o(f"v_mul_u32_u24 v{vAB}, 24, v1")
    for p, w in ((0, vWX), (2, vW2)):
        o(f"v_lshlrev_b32 v{w}, 16, v{vWC+p}")
        o(f"v_lshlrev_b32 v{w+1}, 16, v{vWC+p+1}")
        o(f"v_and_b32 v{w+2}, 0xffff0000, v{vWC+p}")
        o(f"v_and_b32 v{w+3}, 0xffff0000, v{vWC+p+1}")
        o(f"v_pk_mul_f32 {vr(w,2)}, {vr(w,2)}, {sr(S_CT,2)} op_sel_hi:[1,0]")
        o(f"v_pk_mul_f32 {vr(w+2,2)}, {vr(w+2,2)}, {sr(S_CT,2)} op_sel_hi:[1,0]")
    o(f"v_add_u32 v{vAB}, {AUX}, v{vAB}")
    o(f"s_lshl_b32 s{S_A}, s{S_NODE0}, 8")
    o(f"s_lshl_b32 s{S_B}, s{S_SL0}, 6")
    o(f"s_add_u32 s{S_A}, s{S_A}, s{S_B}")
    o(f"v_lshl_add_u32 v{vOB}, v1, 3, s{S_A}")
    o(f"v_lshlrev_b32 v8, 2, v2")
    o(f"v_lshrrev_b32 v3, 3, v2")
    o(f"v_lshlrev_b32 v6, 2, v3")
    o(f"v_lshlrev_b32 v5, 3, v3")
    o(f"s_lshl_b32 s{S_A}, s{S_WAVE}, 5")
    o(f"v_add_u32 v14, s{S_A}, v6")
    o(f"s_sub_u32 s{S_B}, {31*32}, s{S_A}")
    o(f"v_add_u32 v12, s{S_B}, v6")
    o(f"s_xor_b32 s{S_A}, s{S_A}, {MIR*32}")
    o(f"v_add_u32 v4, s{S_A}, v6")
    o(f"s_sub_u32 s{S_B}, {31*32}, s{S_A}")
    o(f"v_add_u32 v3, s{S_B}, v6")
    o("s_waitcnt lgkmcnt(0)")
    o("s_barrier")
    stamp(o, 8)
    o(f"ds_read_b64 v[6:7], v{vZ} offset:{F_STRUCT}")
    o(f"ds_read_b32 v{vTB}, v8 offset:{TBL}")
    o(f"ds_read_b32 v80, v9 offset:{SLOT}")
    o(f"ds_read_b32 v81, v9 offset:{DEG}")
    for r in range(NR):
        o(f"s_mov_b64 exec, {sr(S_MSK+2*r,2)}")
        if r >= 3: o("s_cbranch_execz L_s8a_done")
        o(f"ds_read_b32 v{vDA+r}, v{vDA+r} offset:{SLOT}")
    o("L_s8a_done:")
    o("s_mov_b64 exec, -1")
    o(f"ds_read_u16 v{vNQ}, v14 offset:{SNODE}")
    o(f"ds_read_u16 v10, v12 offset:{SNODE}")
    o(f"ds_read_u16 v{vNQ+1}, v4 offset:{SNODE}")
    o(f"ds_read_u16 v11, v3 offset:{SNODE}")
    o("s_waitcnt lgkmcnt(0)")
    o(f"v_readfirstlane_b32 s{S_B}, v6")
    o(f"v_readfirstlane_b32 s{S_MODE}, v7")
    o(f"s_lshl_b32 s{S_A}, s{S_WAVE}, 1")
    o(f"v_readlane_b32 s{S_C}, v{vTB}, s{S_A}")
    o(f"s_or_b32 s{S_B}, s{S_B}, s{S_MODE}")
    o(f"s_cbranch_scc1 L_slow")
    for r in range(NR):
        o(f"s_mov_b64 exec, {sr(S_MSK+2*r,2)}")
        if r >= 3: o("s_cbranch_execz L_s8b_done")
        o(f"v_lshl_add_u32 v{vDA+r}, v{vRK+r}, 6, v{vDA+r}")
        o(f"v_and_b32 v{vDA+r}, 0xffffff, v{vDA+r}")
        o(f"ds_write_b64 v{vDA+r}, {vr(vREC+2*r,2)}")
    o("L_s8b_done:")
    o("s_mov_b64 exec, -1")
    o(f"s_cmp_lt_u32 s{S_WAVE}, 4")
    o(f"s_cbranch_scc0 L_pad_done")
    o(f"v_lshrrev_b32 v82, 24, v80")
    o(f"v_lshl_add_u32 v80, v81, 6, v80")
    o(f"v_and_b32 v80, 0xffffff, v80")
    o(f"v_mov_b32 v6, {DUMMY_ROW << 16}")
    o(f"v_mov_b32 v7, 0")
    o(f"s_movk_i32 s{S_B}, 200")
    o(f"v_cmpx_gt_u32 vcc, s{S_B}, v0")
    o("L_pad:")
    o(f"v_cmpx_gt_u32 vcc, v82, v81")
    o(f"s_cbranch_execz L_pad_done")
    o(f"ds_write_b64 v80, v[6:7]")
    o(f"v_add_u32 v80, 64, v80")
    o(f"v_add_u32 v81, 1, v81")
    o("s_branch L_pad")
    o("L_pad_done:")
    o("s_mov_b64 exec, -1")
    o(f"s_add_u32 s{S_A}, s{S_A}, 1")
    o(f"v_readlane_b32 s{S_L1}, v{vTB}, s{S_A}")
    o(f"s_xor_b32 s{S_A}, s{S_A}, {2*MIR}")
    o(f"v_readlane_b32 s{S_L3}, v{vTB}, s{S_A}")
    o(f"s_sub_u32 s{S_A}, s{S_A}, 1")
    o(f"v_readlane_b32 s{S_B1}, v{vTB}, s{S_A}")
    o(f"s_and_b32 s{S_CNT}, s{S_C}, 0xff")
    o(f"s_lshr_b32 s{S_C}, s{S_C}, 8")
    o(f"s_and_b32 s{S_L1}, s{S_L1}, 0xff")
    o(f"s_and_b32 s{S_L3}, s{S_L3}, 0xff")
    o(f"s_and_b32 s{S_L2}, s{S_B1}, 0xff")
    o(f"s_lshr_b32 s{S_B1}, s{S_B1}, 8")
    o(f"s_lshl_b32 s{S_C}, s{S_C}, 6")
    o(f"s_add_u32 s{S_C}, s{S_C}, {ELL}")
    o(f"s_lshl_b32 s{S_B1}, s{S_B1}, 6")
    o(f"s_add_u32 s{S_B1}, s{S_B1}, {ELL}")
    o(f"v_add_u32 v{vLA}, s{S_C}, v5")
    stamp(o, 10)
    o(f"s_cmp_eq_u32 s{S_WAVE}, 14")
    o(f"s_cbranch_scc0 L_nopoll2")
    poll_tables(o, "L_pb", 0, 48)
    if "pf3" in OPT:
        o(f"v_lshlrev_b32 v3, 7, v2")
        for t in range(1, 4):
            o(f"s_add_u32 s{S_A}, s{S_BUCKET}, {32*t}")
            o(f"s_and_b32 s{S_A}, s{S_A}, 127")
            o(f"s_mul_i32 s{S_A}, s{S_A}, {NPB*128}")
            for i in range(4):
                if i == 3: o("s_mov_b64 exec, 0xf")
                o(f"buffer_load_dword v{48+4*(t-1)+i}, v3, {sr(R_TAB,4)}, s{S_A} offen{SC}")
                if i < 3: o(f"s_add_u32 s{S_A}, s{S_A}, 8192")
            o("s_mov_b64 exec, -1")
    o("L_nopoll2:")
    o(f"s_cmp_ge_u32 s{S_WAVE}, 7")
    o(f"s_cselect_b32 s{S_NT}, 2, 1")
    o(f"s_mov_b32 s{S_PH}, 0")
    o(f"s_movk_i32 s{S_D}, 128")
    o("s_waitcnt lgkmcnt(0)")
    o(f"v_lshl_or_b32 v{vNQ}, v10, 16, v{vNQ}")
    o(f"v_lshl_or_b32 v{vNQ+1}, v11, 16, v{vNQ+1}")
    o("s_barrier")
    stamp(o, 11)
    o(f"s_movk_i32 s{S_A}, {AUS}")
    o(f"s_movk_i32 s{S_B}, 256")
    o(f"s_setprio {PR[0]}")
    vDK = 16; vRKk = 104
    assert vDK + 4*PD <= 64 and vRKk + 2*PD <= 124
    def gaddr(R): o(f"v_mad_u32_u16 v{R}, v{R}, s{S_D}, v{vLO} op_sel:[1,0,0,0]")
    o("M_prime:")
    for k in range(PD):
        o(f"ds_read_b64 {vr(vRKk+2*k,2)}, v{vLA} offset:{k*64}")
    for k in range(PD):
        o(f"s_waitcnt lgkmcnt({PD-1-k})")
        gaddr(vRKk+2*k)
        o(f"buffer_load_dwordx4 {vr(vDK+4*k,4)}, v{vRKk+2*k}, {sr(R_TAB,4)}, s{S_PH} offen{GSC}")
    def promote():
        o(f"v_mad_u32_u16 v3, v{vNQ}, s{S_A}, v{vAB}")
        o(f"v_mad_u32_u16 v{vOA}, v{vNQ}, s{S_B}, v{vOB}")
        o(f"ds_read2_b64 {vr(vAU,4)}, v3 offset0:0 offset1:1")
        o(f"ds_read_b64 {vr(vAU+4,2)}, v3 offset:16")
        o(f"v_lshrrev_b32 v{vNQ}, 16, v{vNQ}")
        for i in range(0, 8, 2): o(f"v_mov_b64 {vr(vDen+i,2)}, 0")
        o("s_waitcnt lgkmcnt(0)")
        o(f"v_lshlrev_b32 v{vEX}, 16, v{vAU}")
        o(f"v_lshlrev_b32 v{vEX+1}, 16, v{vAU+1}")
        o(f"v_and_b32 v{vAU}, 0xffff0000, v{vAU}")
        o(f"v_and_b32 v{vAU+1}, 0xffff0000, v{vAU+1}")
    promote()
    if "cut" not in OPT:
        o(f"s_sub_u32 s{S_CNT}, s{S_CNT}, 1")
    else:
        o(f"s_mov_b32 s{S_TASK}, s{S_CNT}")
        o(f"s_add_u32 s{S_CUT}, s{S_CNT}, s{S_L1}")
        o(f"s_cmp_gt_u32 s{S_CUT}, {PD}")
        o(f"s_cselect_b32 s{S_SO}, s{S_PH}, 0x7f000000")
        o(f"s_cselect_b32 s{S_CUT}, s{S_CUT}, 0x7f000000")
        o(f"s_sub_u32 s{S_CUT}, s{S_CUT}, {PD}")
        o(f"s_min_u32 s{S_STEP}, s{S_TASK}, s{S_CUT}")
        o(f"s_sub_u32 s{S_CNT}, s{S_STEP}, 1")
    o(f"s_cbranch_scc1 M_sw{PD-1}")
    o("M_loop:")
    for k in range(PD):
        D = vDK + 4*k; R = vRKk + 2*k
        o(f"M_it{k}:")
        o(f"s_waitcnt vmcnt({PD-1})")
        o(f"v_lshlrev_b64 {vr(vT,2)}, 16, {vr(D,2)}")
        o(f"v_pk_fma_f32 {vr(vT+2,2)}, {vr(R,2)}, {vr(vWX+2,2)}, {vr(D,2)} op_sel:[1,0,0] op_sel_hi:[1,1,1]")
        o(f"v_pk_fma_f32 {vr(vT,2)}, {vr(R,2)}, {vr(vWX,2)}, {vr(vT,2)} op_sel:[1,0,0] op_sel_hi:[1,1,1]")
        o(f"ds_read_b64 {vr(R,2)}, v{vLA} offset:{(k+PD)*64}")
        o(f"v_exp_f32 v{vT+2}, v{vT+2}")
        o(f"v_exp_f32 v{vT+3}, v{vT+3}")
        o(f"v_exp_f32 v{vT}, v{vT}")
        o(f"v_exp_f32 v{vT+1}, v{vT+1}")
        o(f"v_lshlrev_b64 {vr(vT+4,2)}, 16, {vr(D+2,2)}")
        o(f"v_pk_add_f32 {vr(vT+2,2)}, {vr(vT+2,2)}, {vr(vAU,2)}")
        o(f"v_pk_add_f32 {vr(vT,2)}, {vr(vT,2)}, {vr(vEX,2)}")
        if k == PD-1:
            o(f"v_add_u32 v{vLA}, {PD*64}, v{vLA}")
        o(f"v_rcp_f32 v{vT+2}, v{vT+2}")
        o(f"v_rcp_f32 v{vT+3}, v{vT+3}")
        o(f"v_rcp_f32 v{vT}, v{vT}")
        o(f"v_rcp_f32 v{vT+1}, v{vT+1}")
        o(f"v_pk_add_f32 {vr(vDen+2,2)}, {vr(vDen+2,2)}, {vr(vT+2,2)}")
        o(f"v_pk_fma_f32 {vr(vNum+2,2)}, {vr(vT+2,2)}, {vr(D+2,2)}, {vr(vNum+2,2)}")
        o(f"v_pk_add_f32 {vr(vDen,2)}, {vr(vDen,2)}, {vr(vT,2)}")
        o(f"v_pk_fma_f32 {vr(vNum,2)}, {vr(vT,2)}, {vr(vT+4,2)}, {vr(vNum,2)}")
        o("s_waitcnt lgkmcnt(0)")
        gaddr(R)
        o(f"s_sub_u32 s{S_CNT}, s{S_CNT}, 1")
        o(f"buffer_load_dwordx4 {vr(D,4)}, v{R}, {sr(R_TAB,4)}, s{S_PH if 'cut' not in OPT else S_SO} offen{GSC}")
        o(f"s_cbranch_scc1 M_sw{k}")
    o("s_branch M_loop")
    for k in range(PD):
        o(f"M_sw{k}:")
        if "cut" in OPT:
            o(f"s_sub_u32 s{S_TASK}, s{S_TASK}, s{S_STEP}")
            o(f"s_sub_u32 s{S_CUT}, s{S_CUT}, s{S_STEP}")
            o(f"s_cmp_eq_u32 s{S_CUT}, 0")
            o(f"s_cselect_b32 s{S_SO}, 0x7f000000, s{S_SO}")
            o(f"s_cselect_b32 s{S_CUT}, 0x7f000000, s{S_CUT}")
            o(f"s_cmp_lg_u32 s{S_TASK}, 0")
            o(f"s_cbranch_scc1 M_n{k}")
        finalize(o, vDen, vNum, vEX, vAU, vAU+2, vAU+4, vT, vOA)
        o(f"s_sub_u32 s{S_NT}, s{S_NT}, 1")
        o(f"s_cmp_eq_u32 s{S_NT}, 0")
        o(f"s_cbranch_scc1 M_phase")
        o(f"s_cmp_eq_u32 s{S_PH}, 0")
        o(f"s_cbranch_scc1 M_p{k}")
        o(f"s_setprio {PR[3]}")
        o(f"s_branch M_q{k}")
        o(f"M_p{k}:")
        o(f"s_setprio {PR[1]}")
        o(f"M_q{k}:")
        promote()
        if "cut" not in OPT:
            o(f"s_sub_u32 s{S_CNT}, s{S_L1}, 1")
        else:
            o(f"s_mov_b32 s{S_TASK}, s{S_L1}")
            o(f"M_n{k}:")
            o(f"s_min_u32 s{S_STEP}, s{S_TASK}, s{S_CUT}")
            o(f"s_sub_u32 s{S_CNT}, s{S_STEP}, 1")
        o(f"s_cbranch_scc1 M_sw{k}")
        o(f"s_branch M_it{(k+1)%PD}")
    o("M_phase:")
    o(f"s_cmp_eq_u32 s{S_PH}, 0")
    o(f"s_cbranch_scc0 L_end")
    o(f"s_setprio {PR[2]}")
    stamp(o, 13)
    poll_tables(o, "L_pd", 1, vT)
    if "pf4" in OPT:
        o(f"s_cmp_eq_u32 s{S_WAVE}, {PFW}")
        o(f"s_cbranch_scc0 L_nopf4")
        o(f"v_lshlrev_b32 v3, 7, v2")
        for t in range(0, 4):
            o(f"s_add_u32 s{S_C}, s{S_BUCKET}, {32*t}")
            o(f"s_and_b32 s{S_C}, s{S_C}, 127")
            o(f"s_mul_i32 s{S_C}, s{S_C}, {NPB*128}")
            o(f"s_add_u32 s{S_C}, s{S_C}, {TSTRIDE}")
            for i in range(4):
                if i == 3: o("s_mov_b64 exec, 0xf")
                o(f"buffer_load_dword v{48+4*t+i}, v3, {sr(R_TAB,4)}, s{S_C} offen{SC}")
                if i < 3: o(f"s_add_u32 s{S_C}, s{S_C}, 8192")
            o("s_mov_b64 exec, -1")
        o("L_nopf4:")
    o(f"s_mov_b32 s{S_PH}, {TSTRIDE}")
    o(f"v_mov_b64 {vr(vWX,2)}, {vr(vW2,2)}")
    o(f"v_mov_b64 {vr(vWX+2,2)}, {vr(vW2+2,2)}")
    o(f"v_add_u32 v{vAB}, {AUP}, v{vAB}")
    o(f"v_add_u32 v{vOB}, 64, v{vOB}")
    o(f"v_add_u32 v{vLA}, s{S_B1}, v5")
    o(f"v_mov_b32 v{vNQ}, v{vNQ+1}")
    o(f"s_mov_b32 s{S_CNT}, s{S_L2}")
    o(f"s_mov_b32 s{S_L1}, s{S_L3}")
    o(f"s_xor_b32 s{S_NT}, s{S_WAVE}, {MIR}")
    o(f"s_cmp_ge_u32 s{S_NT}, 7")
    o(f"s_cselect_b32 s{S_NT}, 2, 1")
    o("s_branch M_prime")
    o("L_slow:")
    vG, vI, vA2, vR2_, vD2, vT2, vAcc = 16, 17, 18, 20, 24, 32, 19
    o(f"s_xor_b32 s{S_SL0}, s{S_SL0}, 2")
    poll_tables(o, "S_pc", 0, 24)
    o(f"s_xor_b32 s{S_SL0}, s{S_SL0}, 2")
    poll_tables(o, "S_pa", 0, 24)
    poll_tables(o, "S_pb", 1, 24)
    o(f"v_lshrrev_b32 v{vG}, 3, v0")
    o(f"s_mov_b32 s{S_PH}, 0")
    o(f"s_movk_i32 s{S_D}, {AUS}")
    o(f"s_movk_i32 s{S_CNT}, 128")
    o(f"s_mov_b32 s{S_B1}, 0")
    o("S_half:")
    o("s_barrier")
    for i in range(4): o(f"v_mov_b32 v{vD2+i}, 0")
    o(f"v_lshlrev_b32 v3, 4, v0")
    o(f"v_add_u32 v3, {ELL}, v3")
    for i in range(3): o(f"ds_write_b128 v3, {vr(vD2,4)} offset:{i*16384}")
    o(f"s_cmp_lt_u32 s{S_WAVE}, 2")
    o(f"s_cbranch_scc0 S_nofill")
    o(f"ds_write_b128 v3, {vr(vD2,4)} offset:{3*16384}")
    o("S_nofill:")
    o("s_waitcnt lgkmcnt(0)")
    o("s_barrier")
    o(f"s_mov_b32 s{S_PP}, 0")
    o("S_piece:")
    o(f"v_add_u32 v3, s{S_PP}, v{vG}")
    o(f"v_lshlrev_b32 v5, 2, v3")
    o(f"ds_read_b32 v4, v5 offset:{OFFL}")
    o(f"s_movk_i32 s{S_A}, {SEG}")
    o(f"v_mul_u32_u24 v{vA2}, s{S_A}, v3")
    o(f"v_mov_b32 v{vI}, 0")
    o("s_waitcnt lgkmcnt(0)")
    o(f"v_and_b32 v5, 0x7ff, v4")
    o(f"v_lshrrev_b32 v4, 11, v4")
    o(f"v_lshl_add_u32 v{vA2}, v5, 3, v{vA2}")
    o(f"s_mov_b32 s{S_A}, {REC_OFF}")
    o("S_rec:")
    o(f"v_cmpx_gt_u32 vcc, v4, v{vI}")
    o(f"s_cbranch_execz S_rec_done")
    o(f"buffer_load_dwordx2 {vr(vR2_,2)}, v{vA2}, {sr(R_WS,4)}, s{S_A} offen{SC}")
    o("s_waitcnt vmcnt(0)")
    o(f"v_bfe_u32 v5, v{vR2_}, 2, 8")
    o(f"v_and_b32 v{vR2_+1}, 0xffff0000, v{vR2_+1}")
    o(f"v_mad_u32_u16 v{vR2_}, v{vR2_}, s{S_CNT}, v{vLO} op_sel:[1,0,0,0]")
    o(f"v_mad_u32_u24 v3, v5, s{S_D}, v{vAB}")
    o(f"v_lshlrev_b32 v{vAcc}, 8, v5")
    o(f"v_lshl_add_u32 v{vAcc}, v1, 5, v{vAcc}")
    o(f"v_add_u32 v{vAcc}, {ELL}, v{vAcc}")
    o(f"buffer_load_dwordx4 {vr(vD2,4)}, v{vR2_}, {sr(R_TAB,4)}, s{S_B1} offen{SC}")
    o(f"ds_read_b64 {vr(vAU,2)}, v3")
    o("s_waitcnt vmcnt(0) lgkmcnt(0)")
    T = vT2
    o(f"v_lshlrev_b64 {vr(T,2)}, 16, {vr(vD2,2)}")
    o(f"v_lshlrev_b64 {vr(T+4,2)}, 16, {vr(vD2+2,2)}")
    o(f"v_lshlrev_b32 v{T+6}, 16, v{vAU}")
    o(f"v_lshlrev_b32 v{T+7}, 16, v{vAU+1}")
    o(f"v_and_b32 v{vAU}, 0xffff0000, v{vAU}")
    o(f"v_and_b32 v{vAU+1}, 0xffff0000, v{vAU+1}")
    o(f"v_lshrrev_b32 v5, 5, v5")
    o(f"v_lshl_add_u32 v5, v5, 1, s{S_PH}")
    o(f"v_lshrrev_b32 v5, v5, s{S_MODE}")
    o(f"v_and_b32 v5, 1, v5")
    o(f"v_cmp_eq_u32 vcc, 0, v5")
    for r in (T+6, T+7, vAU, vAU+1):
        o(f"v_log_f32 v3, v{r}")
        o("s_nop 0")
        o(f"v_cndmask_b32 v{r}, v{r}, -v3, vcc")
    o(f"v_pk_add_f32 {vr(T,2)}, {vr(T,2)}, {vr(T+6,2)}")
    o(f"v_pk_add_f32 {vr(T+2,2)}, {vr(vD2,2)}, {vr(vAU,2)}")
    o(f"v_pk_fma_f32 {vr(T,2)}, {vr(vR2_,2)}, {vr(vWX,2)}, {vr(T,2)} op_sel:[1,0,0] op_sel_hi:[1,1,1]")
    o(f"v_pk_fma_f32 {vr(T+2,2)}, {vr(vR2_,2)}, {vr(vWX+2,2)}, {vr(T+2,2)} op_sel:[1,0,0] op_sel_hi:[1,1,1]")
    for i in range(4): o(f"v_exp_f32 v{T+i}, v{T+i}")
    o("s_nop 0")
    o(f"v_pk_add_f32 {vr(T,2)}, {vr(T,2)}, 1.0 op_sel_hi:[1,0]")
    o(f"v_pk_add_f32 {vr(T+2,2)}, {vr(T+2,2)}, 1.0 op_sel_hi:[1,0]")
    for i in range(4): o(f"v_rcp_f32 v{T+i}, v{T+i}")
    o("s_nop 0")
    o(f"v_pk_mul_f32 {vr(T+4,2)}, {vr(T+4,2)}, {vr(T,2)}")
    o(f"v_pk_mul_f32 {vr(T+6,2)}, {vr(vD2+2,2)}, {vr(T+2,2)}")
    for i in range(8): o(f"ds_add_f32 v{vAcc}, v{T+i} offset:{4*i}")
    o("s_mov_b64 exec, -1")
    o(f"v_add_u32 v{vI}, 1, v{vI}")
    o(f"v_add_u32 v{vA2}, 8, v{vA2}")
    o("s_branch S_rec")
    o("S_rec_done:")
    o("s_mov_b64 exec, -1")
    o(f"s_add_u32 s{S_PP}, s{S_PP}, 128")
    o(f"s_cmp_lt_u32 s{S_PP}, 256")
    o("s_cbranch_scc1 S_piece")
    o("s_waitcnt lgkmcnt(0)")
    o("s_barrier")
    o(f"s_mov_b32 s{S_PP}, 0")
    o(f"s_movk_i32 s{S_C}, {NPB}")
    o("S_fin:")
    o(f"v_add_u32 v5, s{S_PP}, v{vG}")
    o(f"v_mad_u32_u24 v3, v5, s{S_D}, v{vAB}")
    o(f"v_lshlrev_b32 v{vAcc}, 8, v5")
    o(f"v_lshl_add_u32 v{vAcc}, v1, 5, v{vAcc}")
    o(f"v_add_u32 v{vAcc}, {ELL}, v{vAcc}")
    o(f"v_lshl_add_u32 v{vOA}, v5, 8, v{vOB}")
    o(f"v_cmpx_gt_u32 vcc, s{S_C}, v5")
    o(f"s_cbranch_execz S_fin_next")
    o(f"ds_read2_b64 {vr(vAU+2,4)}, v3 offset0:1 offset1:2")
    o(f"ds_read_b128 {vr(24,4)}, v{vAcc}")
    o(f"ds_read_b128 {vr(28,4)}, v{vAcc} offset:16")
    o("s_waitcnt lgkmcnt(0)")
    finalize(o, 24, 28, None, None, vAU+2, vAU+4, vT, vOA)
    o("S_fin_next:")
    o("s_mov_b64 exec, -1")
    o(f"s_add_u32 s{S_PP}, s{S_PP}, 128")
    o(f"s_cmp_lt_u32 s{S_PP}, 256")
    o("s_cbranch_scc1 S_fin")
    o(f"v_mov_b64 {vr(vWX,2)}, {vr(vW2,2)}")
    o(f"v_mov_b64 {vr(vWX+2,2)}, {vr(vW2+2,2)}")
    o(f"v_add_u32 v{vAB}, {AUP}, v{vAB}")
    o(f"v_add_u32 v{vOB}, 64, v{vOB}")
    o(f"s_mov_b32 s{S_B1}, {TSTRIDE}")
    o(f"s_add_u32 s{S_PH}, s{S_PH}, 1")
    o(f"s_cmp_lt_u32 s{S_PH}, 2")
    o("s_cbranch_scc1 S_half")
    o("L_end:")
    stamp(o, 12)
    stamp_flush(o, 14)
    o("L_exit:")
    o("s_endpgm")

def main():
    global PFW, PESL, WSO, PR, TSL, STAMP, PD, OUTF, GSC, MIR, SL0, SL1, PSC, ESC, RSC
    for a in sys.argv[2:]:
        if a.startswith("stamp="): STAMP = int(a[6:])
        elif a.startswith("pd="): PD = int(a[3:])
        elif a.startswith("outf="): OUTF = " " + a[5:].replace("+", " ")
        elif a.startswith("gsc="): GSC = (" " + a[4:].replace("+", " ")).rstrip()
        elif a.startswith("mir="): MIR = int(a[4:])
        elif a.startswith("sl="): SL0, SL1 = map(int, a[3:].split(","))
        elif a == "psys": PSC = " sc0 sc1"
        elif a == "esys": ESC = " sc0 sc1"
        elif a == "rsys": RSC = " sc0 sc1"
        elif a.startswith("tsl="): TSL = int(a[4:])
        elif a.startswith("pr="): PR = tuple(int(c) for c in a[3:])
        elif a.startswith("wso="): WSO = int(a[4:]) << 20
        elif a.startswith("pesl="): PESL = int(a[5:])
        elif a.startswith("pfw="): PFW = int(a[4:])
        else: OPT.add(a)
    ref = open(f"cdna_kernels/{NAME}.s.ref").read().split("\n")
    head = [l for l in ref if l.startswith(";") and "@launch" not in l]
    out = "\n".join(head) + "\n"
    out += f"; @launch grid=(256,1,1) block=(1024,1,1) lds={LDS_SIZE}\n"
    out += f'.amdgcn_target "amdgcn-amd-amdhsa--gfx950"\n.text\n.globl {NAME}_kernel\n.p2align 8\n.type {NAME}_kernel,@function\n{NAME}_kernel:\n'
    o = Asm(); kernel(o); out += o.text()
    out += f""".section .rodata,"a"
.p2align 6
.amdhsa_kernel {NAME}_kernel
  .amdhsa_next_free_vgpr 128
  .amdhsa_next_free_sgpr {102 if STAMP is not None else 90}
  .amdhsa_accum_offset 128
  .amdhsa_group_segment_fixed_size 0
  .amdhsa_kernarg_size 96
  .amdhsa_user_sgpr_count 2
  .amdhsa_user_sgpr_kernarg_segment_ptr 1
  .amdhsa_system_sgpr_workgroup_id_x 1
.end_amdhsa_kernel
"""
    path = sys.argv[1] if len(sys.argv) > 1 else f"cdna_kernels/{NAME}.s"
    open(path, "w").write(out)
    print("wrote", path, "LDS", LDS_SIZE, "ELL_ITERS", ELL_ITERS)
main()
```

```python
import sys

NAME = "standalone__edge_featured_mpnn_gatedgcn__graph"
N = 25000; E = 400000
NPB = 196; CH = 1564
TROWS = 25096; TSTRIDE = TROWS*128
DUMMY_ROW = 25088
SEG = 12544
REC_OFF = 4*TSTRIDE
OFF_OFF = REC_OFF + 256*SEG
TF_OFF = OFF_OFF + 128*2048
WS_USED = TF_OFF + 4096
LOG2E_NEG = 0xBFB8AA3B; TINY = 0x03800000; EPS = 0x358637BD
SC = " sc1"
PSC = " sc1"; ESC = " sc1"; RSC = " sc1"
OUTF = " sc1"
GSC = " sc1"
PD = 4
XNT = ''; ENT = ''
TLBS = 20
DRYW = 8
PFW = 8
VE = 72
PESL = 0
WSO = 0
PR = (3, 2, 1, 0)
TSL = 2
TEAM0 = 9
MIR = 13
SL0 = 0; SL1 = 1
NL = 5
NR = 2*NL
HISTA = 0; BASE = 512; DEG = 1024; HIST2 = 2048; FLAG = 2304; SLOT = 2432; TBL = SLOT + 1024; SNODE = TBL + 256; OFFL = SNODE + 1024 + 128
XT = OFFL + 1024; XTS = 8320
WOFF = XT + 7*XTS
RECS = WOFF + 65536
LDS_END = RECS + SEG
AUX = XT; AUS = 200; AUP = 200*AUS
ELL = AUX + 2*AUP
ELL_ITERS = 512
LDS_SIZE = LDS_END + 2048
assert ELL % 16 == 0 and XT % 128 == 0
F_STRUCT, F_RANGE, F_SOFT, F_OFFL, F_W, F_GO, F_TAG, F_TC, F_GD, F_WI = FLAG, FLAG+4, FLAG+8, FLAG+12, FLAG+16, FLAG+20, FLAG+24, FLAG+32, FLAG+64, FLAG+68

STAMP = None; OPT = set(); PFN = 181
def st_reg(i): return 90 + 2*i if i < 6 else 36 + 2*(i-6) if i < 12 else 24 + 2*(i-12)
def gstamp(o, i):
    if "gd" in OPT: stamp(o, i, True)
def stamp(o, i, force=False):
    if STAMP is None: return
    if "gd" in OPT and not force and 5 <= i <= 10: return
    if "clk" in OPT:
        if i in (1, 2): return
        if i == 11: o(f"s_memtime s[{st_reg(1)}:{st_reg(1)+1}]")
        if i == 12: o(f"s_memtime s[{st_reg(2)}:{st_reg(2)+1}]")
    o(f"s_memrealtime s[{st_reg(i)}:{st_reg(i)+1}]")
    o("s_waitcnt lgkmcnt(0)")
def stamp_flush(o, n):
    if STAMP is None: return
    o(f"s_cmp_eq_u32 s{S_WAVE}, {STAMP}")
    o(f"s_cbranch_scc0 L_stf")
    o(f"s_mov_b64 exec, 1")
    o(f"s_mov_b32 s{R_WS+2}, {64<<20}")
    o(f"s_lshl_b32 s{S_A}, s{S_WG}, 7")
    o(f"s_add_u32 s{S_A}, s{S_A}, {32<<20}")
    o(f"v_mov_b32 v0, 0")
    for i in range(n):
        o(f"v_mov_b32 v2, s{st_reg(i)}")
        o(f"v_mov_b32 v3, s{st_reg(i)+1}")
        o(f"buffer_store_dwordx2 v[2:3], v0, {sr(R_WS,4)}, s{S_A} offen offset:{8*i}")
    o(f"s_getreg_b32 s{S_B}, hwreg(HW_REG_XCC_ID)")
    o(f"s_getreg_b32 s{S_C}, hwreg(HW_REG_HW_ID)")
    o(f"v_mov_b32 v2, s{S_B}")
    o(f"v_mov_b32 v3, s{S_C}")
    o(f"buffer_store_dwordx2 v[2:3], v0, {sr(R_WS,4)}, s{S_A} offen offset:{8*14}")
    o(f"L_stf:")

class Asm:
    def __init__(self): self.lines = []
    def __call__(self, s):
        for l in s.split("\n"):
            l = l.strip()
            if l: self.lines.append(("" if l.endswith(":") else "    ") + l)
    def text(self): return "\n".join(self.lines) + "\n"

def vr(a, n): return f"v[{a}:{a+n-1}]"
def sr(a, n): return f"s[{a}:{a+n-1}]"

def srd(o, d, base, nbytes):
    o(f"s_mov_b32 s{d}, s{base}")
    o(f"s_and_b32 s{d+1}, s{base+1}, 0xffff")
    o(f"s_mov_b32 s{d+2}, {nbytes}")
    o(f"s_mov_b32 s{d+3}, 0x20000")

def scan64(o, v):
    for sh in (1, 2, 4, 8):
        o("s_nop 1")
        o(f"v_add_u32_dpp v{v}, v{v}, v{v} row_shr:{sh} row_mask:0xf bank_mask:0xf bound_ctrl:0")
    o("s_nop 1")
    o(f"v_add_u32_dpp v{v}, v{v}, v{v} row_bcast:15 row_mask:0xa bank_mask:0xf")
    o("s_nop 1")
    o(f"v_add_u32_dpp v{v}, v{v}, v{v} row_bcast:31 row_mask:0xc bank_mask:0xf")

def gemm_pair(o, vW, vX, aP, aQ, vWaddr, base_off, extra=None):
    def rd(t):
        for m in range(2):
            b = vW + (t & 1)*8 + m*4
            off = base_off + m*16384 + (t & 1)*2048
            o(f"ds_read_b64_tr_b16 {vr(b,2)}, v{vWaddr + (t >> 1)} offset:{off}")
            o(f"ds_read_b64_tr_b16 {vr(b+2,2)}, v{vWaddr + (t >> 1)} offset:{off + 512}")
    rd(0); rd(1)
    for t in range(8):
        o(f"s_waitcnt lgkmcnt({4 if t < 7 else 0})")
        for m, acc in enumerate((aP, aQ)):
            b = vW + (t & 1)*8 + m*4
            c = "0" if t == 0 else vr(acc, 16)
            o(f"v_mfma_f32_32x32x16_bf16 {vr(acc,16)}, {vr(b,4)}, {vr(vX+4*t,4)}, {c}")
        if t + 2 < 8: rd(t+2)
        if extra: extra(t)
    o("s_nop 15")

def encode4(o, a, d):
    for i in range(4):
        o(f"v_add_u32 v{a+i}, s{S_HALF}, v{a+i}")
    for i in range(1, 4):
        o(f"v_sub_u32_sdwa v{a+i}, v{a+i}, v{a+i-1} dst_sel:DWORD dst_unused:UNUSED_PAD src0_sel:DWORD src1_sel:WORD_1")
    o(f"v_perm_b32 v{d}, v{a+1}, v{a}, s{S_PERM}")
    o(f"v_perm_b32 v{d+1}, v{a+3}, v{a+2}, s{S_PERM}")

S_WG = 2; S_NK = 3
S_X, S_E, S_SRC, S_DST, S_WA, S_WB, S_WC, S_WU, S_WV, S_OUT, S_DBG, S_WS = 4, 6, 8, 10, 12, 14, 16, 18, 20, 22, 24, 26
S_MSK = 4
R_WS = 28; R_W = 32; R_T0 = 36; R_T1 = 40; R_T2 = 44; R_X = 48; R_TAB = 52; R_OUT = 56; R_DBG = 60
S_WAVE = 64; S_HALF = 65; S_PERM = 66; S_SL0 = 67
S_CT = 68; S_EX = 70; S_EPS = 72
S_A = 74; S_B = 75; S_C = 76; S_D = 77
S_BUCKET = 78; S_NODE0 = 79
S_CNT = 80; S_L1 = 81; S_L2 = 82; S_L3 = 83; S_NT = 84; S_MODE = 85; S_NH = 86; S_SPIN = 87; S_PH = 88; S_B1 = 89
S_T0 = S_CNT; S_T1 = S_NT; S_T2 = S_MODE; S_T3 = S_PH; S_RL = S_EX
S_SL = S_L1; S_TILE = S_L2; S_FB = S_L3
S_PP = S_L2
S_DRY = 1
S_SO = 4; S_TASK = 5; S_CUT = 6; S_STEP = 7
vZ = 13

def spin_bound(o, lds=False): o(f"s_mov_b32 s{S_SPIN}, {0x400000 if lds else 0x10000}")
def spin_tail(o, lab, sleep):
    if sleep: o(f"s_sleep {sleep}")
    o(f"s_sub_u32 s{S_SPIN}, s{S_SPIN}, 1")
    o(f"s_cbranch_scc0 {lab}")

def lds_wait(o, lab, vA, off, target, vT, sleep=1):
    sleep = SL1 if sleep else SL0
    spin_bound(o, True)
    o(f"{lab}:")
    o(f"ds_read_b32 v{vT}, v{vA} offset:{off}")
    o("s_waitcnt lgkmcnt(0)")
    o(f"v_readfirstlane_b32 s{S_A}, v{vT}")
    o(f"s_cmp_ge_u32 s{S_A}, {target}")
    o(f"s_cbranch_scc1 {lab}_ok")
    spin_tail(o, lab, sleep)
    o(f"{lab}_ok:")

def lds_inc(o, vA, off):
    o("s_mov_b64 exec, 1")
    o(f"ds_add_u32 v{vA}, v15 offset:{off}")
    o("s_mov_b64 exec, -1")

def soft_barrier(o, lab, target, vT):
    o("s_waitcnt lgkmcnt(0)")
    lds_inc(o, vZ, F_SOFT)
    lds_wait(o, lab, vZ, F_SOFT, target, vT, 0)

def get_tag(o, lab):
    spin_bound(o)
    o(f"{lab}:")
    o(f"buffer_load_dwordx2 v[6:7], v{vZ}, {sr(R_DBG,4)}, 0 offen{PSC}")
    o("s_waitcnt vmcnt(0)")
    o(f"v_readfirstlane_b32 s{S_NK}, v6")
    o(f"v_readfirstlane_b32 s{S_NH}, v7")
    o(f"s_cmp_lg_u32 s{S_NH}, 0")
    o(f"s_cbranch_scc1 {lab}_ok")
    spin_tail(o, lab, 4)
    o(f"{lab}_ok:")

def poll_tables(o, lab, ph, v):
    o(f"v_lshlrev_b32 v3, 4, v2")
    o(f"s_lshl_b32 s{S_C}, s{S_SL0}, 10")
    o(f"s_add_u32 s{S_C}, s{S_C}, {TF_OFF + 1024*ph}")
    spin_bound(o)
    o(f"{lab}:")
    o(f"buffer_load_dwordx4 {vr(v,4)}, v3, {sr(R_WS,4)}, s{S_C} offen{PSC}")
    o("s_waitcnt vmcnt(0)")
    o(f"v_xor_b32 v{v}, s{S_NK}, v{v}")
    o(f"v_xor_b32 v{v+1}, s{S_NH}, v{v+1}")
    o(f"v_xor_b32 v{v+2}, s{S_NK}, v{v+2}")
    o(f"v_xor_b32 v{v+3}, s{S_NH}, v{v+3}")
    o(f"v_or3_b32 v{v}, v{v}, v{v+1}, v{v+2}")
    o(f"v_or_b32 v{v}, v{v}, v{v+3}")
    o(f"v_cmp_ne_u32 vcc, 0, v{v}")
    o(f"s_cbranch_vccz {lab}_ok")
    spin_tail(o, lab, TSL)
    o(f"{lab}_ok:")

def publish_tf(o, ph):
    o(f"s_lshl_b32 s{S_B}, s{S_SL0}, 7")
    o(f"s_add_u32 s{S_B}, s{S_B}, s{S_BUCKET}")
    o(f"s_lshl_b32 s{S_B}, s{S_B}, 3")
    o(f"s_add_u32 s{S_B}, s{S_B}, {TF_OFF + 1024*ph}")
    o(f"v_mov_b32 v6, s{S_NK}")
    o(f"v_mov_b32 v7, s{S_NH}")
    o("s_mov_b64 exec, 1")
    o(f"buffer_store_dwordx2 v[6:7], v{vZ}, {sr(R_WS,4)}, s{S_B} offen sc1")
    o("s_mov_b64 exec, -1")

def finalize(o, vDen, vNum, vIX, vIY, vU, vXr, vT, vOA):
    if vIX is not None:
        o(f"v_pk_fma_f32 {vr(vDen,2)}, {vr(vDen,2)}, {vr(vIX,2)}, {sr(S_EPS,2)}")
        o(f"v_pk_fma_f32 {vr(vDen+2,2)}, {vr(vDen+2,2)}, {vr(vIY,2)}, {sr(S_EPS,2)}")
        o(f"v_pk_mul_f32 {vr(vNum,2)}, {vr(vNum,2)}, {vr(vIX,2)}")
        o(f"v_pk_mul_f32 {vr(vNum+2,2)}, {vr(vNum+2,2)}, {vr(vIY,2)}")
    else:
        o(f"v_pk_add_f32 {vr(vDen,2)}, {vr(vDen,2)}, {sr(S_EPS,2)}")
        o(f"v_pk_add_f32 {vr(vDen+2,2)}, {vr(vDen+2,2)}, {sr(S_EPS,2)}")
    o(f"v_lshlrev_b32 v{vT}, 16, v{vU}")
    o(f"v_lshlrev_b32 v{vT+1}, 16, v{vU+1}")
    o(f"v_and_b32 v{vT+2}, 0xffff0000, v{vU}")
    o(f"v_and_b32 v{vT+3}, 0xffff0000, v{vU+1}")
    for i in range(4): o(f"v_rcp_f32 v{vDen+i}, v{vDen+i}")
    o(f"v_lshlrev_b32 v{vT+4}, 16, v{vXr}")
    o(f"v_lshlrev_b32 v{vT+5}, 16, v{vXr+1}")
    o(f"v_pk_fma_f32 {vr(vT,2)}, {vr(vNum,2)}, {vr(vDen,2)}, {vr(vT,2)}")
    o(f"v_pk_fma_f32 {vr(vT+2,2)}, {vr(vNum+2,2)}, {vr(vDen+2,2)}, {vr(vT+2,2)}")
    o(f"v_and_b32 v{vT+6}, 0xffff0000, v{vXr}")
    o(f"v_and_b32 v{vT+7}, 0xffff0000, v{vXr+1}")
    for i in range(4): o(f"v_max_f32 v{vT+i}, 0, v{vT+i}")
    o(f"v_pk_add_f32 {vr(vT,2)}, {vr(vT,2)}, {vr(vT+4,2)}")
    o(f"v_pk_add_f32 {vr(vT+2,2)}, {vr(vT+2,2)}, {vr(vT+6,2)}")
    o(f"v_cvt_pk_bf16_f32 v{vT+4}, v{vT}, v{vT+2}")
    o(f"v_cvt_pk_bf16_f32 v{vT+5}, v{vT+1}, v{vT+3}")
    o(f"buffer_store_dwordx2 {vr(vT+4,2)}, v{vOA}, {sr(R_OUT,4)}, 0 offen{OUTF}")

def tag_parts(o):
    o(f"s_lshr_b32 s{S_T0}, s{S_NK}, 12")
    o(f"s_lshr_b32 s{S_T1}, s{S_NK}, 18")
    o(f"s_lshr_b32 s{S_T2}, s{S_NH}, 16")

def xsrc(o, d=12, t=3, u=4):
    o(f"v_lshrrev_b32 v{d}, 4, v2")
    o(f"v_lshlrev_b32 v{t}, 2, v{d}")
    o(f"v_and_b32 v{u}, 15, v2")
    o(f"v_xor_b32 v{t}, v{t}, v{u}")
    o(f"v_lshlrev_b32 v{t}, 4, v{t}")
    o(f"v_lshl_add_u32 v{d}, v{d}, 8, v{t}")

def kernel(o):
    vX = 16; vW = 48; aP = 64; aQ = 80; vD = 96; vREC = 104
    vWA = 120
    vWC = 124
    vSTG = 8
    NTM = 16 - TEAM0
    o(f"s_cmp_ge_u32 s{S_WG}, 256")
    o(f"s_cbranch_scc1 L_exit")
    stamp(o, 0)
    o(f"s_load_dwordx16 s[4:19], s[0:1], 0")
    o(f"s_load_dwordx8 s[20:27], s[0:1], 64")
    o(f"s_getpc_b64 {sr(S_EX,2)}")
    o(f"v_lshlrev_b32 v3, 6, v0")
    o(f"s_movk_i32 s{S_A}, {1 if 'nocpf' in OPT else PFN}")
    o(f"v_cmpx_gt_u32 vcc, s{S_A}, v0")
    o(f"global_load_dword v119, v3, {sr(S_EX,2)}")
    o("s_mov_b64 exec, -1")
    o(f"v_lshrrev_b32 v1, 6, v0")
    o(f"v_and_b32 v2, 63, v0")
    o(f"v_readfirstlane_b32 s{S_WAVE}, v1")
    o(f"v_lshlrev_b32 v9, 2, v0")
    o(f"v_mov_b32 v{vZ}, 0")
    o(f"s_movk_i32 s{S_A}, {SLOT//4}")
    o(f"v_cmpx_gt_u32 vcc, s{S_A}, v0")
    o(f"ds_write_b32 v9, v{vZ}")
    o("s_mov_b64 exec, -1")
    o(f"s_cmp_lt_u32 s{S_WAVE}, {TEAM0}")
    o(f"s_cbranch_scc1 L_noprio")
    o("s_setprio 3")
    o("L_noprio:")
    o(f"s_mov_b32 s{S_HALF}, 0x8000")
    o(f"s_mov_b32 s{S_PERM}, 0x07060302")
    o(f"s_mov_b32 s{S_CT}, {LOG2E_NEG:#x}")
    o(f"s_mov_b32 s{S_CT+1}, {TINY:#x}")
    o(f"s_mov_b32 s{S_EPS}, {EPS:#x}")
    o(f"s_mov_b32 s{S_EPS+1}, {EPS:#x}")
    o(f"s_bfe_u32 s{S_SL0}, s{S_WG}, 0x10002")
    o(f"s_lshl_b32 s{S_SL0}, s{S_SL0}, 1")
    o(f"s_lshr_b32 s{S_BUCKET}, s{S_WG}, 3")
    o(f"s_and_b32 s{S_A}, s{S_WG}, 3")
    o(f"s_lshl_b32 s{S_A}, s{S_A}, 5")
    o(f"s_add_u32 s{S_BUCKET}, s{S_BUCKET}, s{S_A}")
    o(f"s_mul_i32 s{S_NODE0}, s{S_BUCKET}, {NPB}")
    o(f"v_mov_b32 v15, 1")
    o(f"v_and_b32 v1, 7, v2")
    o(f"v_lshlrev_b32 v14, 3, v1")
    o(f"v_subrev_u32 v4, {TEAM0*64}, v0")
    o(f"v_lshlrev_b32 v3, 4, v4")
    o(f"v_lshlrev_b32 v5, 3, v4")
    o(f"s_mul_i32 s{S_C}, s{S_WG}, {CH*4}")
    o(f"s_mul_i32 s{S_B}, s{S_WG}, {CH*2}")
    o(f"v_lshrrev_b32 v12, 3, v2")
    o(f"v_lshrrev_b32 v6, 2, v2")
    o(f"v_and_b32 v6, 4, v6")
    o(f"v_xor_b32 v6, v6, v1")
    o(f"v_lshlrev_b32 v6, 4, v6")
    o(f"v_lshl_add_u32 v12, v12, 8, v6")
    o("s_waitcnt lgkmcnt(0)")
    if WSO:
        o(f"s_add_u32 s{S_WS}, s{S_WS}, {WSO}")
        o(f"s_addc_u32 s{S_WS+1}, s{S_WS+1}, 0")
    srd(o, R_DBG, S_DBG, 256)
    o(f"s_cmp_eq_u32 s{S_WAVE}, 8")
    o(f"s_cbranch_scc0 L_notag")
    o(f"s_cmp_eq_u32 s{S_WG}, 0")
    o(f"s_cbranch_scc0 L_notag")
    o(f"s_memrealtime {sr(S_EX,2)}")
    o("s_waitcnt lgkmcnt(0)")
    o(f"s_lshl_b32 s{S_A}, s{S_EX}, 22")
    o(f"s_lshr_b64 {sr(S_EX,2)}, {sr(S_EX,2)}, 10")
    o(f"s_or_b32 s{S_D}, s{S_EX}, 0x80000000")
    o(f"v_mov_b32 v6, s{S_A}")
    o(f"v_mov_b32 v7, s{S_D}")
    o("s_mov_b64 exec, 1")
    o(f"buffer_store_dwordx2 v[6:7], v{vZ}, {sr(R_DBG,4)}, 0 offen sc1")
    o("s_mov_b64 exec, -1")
    o("L_notag:")
    srd(o, R_T0, S_DST, E*4)
    srd(o, R_T1, S_SRC, E*4)
    srd(o, R_T2, S_E, E*2)
    vDST, vSRC, vE, vB, vR, vRec = 16, 20, 24, 28, 32, 36
    o(f"s_cmp_lt_u32 s{S_WAVE}, {TEAM0}")
    o(f"s_cbranch_scc1 L_noedge")
    o(f"buffer_load_dwordx4 {vr(vDST,4)}, v3, {sr(R_T0,4)}, s{S_C} offen{ENT}")
    o(f"buffer_load_dwordx4 {vr(vSRC,4)}, v3, {sr(R_T1,4)}, s{S_C} offen{ENT}")
    o(f"buffer_load_dwordx2 {vr(vE,2)}, v5, {sr(R_T2,4)}, s{S_B} offen{ENT}")
    o("L_noedge:")
    if "b0late" not in OPT: o("s_barrier")
    o(f"s_cmp_lt_u32 s{S_WAVE}, 8")
    o(f"s_cbranch_scc0 L_now")
    o(f"s_bitcmp1_b32 s{S_WAVE}, 2")
    o(f"s_cselect_b32 s{S_A}, s{S_WA}, s{S_WB}")
    o(f"s_cselect_b32 s{S_B}, s{S_WA+1}, s{S_WB+1}")
    o(f"s_cselect_b32 s{S_C}, s{S_WU}, s{S_WV}")
    o(f"s_cselect_b32 s{S_D}, s{S_WU+1}, s{S_WV+1}")
    o(f"s_bitcmp1_b32 s{S_WAVE}, 1")
    o(f"s_cselect_b32 s{R_W}, s{S_C}, s{S_A}")
    o(f"s_cselect_b32 s{R_W+1}, s{S_D}, s{S_B}")
    o(f"s_and_b32 s{R_W+1}, s{R_W+1}, 0xffff")
    o(f"s_mov_b32 s{R_W+2}, 32768")
    o(f"s_mov_b32 s{R_W+3}, 0x20000")
    o(f"s_and_b32 s{S_A}, s{S_WAVE}, 1")
    o(f"s_lshl_b32 s{S_A}, s{S_A}, 14")
    o(f"s_lshl_b32 s{S_B}, s{S_SL0}, 6")
    o(f"s_add_u32 s{S_A}, s{S_A}, s{S_B}")
    o(f"s_lshl_b32 s{S_C}, s{S_WAVE}, 13")
    for i in range(8):
        o(f"s_add_u32 m0, s{S_C}, {WOFF + 1024*i}")
        o(f"s_add_u32 s{S_D}, s{S_A}, {2048*i}")
        o(f"buffer_load_dwordx4 v12, {sr(R_W,4)}, s{S_D} offen lds")
    if "b0late" not in OPT: lds_inc(o, vZ, F_WI)
    o("L_now:")
    if "b0late" in OPT: o("s_barrier")
    srd(o, R_W, S_WC, 256)
    o(f"s_lshl_b32 s{S_B}, s{S_SL0}, 6")
    o(f"buffer_load_dwordx2 {vr(vWC,2)}, v14, {sr(R_W,4)}, s{S_B} offen")
    o(f"buffer_load_dwordx2 {vr(vWC+2,2)}, v14, {sr(R_W,4)}, s{S_B} offen offset:64")
    srd(o, R_X, S_X, N*256)
    srd(o, R_WS, S_WS, WS_USED)
    srd(o, R_OUT, S_OUT, N*256)
    o(f"s_mul_i32 s{S_A}, s{S_SL0}, {TSTRIDE}")
    o(f"s_add_u32 s{R_TAB}, s{S_WS}, s{S_A}")
    o(f"s_addc_u32 s{R_TAB+1}, s{S_WS+1}, 0")
    o(f"s_and_b32 s{R_TAB+1}, s{R_TAB+1}, 0xffff")
    o(f"s_mov_b32 s{R_TAB+2}, {2*TSTRIDE}")
    o(f"s_mov_b32 s{R_TAB+3}, 0x20000")
    if "dry" in OPT: o(f"s_mov_b32 s{S_DRY}, 0")
    if "tlb" in OPT:
        o(f"s_cmp_eq_u32 s{S_WAVE}, 8")
        o(f"s_cbranch_scc0 L_notlb")
        o(f"v_lshlrev_b32 v3, {TLBS}, v2")
        o(f"buffer_load_dword v118, v3, {sr(R_WS,4)}, 0 offen sc1")
        o(f"s_lshl_b32 s{S_A}, s{S_NODE0}, 8")
        o(f"buffer_load_dword v117, v{vZ}, {sr(R_OUT,4)}, s{S_A} offen sc1")
        o("L_notlb:")
    if "dry" in OPT:
        o(f"s_cmp_eq_u32 s{S_WAVE}, {DRYW}")
        o(f"s_cbranch_scc0 L_dry_ret")
        for r in (3, 73, 75, 104, 106, 108, 110): o(f"v_mov_b32 v{r}, 0")
        o(f"s_mov_b32 s{S_DRY}, 1")
        o(f"s_mov_b32 s{S_PH}, 0")
        o(f"s_mov_b32 s{S_NT}, {PD}")
        o(f"s_mov_b32 s{S_CNT}, 1")
        o(f"s_mov_b32 s{S_L1}, 1")
        o(f"s_mov_b32 s{S_NK}, 0")
        o(f"s_mov_b32 s{S_NH}, 0")
        o("s_mov_b64 vcc, 0")
        o("s_mov_b64 exec, 0")
        o("s_branch M_prime")
        o("L_dry_ret:")
        o("s_mov_b64 exec, -1")
        o(f"s_mov_b32 s{S_DRY}, 0")
    o(f"s_cmp_lt_u32 s{S_WAVE}, {TEAM0}")
    o(f"s_cbranch_scc1 L_gemm")
    o(f"s_cmp_eq_u32 s{S_WG}, 255")
    o(f"s_movk_i32 s{S_C}, {CH//4}")
    o(f"s_cselect_b32 s{S_C}, {(E-255*CH)//4}, s{S_C}")
    o(f"s_mov_b32 s{S_B}, 85599")
    o(f"s_movk_i32 s{S_D}, {NPB}")
    o("s_waitcnt vmcnt(2)")
    o(f"s_cmp_eq_u32 s{S_WAVE}, 15")
    o(f"s_cbranch_scc0 L_notl")
    o(f"buffer_load_dwordx2 v[48:49], v{vZ}, {sr(R_DBG,4)}, 0 offen{PSC}")
    o("L_notl:")
    stamp(o, 1)
    for r in range(4):
        o(f"v_mul_u32_u24 v{vB+r}, s{S_B}, v{vDST+r}")
        o(f"v_lshrrev_b32 v{vB+r}, 24, v{vB+r}")
        o(f"v_mul_u32_u24 v3, s{S_D}, v{vB+r}")
        o(f"v_sub_u32 v3, v{vDST+r}, v3")
        o(f"v_lshlrev_b32 v3, 2, v3")
        o(f"v_lshl_or_b32 v{vRec+2*r}, v{vSRC+r}, 16, v3")
        o(f"v_lshlrev_b32 v{vB+r}, 2, v{vB+r}")
        if r & 1: o(f"v_and_b32 v{vRec+2*r+1}, 0xffff0000, v{vE+(r>>1)}")
        else:     o(f"v_lshlrev_b32 v{vRec+2*r+1}, 16, v{vE+(r>>1)}")
    o(f"v_cmpx_gt_u32 vcc, s{S_C}, v4")
    for r in range(4):
        o(f"ds_add_rtn_u32 v{vR+r}, v{vB+r}, v15 offset:{HISTA}")
    o("s_mov_b64 exec, -1")
    o(f"v_lshlrev_b32 v8, 3, v2")
    o(f"s_cmp_eq_u32 s{S_WAVE}, 14")
    o(f"s_cbranch_scc0 L_noxd")
    xsrc(o, 46, 44, 45)
    o(f"s_add_u32 s{S_A}, s{S_NODE0}, {16*TEAM0}")
    o(f"s_lshl_b32 s{S_A}, s{S_A}, 8")
    for w in range(TEAM0, 13):
        for i in range(4 if w < 12 else 1):
            o(f"s_mov_b32 m0, {XT + (w >> 1)*XTS + (w & 1)*4160 + 16*i}")
            o("s_nop 0")
            o(f"buffer_load_dwordx4 v46, {sr(R_X,4)}, s{S_A} offen offset:{i*1024}{XNT} lds")
        if w < 12: o(f"s_add_u32 s{S_A}, s{S_A}, 4096")
    o("L_noxd:")
    soft_barrier(o, "L_sb1", NTM, 3)
    o(f"s_cmp_eq_u32 s{S_WAVE}, 15")
    o(f"s_cbranch_scc0 L_notl2")
    o(f"buffer_load_dwordx2 v[70:71], v{vZ}, {sr(R_DBG,4)}, 0 offen{PSC}")
    o("L_notl2:")
    o(f"ds_read_b64 v[6:7], v8 offset:{HISTA}")
    o("s_waitcnt lgkmcnt(0)")
    o(f"v_add_u32 v11, v6, v7")
    scan64(o, 11)
    o(f"v_sub_u32 v11, v11, v7")
    o(f"v_sub_u32 v10, v11, v6")
    o(f"ds_write_b64 v8, v[10:11] offset:{BASE}")
    for r in range(4):
        o(f"ds_read_b32 v{vDST+r}, v{vB+r} offset:{BASE}")
    o(f"v_lshl_or_b32 v10, v6, 11, v10")
    o(f"v_lshl_or_b32 v11, v7, 11, v11")
    o(f"v_mov_b32 v3, {RECS}")
    o("s_waitcnt lgkmcnt(0)")
    o(f"v_cmpx_gt_u32 vcc, s{S_C}, v4")
    for r in range(4):
        o(f"v_add_u32 v{vDST+r}, v{vDST+r}, v{vR+r}")
        o(f"v_lshl_add_u32 v{vDST+r}, v{vDST+r}, 3, v3")
        o(f"ds_write_b64 v{vDST+r}, {vr(vRec+2*r,2)}")
    o("s_mov_b64 exec, -1")
    o("s_waitcnt lgkmcnt(0)")
    lds_inc(o, vZ, F_SOFT)
    stamp(o, 2)
    o(f"s_cmp_lt_u32 s{S_WAVE}, 14")
    o(f"s_cbranch_scc1 L_gemm")
    o(f"s_cmp_eq_u32 s{S_WAVE}, 14")
    o(f"s_cbranch_scc1 L_w14")
    o("s_waitcnt vmcnt(1)")
    o(f"v_readfirstlane_b32 s{S_NK}, v48")
    o(f"v_readfirstlane_b32 s{S_NH}, v49")
    o(f"s_cmp_lg_u32 s{S_NH}, 0")
    o(f"s_cbranch_scc1 L_ga_ok")
    o("s_waitcnt vmcnt(0)")
    o(f"v_readfirstlane_b32 s{S_NK}, v70")
    o(f"v_readfirstlane_b32 s{S_NH}, v71")
    o(f"s_cmp_lg_u32 s{S_NH}, 0")
    o(f"s_cbranch_scc1 L_ga_ok")
    get_tag(o, "L_ga")
    o(f"v_or_b32 v{VE}, s{S_NK}, v10")
    o(f"v_mov_b32 v{VE+1}, s{S_NH}")
    o(f"v_or_b32 v{VE+2}, s{S_NK}, v11")
    o(f"v_mov_b32 v{VE+3}, s{S_NH}")
    o(f"v_mov_b32 v6, s{S_NK}")
    o(f"v_mov_b32 v7, s{S_NH}")
    o(f"v_lshlrev_b32 v4, 4, v2")
    if "entlast" not in OPT:
        o(f"s_lshl_b32 s{S_B}, s{S_WG}, 10")
        o(f"s_add_u32 s{S_B}, s{S_B}, {OFF_OFF}")
        o(f"buffer_store_dwordx4 {vr(VE,4)}, v4, {sr(R_WS,4)}, s{S_B} offen{SC}")
    o(f"ds_write_b64 v{vZ}, v[6:7] offset:{F_TAG}")
    stamp(o, 3)
    lds_wait(o, "L_sb2", vZ, F_SOFT, 2*NTM, 3, 0)
    o(f"v_add_u32 v12, {RECS}, v4")
    for i in range(13):
        o(f"ds_read_b128 {vr(16+4*i,4)}, v12 offset:{i*1024}")
    tag_parts(o)
    o(f"s_mul_i32 s{S_B}, s{S_WG}, {SEG}")
    o(f"s_add_u32 s{S_B}, s{S_B}, {REC_OFF}")
    o(f"v_mov_b32 v6, 0xfc00")
    o(f"v_mov_b32 v7, 0xffff")
    for i in range(13):
        if i and i % 4 == 0: o(f"s_add_u32 s{S_B}, s{S_B}, 4096")
        o(f"s_waitcnt lgkmcnt({12-i})")
        o(f"v_bfi_b32 v{16+4*i}, v6, s{S_T0}, v{16+4*i}")
        o(f"v_bfi_b32 v{17+4*i}, v7, s{S_NH}, v{17+4*i}")
        o(f"v_bfi_b32 v{18+4*i}, v6, s{S_T1}, v{18+4*i}")
        o(f"v_bfi_b32 v{19+4*i}, v7, s{S_T2}, v{19+4*i}")
        if i == 12: o("s_mov_b64 exec, 0xffff")
        o(f"buffer_store_dwordx4 {vr(16+4*i,4)}, v4, {sr(R_WS,4)}, s{S_B} offen offset:{(i&3)*1024}{SC}")
    o("s_mov_b64 exec, -1")
    if "entlast" in OPT:
        if "drain" in OPT: o("s_waitcnt vmcnt(0)")
        o(f"s_lshl_b32 s{S_B}, s{S_WG}, 10")
        o(f"s_add_u32 s{S_B}, s{S_B}, {OFF_OFF}")
        o(f"buffer_store_dwordx4 {vr(VE,4)}, v4, {sr(R_WS,4)}, s{S_B} offen{SC}")
    stamp(o, 4)
    o(f"s_cmp_eq_u32 s{S_BUCKET}, 127")
    o(f"s_cbranch_scc0 L_rec")
    o(f"v_lshrrev_b32 v3, 3, v2")
    o(f"s_mov_b32 s{S_B}, {TSTRIDE}")
    o(f"v_mul_lo_u32 v3, v3, s{S_B}")
    o(f"v_lshl_add_u32 v3, v1, 4, v3")
    o(f"s_mov_b32 s{S_B}, {DUMMY_ROW*128}")
    o(f"v_mov_b32 v20, 0x7f007f00")
    o(f"v_mov_b32 v21, 0x7f007f00")
    o(f"v_mov_b32 v22, 0")
    o(f"v_mov_b32 v23, 0")
    o("s_mov_b64 exec, 0xffff")
    o(f"buffer_store_dwordx4 {vr(20,4)}, v3, {sr(R_TAB,4)}, s{S_B} offen{SC}")
    o("s_mov_b64 exec, -1")
    o("s_branch L_rec")
    o("L_w14:")
    def tcinc():
        o(f"v_mov_b32 v4, 2")
        o("s_mov_b64 exec, 1")
        o(f"ds_add_u32 v{vZ}, v15 offset:{F_TC+16}")
        o(f"ds_add_u32 v{vZ}, v4 offset:{F_TC+20}")
        o(f"ds_add_u32 v{vZ}, v4 offset:{F_TC+24}")
        o("s_mov_b64 exec, -1")
    def pollissue():
        for i in range(4):
            o(f"buffer_load_dwordx2 {vr(16+2*i,2)}, v3, {sr(R_WS,4)}, s{S_B} offen offset:{1024*i}{ESC}")
    o(f"v_lshlrev_b32 v3, 12, v2")
    o(f"s_lshl_b32 s{S_B}, s{S_BUCKET}, 3")
    o(f"s_add_u32 s{S_B}, s{S_B}, {OFF_OFF}")
    if "pe" in OPT:
        if PESL: o(f"s_sleep {PESL}")
        pollissue()
        o("s_waitcnt vmcnt(4)")
    else:
        o("s_waitcnt vmcnt(0)")
    tcinc()
    lds_wait(o, "L_wtag", vZ, F_TAG+4, 1, 5)
    o(f"ds_read_b32 v5, v{vZ} offset:{F_TAG}")
    o(f"s_mov_b32 s{S_NH}, s{S_A}")
    o("s_waitcnt lgkmcnt(0)")
    o(f"v_readfirstlane_b32 s{S_NK}, v5")
    spin_bound(o)
    if "pe" in OPT: o("s_branch L_pa1")
    o("L_pa:")
    pollissue()
    o("L_pa1:")
    o("s_waitcnt vmcnt(0)")
    for i in range(4):
        o(f"v_xor_b32 v{24+i}, s{S_NK}, v{16+2*i}")
        o(f"v_xor_b32 v{17+2*i}, s{S_NH}, v{17+2*i}")
    o(f"v_or3_b32 v6, v24, v25, v26")
    o(f"v_or_b32 v6, v6, v27")
    o(f"v_lshrrev_b32 v6, 22, v6")
    o(f"v_or3_b32 v6, v6, v17, v19")
    o(f"v_or3_b32 v6, v6, v21, v23")
    o(f"v_cmpx_ne_u32 vcc, 0, v6")
    o(f"s_cbranch_execz L_pa_ok")
    spin_tail(o, "L_pa", 2)
    o("L_pa_ok:")
    o("s_mov_b64 exec, -1")
    if "cpf3" in OPT:
        o(f"s_getpc_b64 {sr(S_EX,2)}")
        o(f"s_add_u32 s{S_EX}, s{S_EX}, L_rec-L_pa_ok-16")
        o(f"s_addc_u32 s{S_EX+1}, s{S_EX+1}, 0")
        o(f"v_lshlrev_b32 v3, 7, v2")
        o(f"s_mov_b32 exec_hi, 0xfff")
        o(f"global_load_dword v52, v3, {sr(S_EX,2)}")
        o("s_mov_b64 exec, -1")
    stamp(o, 3)
    o(f"v_lshlrev_b32 v3, 4, v2")
    o(f"ds_write_b128 v3, {vr(24,4)} offset:{OFFL}")
    o("s_waitcnt lgkmcnt(0)")
    o(f"ds_write_b32 v{vZ}, v15 offset:{F_OFFL}")
    o("s_branch L_rec")
    o("L_gemm:")
    if "gp" not in OPT and "gp2" not in OPT: o("s_setprio 0")
    if "gp2" in OPT:
        o(f"s_cmp_lt_u32 s{S_WAVE}, 4")
        o("s_cbranch_scc1 L_gp")
        o("s_setprio 1")
        o(f"s_cmp_lt_u32 s{S_WAVE}, 8")
        o("s_cbranch_scc1 L_gp")
        o("s_setprio 2")
        o("L_gp:")
    xsrc(o)
    if "nowi" not in OPT and "b0late" not in OPT: lds_wait(o, "L_wi", vZ, F_WI, 8, 3, 0)
    o(f"s_lshr_b32 s{S_TILE}, s{S_WAVE}, 1")
    o(f"s_and_b32 s{S_FB}, s{S_WAVE}, 1")
    o(f"s_add_u32 s{S_SL}, s{S_SL0}, s{S_FB}")
    o(f"s_lshl_b32 s{S_A}, s{S_WAVE}, 4")
    o(f"s_add_u32 s{S_A}, s{S_A}, s{S_NODE0}")
    o(f"s_lshl_b32 s{S_A}, s{S_A}, 8")
    o(f"s_mul_i32 s{S_C}, s{S_TILE}, {XTS}")
    o(f"s_add_u32 s{S_C}, s{S_C}, {XT}")
    o(f"s_mul_i32 s{S_B}, s{S_FB}, 4160")
    o(f"s_add_u32 s{S_B}, s{S_B}, s{S_C}")
    o(f"s_cmp_ge_u32 s{S_WAVE}, {TEAM0}")
    o(f"s_cbranch_scc1 L_xdone")
    for i in range(4):
        o(f"s_add_u32 m0, s{S_B}, {16*i}")
        o("s_nop 0")
        o(f"buffer_load_dwordx4 v12, {sr(R_X,4)}, s{S_A} offen offset:{i*1024}{XNT} lds")
    o("L_xdone:")
    o(f"s_cmp_lt_u32 s{S_WAVE}, 8")
    o(f"s_cbranch_scc0 L_w4")
    o("s_waitcnt vmcnt(4)")
    lds_inc(o, vZ, F_W)
    o("L_w4:")
    if STAMP is not None and STAMP < TEAM0: stamp(o, 1)
    o(f"v_and_b32 v6, 31, v2")
    o(f"v_lshrrev_b32 v7, 5, v2")
    o(f"v_lshrrev_b32 v3, 2, v6")
    o(f"s_movk_i32 s{S_A}, 1040")
    o(f"v_mul_u32_u24 v3, s{S_A}, v3")
    o(f"v_and_b32 v12, 3, v6")
    o(f"v_lshl_add_u32 v3, v12, 8, v3")
    o(f"v_lshl_add_u32 v3, v7, 4, v3")
    o(f"v_add_u32 v3, s{S_C}, v3")
    o(f"v_xor_b32 v12, s{S_SL}, v12")
    for u in range(4):
        o(f"v_xor_b32 v4, {u}, v12")
        o(f"v_lshl_add_u32 v{vD+u}, v4, 6, v3")
    o(f"v_bfe_u32 v3, v2, 2, 2")
    o(f"v_lshl_add_u32 v8, v7, 3, v3")
    o(f"v_lshlrev_b32 v8, 7, v8")
    o(f"v_lshrrev_b32 v3, 1, v3")
    o(f"v_xor_b32 v3, s{S_FB}, v3")
    o(f"v_lshl_add_u32 v8, v3, 6, v8")
    o(f"v_bfe_u32 v3, v2, 4, 1")
    o(f"v_lshl_add_u32 v8, v3, 5, v8")
    o(f"v_and_b32 v3, 3, v2")
    o(f"v_lshl_add_u32 v8, v3, 3, v8")
    for u in range(4):
        o(f"s_xor_b32 s{S_A}, s{S_SL}, {u}")
        o(f"s_lshl_b32 s{S_A}, s{S_A}, 12")
        o(f"s_add_u32 s{S_A}, s{S_A}, {WOFF}")
        o(f"v_add_u32 v{vWA+u}, s{S_A}, v8")
    o(f"s_lshl_b32 s{S_A}, s{S_TILE}, 2")
    o(f"v_mov_b32 v11, s{S_A}")
    o(f"s_lshl_b32 s{S_D}, s{S_FB}, 12")
    o(f"s_add_u32 s{S_D}, s{S_D}, s{S_C}")
    o("s_waitcnt vmcnt(0)")
    o(f"s_cmp_ge_u32 s{S_WAVE}, {TEAM0}")
    o(f"s_cbranch_scc1 L_noinc")
    lds_inc(o, 11, F_TC)
    o("L_noinc:")
    lds_wait(o, "L_wt", 11, F_TC, 2, 3, 0)
    stamp(o, 2 if STAMP is not None and STAMP < TEAM0 else 3)
    for t in range(8):
        o(f"ds_read_b128 {vr(vX+4*t,4)}, v{vD+(t>>1)} offset:{(t&1)*32}")
    o("s_waitcnt lgkmcnt(0)")
    lds_inc(o, 11, F_TC)
    lds_wait(o, "L_ww", vZ, F_W, 8, 3)
    gstamp(o, 5)
    gemm_pair(o, vW, vX, aP, aQ, vWA, 0)
    gstamp(o, 6)
    for i in range(0, 16, 2):
        o(f"v_pk_fma_f32 {vr(aP+i,2)}, {vr(aP+i,2)}, {sr(S_CT,2)}, {sr(S_CT,2)} op_sel:[0,0,1] op_sel_hi:[1,0,1]")
    for i in range(0, 16, 2):
        o(f"v_pk_add_f32 {vr(aQ+i,2)}, {vr(aQ+i,2)}, {sr(S_CT,2)} op_sel:[0,1] op_sel_hi:[1,1]")
    lds_wait(o, "L_wu", 11, F_TC, 4, 3, 0)
    gstamp(o, 7)
    o(f"v_and_b32 v3, 7, v6")
    o(f"v_xor_b32 v3, v3, v7")
    o(f"v_lshlrev_b32 v3, 4, v3")
    o(f"v_lshl_add_u32 v3, v6, 7, v3")
    o(f"v_add_u32 v3, s{S_D}, v3")
    for q in range(4):
        d = vD + (q & 1)*4
        encode4(o, aP+4*q, d); encode4(o, aQ+4*q, d+2)
        if q: o(f"v_xor_b32 v3, {32*(q ^ (q-1))}, v3")
        o(f"ds_write_b128 v3, {vr(d,4)}")
    o(f"v_lshrrev_b32 v3, 3, v2")
    o(f"v_xor_b32 v10, v1, v3")
    o(f"v_lshlrev_b32 v10, 4, v10")
    o(f"v_lshl_add_u32 v10, v3, 7, v10")
    o(f"v_add_u32 v10, s{S_D}, v10")
    o(f"s_lshl_b32 s{S_B1}, s{S_TILE}, 5")
    o(f"s_add_u32 s{S_B1}, s{S_B1}, s{S_NODE0}")
    o(f"s_lshl_b32 s{S_B1}, s{S_B1}, 7")
    def tab_read():
        for i in range(4):
            o(f"ds_read_b128 {vr(aP+4*i,4)}, v10 offset:{i*1024}")
    def tab_store(lab, counted):
        o(f"v_lshlrev_b32 v3, 4, v2")
        o(f"s_cmp_lt_u32 s{S_WAVE}, 12")
        o(f"s_cbranch_scc1 {lab}_full")
        if counted: o("s_waitcnt lgkmcnt(0)")
        o("s_mov_b32 exec_hi, 0")
        o(f"buffer_store_dwordx4 {vr(aP,4)}, v3, {sr(R_TAB,4)}, s{S_B1} offen{SC}")
        o("s_mov_b64 exec, -1")
        o(f"s_branch {lab}")
        o(f"{lab}_full:")
        for i in range(4):
            if counted: o(f"s_waitcnt lgkmcnt({3-i})")
            o(f"buffer_store_dwordx4 {vr(aP+4*i,4)}, v3, {sr(R_TAB,4)}, s{S_B1} offen offset:{i*1024}{SC}")
        o(f"{lab}:")
    o(f"s_mul_i32 s{S_A}, s{S_FB}, {TSTRIDE}")
    o(f"s_add_u32 s{S_B1}, s{S_B1}, s{S_A}")
    gstamp(o, 8)
    o("s_waitcnt lgkmcnt(0)")
    gstamp(o, 9)
    if "ist" not in OPT:
        tab_read()
        tab_store("L_st_done", True)
        gemm_pair(o, vW, vX, aP, aQ, vWA, 32768)
    else:
        for i in range(4):
            o(f"ds_read_b128 {vr(104+4*i,4)}, v10 offset:{i*1024}")
        o(f"v_lshlrev_b32 v4, 4, v2")
        o(f"s_cmp_lt_u32 s{S_WAVE}, 12")
        o(f"s_cselect_b32 s{S_T0}, -1, 0")
        def extra(t):
            if t < 4:
                o(f"s_mov_b32 exec_hi, s{S_T0}")
                if t: o(f"s_mov_b32 exec_lo, s{S_T0}")
                o(f"buffer_store_dwordx4 {vr(104+4*t,4)}, v4, {sr(R_TAB,4)}, s{S_B1} offen offset:{t*1024}{SC}")
                o("s_mov_b64 exec, -1")
        gemm_pair(o, vW, vX, aP, aQ, vWA, 32768, extra)
    gstamp(o, 10)
    for i in range(0, 16, 2):
        o(f"v_pk_mul_f32 {vr(aP+i,2)}, {vr(aP+i,2)}, {sr(S_CT,2)} op_sel_hi:[1,0]")
    for q in range(4):
        o(f"v_cvt_pk_bf16_f32 v{vW+4*q+2}, v{aQ+4*q}, v{aQ+4*q+1}")
        o(f"v_cvt_pk_bf16_f32 v{vW+4*q+3}, v{aQ+4*q+2}, v{aQ+4*q+3}")
    o(f"v_max3_f32 v3, |v{aP}|, |v{aP+1}|, |v{aP+2}|")
    for i in range(3, 15, 2):
        o(f"v_max3_f32 v3, v3, |v{aP+i}|, |v{aP+i+1}|")
    o(f"v_max_f32 v3, v3, |v{aP+15}|")
    o(f"s_mov_b32 s{S_A}, 0x42700000")
    o(f"s_cmp_ge_u32 s{S_WAVE}, 12")
    o(f"s_cselect_b32 s{S_EX}, 0xf, -1")
    o(f"v_cmp_lt_f32 vcc, s{S_A}, v3")
    o(f"s_mov_b32 s{S_EX+1}, s{S_EX}")
    o(f"s_and_b64 vcc, vcc, {sr(S_EX,2)}")
    o(f"s_cbranch_scc0 L_doexp")
    o(f"v_lshlrev_b32 v3, s{S_WAVE}, v15")
    o(f"ds_or_b32 v{vZ}, v3 offset:{F_RANGE}")
    o("s_branch L_noexp")
    o("L_doexp:")
    for i in range(16): o(f"v_exp_f32 v{aP+i}, -v{aP+i}")
    o("L_noexp:")
    for q in range(4):
        o(f"v_cvt_pk_bf16_f32 v{vW+4*q}, v{aP+4*q}, v{aP+4*q+1}")
        o(f"v_cvt_pk_bf16_f32 v{vW+4*q+1}, v{aP+4*q+2}, v{aP+4*q+3}")
    lds_inc(o, vZ, F_GD)
    def aux_write(lab):
        o(f"s_cmp_lt_u32 s{S_WAVE}, 14")
        o(f"s_cbranch_scc0 {lab}")
        o(f"s_lshr_b32 s{S_A}, s{S_WAVE}, 1")
        o(f"s_lshl_b32 s{S_A}, s{S_A}, 5")
        o(f"v_and_b32 v3, 31, v2")
        o(f"v_add_u32 v3, s{S_A}, v3")
        o(f"s_movk_i32 s{S_A}, {AUS}")
        o(f"v_cmpx_gt_u32 vcc, s{S_A}, v3")
        o(f"s_and_b32 s{S_B}, s{S_WAVE}, 1")
        o(f"s_mul_i32 s{S_B}, s{S_B}, {AUP}")
        o(f"s_add_u32 s{S_B}, s{S_B}, {AUX}")
        o(f"v_mul_u32_u24 v3, s{S_A}, v3")
        o(f"v_lshrrev_b32 v14, 5, v2")
        o(f"v_mul_u32_u24 v14, 24, v14")
        o(f"v_add3_u32 v3, v3, v14, s{S_B}")
        o(f"v_add_u32 v14, v3, v14")
        for q in range(4):
            o(f"ds_write2_b64 v3, {vr(vW+4*q,2)}, {vr(vW+4*q+2,2)} offset0:{6*q} offset1:{6*q+1}")
        o(f"ds_write2_b64 v14, {vr(vX,2)}, {vr(vX+2,2)} offset0:2 offset1:5")
        o(f"ds_write2_b64 v14, {vr(vX+4,2)}, {vr(vX+6,2)} offset0:14 offset1:17")
        o("s_mov_b64 exec, -1")
        o(f"{lab}:")
    o("L_rec:")
    if STAMP is not None and STAMP < 14: stamp(o, 4)
    vCNT, vIDX, vRA = 4, 5, 12
    o(f"v_and_b32 v{vIDX}, 3, v0")
    o(f"v_lshrrev_b32 v3, 2, v0")
    o(f"s_movk_i32 s{S_A}, {SEG}")
    o(f"v_mul_u32_u24 v{vRA}, s{S_A}, v3")
    o(f"v_lshl_add_u32 v{vRA}, v{vIDX}, 4, v{vRA}")
    o(f"v_lshlrev_b32 v{vIDX}, 1, v{vIDX}")
    o(f"v_and_b32 v14, 0xffc, v0")
    lds_wait(o, "L_wo", vZ, F_OFFL, 1, 3)
    o(f"ds_read_b32 v{vCNT}, v14 offset:{OFFL}")
    o(f"ds_read_b64 v[6:7], v{vZ} offset:{F_TAG}")
    o("s_waitcnt lgkmcnt(0)")
    o(f"v_readfirstlane_b32 s{S_NK}, v6")
    o(f"v_readfirstlane_b32 s{S_NH}, v7")
    o(f"v_and_b32 v3, 0x7fe, v{vCNT}")
    o(f"v_lshl_add_u32 v{vRA}, v3, 3, v{vRA}")
    o(f"v_and_b32 v3, 1, v{vCNT}")
    o(f"v_sub_u32 v{vIDX}, v{vIDX}, v3")
    o(f"v_lshrrev_b32 v{vCNT}, 11, v{vCNT}")
    o(f"v_cmp_le_i32 vcc, 0, v{vIDX}")
    o(f"v_sub_u32 v{vIDX}, v{vCNT}, v{vIDX}")
    for r in range(NR):
        o(f"v_cmp_lt_i32 {sr(S_MSK+2*r,2)}, {8*(r>>1) + (r&1)}, v{vIDX}")
    o(f"s_mov_b64 {sr(S_EX,2)}, {sr(S_MSK,2)}")
    o(f"s_and_b64 {sr(S_MSK,2)}, {sr(S_MSK,2)}, vcc")
    def rec_issue(lab):
        o(f"s_mov_b32 s{S_A}, {REC_OFF}")
        for k in range(NL):
            o(f"s_mov_b64 exec, {sr(S_MSK+4*k,2) if k else sr(S_EX,2)}")
            if k >= 2: o(f"s_cbranch_execz {lab}")
            o(f"buffer_load_dwordx4 {vr(vREC+4*k,4)}, v{vRA}, {sr(R_WS,4)}, s{S_A} offen offset:{k*64}{RSC}")
        o(f"{lab}:")
        o("s_mov_b64 exec, -1")
    rec_issue("L_ld_done")
    o(f"v_cmpx_lt_u32 vcc, {8*NL-1}, v{vCNT}")
    o(f"ds_write_b32 v{vZ}, v15 offset:{F_STRUCT}")
    o("s_mov_b64 exec, -1")
    o(f"s_cmp_lt_u32 s{S_WAVE}, 14")
    o(f"s_cbranch_scc0 L_noaux")
    lds_wait(o, "L_wg", vZ, F_GD, 14, 3)
    aux_write("L_noaux")
    stamp(o, 5)
    vRK = 24; vDA = 34
    tag_parts(o)
    o(f"s_and_b32 s{S_T0}, s{S_T0}, 0xfc00")
    o(f"s_and_b32 s{S_T1}, s{S_T1}, 0xfc00")
    o(f"s_lshl_b32 s{S_T1}, s{S_T1}, 16")
    o(f"s_or_b32 s{S_T0}, s{S_T0}, s{S_T1}")
    o(f"s_mov_b32 s{S_T1}, 0x05040100")
    o(f"v_mov_b32 v7, 0xfc00fc00")
    spin_bound(o)
    o("L_chk:")
    o(f"v_mov_b32 v6, 0")
    o("s_waitcnt vmcnt(0)")
    for k in range(NL):
        o(f"s_mov_b64 exec, {sr(S_MSK+4*k,2) if k else sr(S_EX,2)}")
        if k >= 2: o(f"s_cbranch_execz L_chk_done")
        o(f"v_perm_b32 v3, v{vREC+4*k+2}, v{vREC+4*k}, s{S_T1}")
        o(f"v_perm_b32 v14, v{vREC+4*k+3}, v{vREC+4*k+1}, s{S_T1}")
        o(f"v_xor_b32 v3, s{S_T0}, v3")
        o(f"v_xor_b32 v14, s{S_NH}, v14")
        o(f"v_and_or_b32 v3, v3, v7, v14")
        o(f"v_or_b32 v6, v6, v3")
    o("L_chk_done:")
    o("s_mov_b64 exec, -1")
    o(f"v_cmp_ne_u32 vcc, 0, v6")
    o(f"s_cbranch_vccz L_chk_ok")
    rec_issue("L_ld_again")
    o(f"s_sub_u32 s{S_SPIN}, s{S_SPIN}, 1")
    o(f"s_cbranch_scc0 L_chk")
    o("L_chk_ok:")
    for r in range(NR):
        o(f"s_mov_b64 exec, {sr(S_MSK+2*r,2)}")
        if r >= 3: o("s_cbranch_execz L_cnt_done")
        o(f"v_and_b32 v{vDA+r}, 0x3ff, v{vREC+2*r}")
        o(f"v_and_b32 v{vREC+2*r+1}, 0xffff0000, v{vREC+2*r+1}")
        o(f"ds_add_rtn_u32 v{vRK+r}, v{vDA+r}, v15 offset:{DEG}")
    o("L_cnt_done:")
    o("s_setprio 0")
    o("s_mov_b64 exec, -1")
    stamp(o, 6)
    o("s_waitcnt lgkmcnt(0)")
    o("s_barrier")
    stamp(o, 7)
    vN_D, vBIN, vR2, vPOS, vL, vTB = 80, 81, 82, 83, 84, 85
    vWX, vW2, vEX, vDen, vNum, vNQ, vT, vLO, vLA, vOB, vOA, vAB, vAU = 86, 124, 90, 92, 96, 100, 64, 72, 73, 74, 75, 76, 78
    o(f"s_cmp_eq_u32 s{S_WAVE}, 15")
    o(f"s_cbranch_scc0 L_nosort")
    o("s_setprio 3")
    sD, sB, sR, sP = 48, 52, 56, 60
    o(f"v_lshlrev_b32 v8, 2, v2")
    for i in range(4): o(f"ds_read_b32 v{sD+i}, v8 offset:{DEG+256*i}")
    publish_tf(o, 0)
    publish_tf(o, 1)
    o("s_waitcnt lgkmcnt(0)")
    for i in range(4):
        o(f"v_min_u32 v{sB+i}, 63, v{sD+i}")
        o(f"v_sub_u32 v{sB+i}, 63, v{sB+i}")
        o(f"v_lshlrev_b32 v{sB+i}, 2, v{sB+i}")
        if i == 3: o("s_mov_b64 exec, 0xff")
        o(f"ds_add_rtn_u32 v{sR+i}, v{sB+i}, v15 offset:{HIST2}")
    o("s_mov_b64 exec, -1")
    o(f"ds_read_b32 v6, v8 offset:{HIST2}")
    o(f"v_max3_u32 v3, v{sD}, v{sD+1}, v{sD+2}")
    o(f"v_max_u32 v3, v3, v{sD+3}")
    o(f"v_cmp_lt_u32 vcc, 63, v3")
    o(f"s_cmp_lg_u64 vcc, 0")
    o(f"s_cselect_b32 s{S_C}, 1, 0")
    o(f"v_lshrrev_b32 v10, 1, v2")
    o(f"v_sub_u32 v11, 31, v10")
    o(f"v_and_b32 v7, 1, v2")
    o(f"v_cmp_eq_u32 vcc, 1, v7")
    o(f"v_add_u32 v12, 192, v2")
    o(f"v_mov_b32 v7, 0xffff")
    o(f"v_cndmask_b32 v10, v10, v11, vcc")
    o(f"v_and_b32 v11, 32, v2")
    o(f"v_add_u32 v10, v10, v11")
    o(f"v_cmp_gt_u32 vcc, 4, v2")
    o(f"v_cmp_gt_u32 {sr(S_EX,2)}, 25, v10")
    o(f"v_lshlrev_b32 v10, 5, v10")
    o(f"v_cndmask_b32 v12, v7, v12, vcc")
    o("s_waitcnt lgkmcnt(0)")
    o(f"v_mov_b32 v14, v6")
    scan64(o, 14)
    o(f"v_sub_u32 v14, v14, v6")
    for i in range(4): o(f"ds_bpermute_b32 v{sP+i}, v{sB+i}, v14")
    o(f"v_lshl_or_b32 v{sB}, v{sD}, 16, v2")
    o(f"v_add_u32 v3, 64, v2")
    o(f"v_lshl_or_b32 v{sB+1}, v{sD+1}, 16, v3")
    o(f"v_add_u32 v3, 128, v2")
    o(f"v_lshl_or_b32 v{sB+2}, v{sD+2}, 16, v3")
    o(f"v_lshl_or_b32 v{sB+3}, v{sD+3}, 16, v12")
    o("s_waitcnt lgkmcnt(0)")
    for i in range(4):
        o(f"v_add_u32 v{sP+i}, v{sP+i}, v{sR+i}")
        o(f"v_lshlrev_b32 v3, 2, v{sP+i}")
        if i == 3: o("s_mov_b64 exec, 0xff")
        o(f"ds_write_b32 v3, v{sB+i} offset:{SNODE}")
    o("s_mov_b64 exec, -1")
    o(f"ds_read_u16 v{vL}, v10 offset:{SNODE+2}")
    for i in range(4):
        o(f"v_lshrrev_b32 v3, 3, v{sP+i}")
        o(f"v_sub_u32 v6, 31, v3")
        o(f"v_cmp_gt_u32 vcc, 16, v3")
        o(f"v_lshl_or_b32 v6, v6, 3, 4")
        o(f"v_lshlrev_b32 v3, 3, v3")
        o(f"v_cndmask_b32 v{sB+i}, v6, v3, vcc")
        o(f"v_and_b32 v{sP+i}, 7, v{sP+i}")
        o(f"v_lshlrev_b32 v{sP+i}, 3, v{sP+i}")
        o(f"v_add_u32 v{sP+i}, {ELL}, v{sP+i}")
    o("s_waitcnt lgkmcnt(0)")
    o(f"v_cndmask_b32 v{vL}, 0, v{vL}, {sr(S_EX,2)}")
    o(f"v_mov_b32 v{vTB}, v{vL}")
    scan64(o, vTB)
    o("s_nop 0")
    o(f"v_readlane_b32 s{S_A}, v{vTB}, 63")
    o(f"v_sub_u32 v{vTB}, v{vTB}, v{vL}")
    o(f"v_lshl_or_b32 v{vTB}, v{vTB}, 8, v{vL}")
    o(f"s_cmp_gt_u32 s{S_A}, {ELL_ITERS}")
    o(f"s_cselect_b32 s{S_C}, 1, s{S_C}")
    o(f"s_cmp_lg_u32 s{S_C}, 0")
    o(f"s_cbranch_scc0 L_fit")
    o(f"ds_write_b32 v{vZ}, v15 offset:{F_STRUCT}")
    o("s_branch L_sorted")
    o("L_fit:")
    for i in range(4): o(f"ds_bpermute_b32 v{sR+i}, v{sB+i}, v{vTB}")
    o(f"ds_write_b32 v8, v{vTB} offset:{TBL}")
    o("s_waitcnt lgkmcnt(1)")
    for i in range(4):
        o(f"v_lshrrev_b32 v3, 8, v{sR+i}")
        o(f"v_lshl_add_u32 v{sP+i}, v3, 6, v{sP+i}")
        o(f"v_lshl_or_b32 v{sP+i}, v{sR+i}, 24, v{sP+i}")
        o(f"ds_write_b32 v8, v{sP+i} offset:{SLOT+256*i}")
    o("s_branch L_sorted")
    o("L_nosort:")
    o(f"s_cmp_eq_u32 s{S_WAVE}, {99 if 'nopf' in OPT else 14}")
    o(f"s_cbranch_scc0 L_nopf")
    o(f"v_lshlrev_b32 v3, 7, v2")
    o(f"s_lshl_b32 s{S_B}, s{S_NODE0}, 7")
    for i in range(4):
        if i == 3: o("s_mov_b64 exec, 0xf")
        o(f"buffer_load_dword v{48+i}, v3, {sr(R_TAB,4)}, s{S_B} offen{SC}")
        if i < 3: o(f"s_add_u32 s{S_B}, s{S_B}, 8192")
    o("s_mov_b64 exec, -1")
    if "cpf2" in OPT:
        o(f"s_getpc_b64 {sr(S_EX,2)}")
        o(f"v_lshlrev_b32 v3, 7, v2")
        o(f"s_mov_b32 exec_lo, -1")
        o(f"s_mov_b32 exec_hi, 0")
        o(f"global_load_dword v52, v3, {sr(S_EX,2)}")
        o("s_mov_b64 exec, -1")
    o("L_nopf:")
    o("L_sorted:")
    o("s_setprio 0")
    o(f"v_lshlrev_b32 v{vLO}, 4, v1")
    o(f"v_mul_u32_u24 v{vAB}, 24, v1")
    for p, w in ((0, vWX), (2, vW2)):
        o(f"v_lshlrev_b32 v{w}, 16, v{vWC+p}")
        o(f"v_lshlrev_b32 v{w+1}, 16, v{vWC+p+1}")
        o(f"v_and_b32 v{w+2}, 0xffff0000, v{vWC+p}")
        o(f"v_and_b32 v{w+3}, 0xffff0000, v{vWC+p+1}")
        o(f"v_pk_mul_f32 {vr(w,2)}, {vr(w,2)}, {sr(S_CT,2)} op_sel_hi:[1,0]")
        o(f"v_pk_mul_f32 {vr(w+2,2)}, {vr(w+2,2)}, {sr(S_CT,2)} op_sel_hi:[1,0]")
    o(f"v_add_u32 v{vAB}, {AUX}, v{vAB}")
    o(f"s_lshl_b32 s{S_A}, s{S_NODE0}, 8")
    o(f"s_lshl_b32 s{S_B}, s{S_SL0}, 6")
    o(f"s_add_u32 s{S_A}, s{S_A}, s{S_B}")
    o(f"v_lshl_add_u32 v{vOB}, v1, 3, s{S_A}")
    o(f"v_lshlrev_b32 v8, 2, v2")
    o(f"v_lshrrev_b32 v3, 3, v2")
    o(f"v_lshlrev_b32 v6, 2, v3")
    o(f"v_lshlrev_b32 v5, 3, v3")
    o(f"s_lshl_b32 s{S_A}, s{S_WAVE}, 5")
    o(f"v_add_u32 v14, s{S_A}, v6")
    o(f"s_sub_u32 s{S_B}, {31*32}, s{S_A}")
    o(f"v_add_u32 v12, s{S_B}, v6")
    o(f"s_xor_b32 s{S_A}, s{S_A}, {MIR*32}")
    o(f"v_add_u32 v4, s{S_A}, v6")
    o(f"s_sub_u32 s{S_B}, {31*32}, s{S_A}")
    o(f"v_add_u32 v3, s{S_B}, v6")
    o("s_waitcnt lgkmcnt(0)")
    o("s_barrier")
    stamp(o, 8)
    o(f"ds_read_b64 v[6:7], v{vZ} offset:{F_STRUCT}")
    o(f"ds_read_b32 v{vTB}, v8 offset:{TBL}")
    o(f"ds_read_b32 v80, v9 offset:{SLOT}")
    o(f"ds_read_b32 v81, v9 offset:{DEG}")
    for r in range(NR):
        o(f"s_mov_b64 exec, {sr(S_MSK+2*r,2)}")
        if r >= 3: o("s_cbranch_execz L_s8a_done")
        o(f"ds_read_b32 v{vDA+r}, v{vDA+r} offset:{SLOT}")
    o("L_s8a_done:")
    o("s_mov_b64 exec, -1")
    o(f"ds_read_u16 v{vNQ}, v14 offset:{SNODE}")
    o(f"ds_read_u16 v10, v12 offset:{SNODE}")
    o(f"ds_read_u16 v{vNQ+1}, v4 offset:{SNODE}")
    o(f"ds_read_u16 v11, v3 offset:{SNODE}")
    o("s_waitcnt lgkmcnt(0)")
    o(f"v_readfirstlane_b32 s{S_B}, v6")
    o(f"v_readfirstlane_b32 s{S_MODE}, v7")
    o(f"s_lshl_b32 s{S_A}, s{S_WAVE}, 1")
    o(f"v_readlane_b32 s{S_C}, v{vTB}, s{S_A}")
    o(f"s_or_b32 s{S_B}, s{S_B}, s{S_MODE}")
    o(f"s_cbranch_scc1 L_slow")
    for r in range(NR):
        o(f"s_mov_b64 exec, {sr(S_MSK+2*r,2)}")
        if r >= 3: o("s_cbranch_execz L_s8b_done")
        o(f"v_lshl_add_u32 v{vDA+r}, v{vRK+r}, 6, v{vDA+r}")
        o(f"v_and_b32 v{vDA+r}, 0xffffff, v{vDA+r}")
        o(f"ds_write_b64 v{vDA+r}, {vr(vREC+2*r,2)}")
    o("L_s8b_done:")
    o("s_mov_b64 exec, -1")
    o(f"s_cmp_lt_u32 s{S_WAVE}, 4")
    o(f"s_cbranch_scc0 L_pad_done")
    o(f"v_lshrrev_b32 v82, 24, v80")
    o(f"v_lshl_add_u32 v80, v81, 6, v80")
    o(f"v_and_b32 v80, 0xffffff, v80")
    o(f"v_mov_b32 v6, {DUMMY_ROW << 16}")
    o(f"v_mov_b32 v7, 0")
    o(f"s_movk_i32 s{S_B}, 200")
    o(f"v_cmpx_gt_u32 vcc, s{S_B}, v0")
    o("L_pad:")
    o(f"v_cmpx_gt_u32 vcc, v82, v81")
    o(f"s_cbranch_execz L_pad_done")
    o(f"ds_write_b64 v80, v[6:7]")
    o(f"v_add_u32 v80, 64, v80")
    o(f"v_add_u32 v81, 1, v81")
    o("s_branch L_pad")
    o("L_pad_done:")
    o("s_mov_b64 exec, -1")
    o(f"s_add_u32 s{S_A}, s{S_A}, 1")
    o(f"v_readlane_b32 s{S_L1}, v{vTB}, s{S_A}")
    o(f"s_xor_b32 s{S_A}, s{S_A}, {2*MIR}")
    o(f"v_readlane_b32 s{S_L3}, v{vTB}, s{S_A}")
    o(f"s_sub_u32 s{S_A}, s{S_A}, 1")
    o(f"v_readlane_b32 s{S_B1}, v{vTB}, s{S_A}")
    o(f"s_and_b32 s{S_CNT}, s{S_C}, 0xff")
    o(f"s_lshr_b32 s{S_C}, s{S_C}, 8")
    o(f"s_and_b32 s{S_L1}, s{S_L1}, 0xff")
    o(f"s_and_b32 s{S_L3}, s{S_L3}, 0xff")
    o(f"s_and_b32 s{S_L2}, s{S_B1}, 0xff")
    o(f"s_lshr_b32 s{S_B1}, s{S_B1}, 8")
    o(f"s_lshl_b32 s{S_C}, s{S_C}, 6")
    o(f"s_add_u32 s{S_C}, s{S_C}, {ELL}")
    o(f"s_lshl_b32 s{S_B1}, s{S_B1}, 6")
    o(f"s_add_u32 s{S_B1}, s{S_B1}, {ELL}")
    o(f"v_add_u32 v{vLA}, s{S_C}, v5")
    stamp(o, 10)
    o(f"s_cmp_eq_u32 s{S_WAVE}, 14")
    o(f"s_cbranch_scc0 L_nopoll2")
    poll_tables(o, "L_pb", 0, 48)
    if "xdelay" in OPT: o("s_sleep 40")
    if "pf3" in OPT:
        o(f"v_lshlrev_b32 v3, 7, v2")
        for t in range(1, 4):
            o(f"s_add_u32 s{S_A}, s{S_BUCKET}, {32*t}")
            o(f"s_and_b32 s{S_A}, s{S_A}, 127")
            o(f"s_mul_i32 s{S_A}, s{S_A}, {NPB*128}")
            for i in range(4):
                if i == 3: o("s_mov_b64 exec, 0xf")
                o(f"buffer_load_dword v{48+4*(t-1)+i}, v3, {sr(R_TAB,4)}, s{S_A} offen{SC}")
                if i < 3: o(f"s_add_u32 s{S_A}, s{S_A}, 8192")
            o("s_mov_b64 exec, -1")
    o("L_nopoll2:")
    o(f"s_cmp_ge_u32 s{S_WAVE}, 7")
    o(f"s_cselect_b32 s{S_NT}, 2, 1")
    o(f"s_mov_b32 s{S_PH}, 0")
    o(f"s_movk_i32 s{S_D}, 128")
    o("s_waitcnt lgkmcnt(0)")
    o(f"v_lshl_or_b32 v{vNQ}, v10, 16, v{vNQ}")
    o(f"v_lshl_or_b32 v{vNQ+1}, v11, 16, v{vNQ+1}")
    o("s_barrier")
    stamp(o, 11)
    o(f"s_movk_i32 s{S_A}, {AUS}")
    o(f"s_movk_i32 s{S_B}, 256")
    o(f"s_setprio {PR[0]}")
    vDK = 16; vRKk = 104
    assert vDK + 4*PD <= 64 and vRKk + 2*PD <= 124
    def gaddr(R): o(f"v_mad_u32_u16 v{R}, v{R}, s{S_D}, v{vLO} op_sel:[1,0,0,0]")
    o("M_prime:")
    for k in range(PD):
        o(f"ds_read_b64 {vr(vRKk+2*k,2)}, v{vLA} offset:{k*64}")
    for k in range(PD):
        o(f"s_waitcnt lgkmcnt({PD-1-k})")
        gaddr(vRKk+2*k)
        o(f"buffer_load_dwordx4 {vr(vDK+4*k,4)}, v{vRKk+2*k}, {sr(R_TAB,4)}, s{S_PH} offen{GSC}")
    def promote():
        o(f"v_mad_u32_u16 v3, v{vNQ}, s{S_A}, v{vAB}")
        o(f"v_mad_u32_u16 v{vOA}, v{vNQ}, s{S_B}, v{vOB}")
        o(f"ds_read2_b64 {vr(vAU,4)}, v3 offset0:0 offset1:1")
        o(f"ds_read_b64 {vr(vAU+4,2)}, v3 offset:16")
        o(f"v_lshrrev_b32 v{vNQ}, 16, v{vNQ}")
        for i in range(0, 8, 2): o(f"v_mov_b64 {vr(vDen+i,2)}, 0")
        o("s_waitcnt lgkmcnt(0)")
        o(f"v_lshlrev_b32 v{vEX}, 16, v{vAU}")
        o(f"v_lshlrev_b32 v{vEX+1}, 16, v{vAU+1}")
        o(f"v_and_b32 v{vAU}, 0xffff0000, v{vAU}")
        o(f"v_and_b32 v{vAU+1}, 0xffff0000, v{vAU+1}")
    promote()
    if "cut" not in OPT:
        o(f"s_sub_u32 s{S_CNT}, s{S_CNT}, 1")
    else:
        o(f"s_mov_b32 s{S_TASK}, s{S_CNT}")
        o(f"s_add_u32 s{S_CUT}, s{S_CNT}, s{S_L1}")
        o(f"s_cmp_gt_u32 s{S_CUT}, {PD}")
        o(f"s_cselect_b32 s{S_SO}, s{S_PH}, 0x7f000000")
        o(f"s_cselect_b32 s{S_CUT}, s{S_CUT}, 0x7f000000")
        o(f"s_sub_u32 s{S_CUT}, s{S_CUT}, {PD}")
        o(f"s_min_u32 s{S_STEP}, s{S_TASK}, s{S_CUT}")
        o(f"s_sub_u32 s{S_CNT}, s{S_STEP}, 1")
    o(f"s_cbranch_scc1 M_sw{PD-1}")
    o("M_loop:")
    for k in range(PD):
        D = vDK + 4*k; R = vRKk + 2*k
        o(f"M_it{k}:")
        o(f"s_waitcnt vmcnt({PD-1})")
        o(f"v_lshlrev_b64 {vr(vT,2)}, 16, {vr(D,2)}")
        o(f"v_pk_fma_f32 {vr(vT+2,2)}, {vr(R,2)}, {vr(vWX+2,2)}, {vr(D,2)} op_sel:[1,0,0] op_sel_hi:[1,1,1]")
        o(f"v_pk_fma_f32 {vr(vT,2)}, {vr(R,2)}, {vr(vWX,2)}, {vr(vT,2)} op_sel:[1,0,0] op_sel_hi:[1,1,1]")
        o(f"ds_read_b64 {vr(R,2)}, v{vLA} offset:{(k+PD)*64}")
        o(f"v_exp_f32 v{vT+2}, v{vT+2}")
        o(f"v_exp_f32 v{vT+3}, v{vT+3}")
        o(f"v_exp_f32 v{vT}, v{vT}")
        o(f"v_exp_f32 v{vT+1}, v{vT+1}")
        o(f"v_lshlrev_b64 {vr(vT+4,2)}, 16, {vr(D+2,2)}")
        o(f"v_pk_add_f32 {vr(vT+2,2)}, {vr(vT+2,2)}, {vr(vAU,2)}")
        o(f"v_pk_add_f32 {vr(vT,2)}, {vr(vT,2)}, {vr(vEX,2)}")
        if k == PD-1:
            o(f"v_add_u32 v{vLA}, {PD*64}, v{vLA}")
        o(f"v_rcp_f32 v{vT+2}, v{vT+2}")
        o(f"v_rcp_f32 v{vT+3}, v{vT+3}")
        o(f"v_rcp_f32 v{vT}, v{vT}")
        o(f"v_rcp_f32 v{vT+1}, v{vT+1}")
        o(f"v_pk_add_f32 {vr(vDen+2,2)}, {vr(vDen+2,2)}, {vr(vT+2,2)}")
        o(f"v_pk_fma_f32 {vr(vNum+2,2)}, {vr(vT+2,2)}, {vr(D+2,2)}, {vr(vNum+2,2)}")
        o(f"v_pk_add_f32 {vr(vDen,2)}, {vr(vDen,2)}, {vr(vT,2)}")
        o(f"v_pk_fma_f32 {vr(vNum,2)}, {vr(vT,2)}, {vr(vT+4,2)}, {vr(vNum,2)}")
        o("s_waitcnt lgkmcnt(0)")
        gaddr(R)
        o(f"s_sub_u32 s{S_CNT}, s{S_CNT}, 1")
        o(f"buffer_load_dwordx4 {vr(D,4)}, v{R}, {sr(R_TAB,4)}, s{S_PH if 'cut' not in OPT else S_SO} offen{GSC}")
        o(f"s_cbranch_scc1 M_sw{k}")
    o("s_branch M_loop")
    for k in range(PD):
        o(f"M_sw{k}:")
        if "cut" in OPT:
            o(f"s_sub_u32 s{S_TASK}, s{S_TASK}, s{S_STEP}")
            o(f"s_sub_u32 s{S_CUT}, s{S_CUT}, s{S_STEP}")
            o(f"s_cmp_eq_u32 s{S_CUT}, 0")
            o(f"s_cselect_b32 s{S_SO}, 0x7f000000, s{S_SO}")
            o(f"s_cselect_b32 s{S_CUT}, 0x7f000000, s{S_CUT}")
            o(f"s_cmp_lg_u32 s{S_TASK}, 0")
            o(f"s_cbranch_scc1 M_n{k}")
        finalize(o, vDen, vNum, vEX, vAU, vAU+2, vAU+4, vT, vOA)
        o(f"s_sub_u32 s{S_NT}, s{S_NT}, 1")
        o(f"s_cmp_eq_u32 s{S_NT}, 0")
        o(f"s_cbranch_scc1 M_phase")
        o(f"s_cmp_eq_u32 s{S_PH}, 0")
        o(f"s_cbranch_scc1 M_p{k}")
        o(f"s_setprio {PR[3]}")
        o(f"s_branch M_q{k}")
        o(f"M_p{k}:")
        o(f"s_setprio {PR[1]}")
        o(f"M_q{k}:")
        promote()
        if "cut" not in OPT:
            o(f"s_sub_u32 s{S_CNT}, s{S_L1}, 1")
        else:
            o(f"s_mov_b32 s{S_TASK}, s{S_L1}")
            o(f"M_n{k}:")
            o(f"s_min_u32 s{S_STEP}, s{S_TASK}, s{S_CUT}")
            o(f"s_sub_u32 s{S_CNT}, s{S_STEP}, 1")
        o(f"s_cbranch_scc1 M_sw{k}")
        o(f"s_branch M_it{(k+1)%PD}")
    o("M_phase:")
    o(f"s_cmp_eq_u32 s{S_PH}, 0")
    o(f"s_cbranch_scc0 L_end")
    o(f"s_setprio {PR[2]}")
    stamp(o, 13)
    poll_tables(o, "L_pd", 1, vT)
    if "pf4" in OPT:
        o(f"s_cmp_eq_u32 s{S_WAVE}, {PFW}")
        o(f"s_cbranch_scc0 L_nopf4")
        o(f"v_lshlrev_b32 v3, 7, v2")
        for t in range(0, 4):
            o(f"s_add_u32 s{S_C}, s{S_BUCKET}, {32*t}")
            o(f"s_and_b32 s{S_C}, s{S_C}, 127")
            o(f"s_mul_i32 s{S_C}, s{S_C}, {NPB*128}")
            o(f"s_add_u32 s{S_C}, s{S_C}, {TSTRIDE}")
            for i in range(4):
                if i == 3: o("s_mov_b64 exec, 0xf")
                o(f"buffer_load_dword v{48+4*t+i}, v3, {sr(R_TAB,4)}, s{S_C} offen{SC}")
                if i < 3: o(f"s_add_u32 s{S_C}, s{S_C}, 8192")
            o("s_mov_b64 exec, -1")
        o("L_nopf4:")
    o(f"s_mov_b32 s{S_PH}, {TSTRIDE}")
    o(f"v_mov_b64 {vr(vWX,2)}, {vr(vW2,2)}")
    o(f"v_mov_b64 {vr(vWX+2,2)}, {vr(vW2+2,2)}")
    o(f"v_add_u32 v{vAB}, {AUP}, v{vAB}")
    o(f"v_add_u32 v{vOB}, 64, v{vOB}")
    o(f"v_add_u32 v{vLA}, s{S_B1}, v5")
    o(f"v_mov_b32 v{vNQ}, v{vNQ+1}")
    o(f"s_mov_b32 s{S_CNT}, s{S_L2}")
    o(f"s_mov_b32 s{S_L1}, s{S_L3}")
    o(f"s_xor_b32 s{S_NT}, s{S_WAVE}, {MIR}")
    o(f"s_cmp_ge_u32 s{S_NT}, 7")
    o(f"s_cselect_b32 s{S_NT}, 2, 1")
    if "dry" in OPT:
        o(f"s_cmp_lg_u32 s{S_DRY}, 0")
        o(f"s_cbranch_scc1 L_dry_ret")
    o("s_branch M_prime")
    o("L_slow:")
    vG, vI, vA2, vR2_, vD2, vT2, vAcc = 16, 17, 18, 20, 24, 32, 19
    o(f"s_xor_b32 s{S_SL0}, s{S_SL0}, 2")
    poll_tables(o, "S_pc", 0, 24)
    o(f"s_xor_b32 s{S_SL0}, s{S_SL0}, 2")
    poll_tables(o, "S_pa", 0, 24)
    poll_tables(o, "S_pb", 1, 24)
    o(f"v_lshrrev_b32 v{vG}, 3, v0")
    o(f"s_mov_b32 s{S_PH}, 0")
    o(f"s_movk_i32 s{S_D}, {AUS}")
    o(f"s_movk_i32 s{S_CNT}, 128")
    o(f"s_mov_b32 s{S_B1}, 0")
    o("S_half:")
    o("s_barrier")
    for i in range(4): o(f"v_mov_b32 v{vD2+i}, 0")
    o(f"v_lshlrev_b32 v3, 4, v0")
    o(f"v_add_u32 v3, {ELL}, v3")
    for i in range(3): o(f"ds_write_b128 v3, {vr(vD2,4)} offset:{i*16384}")
    o(f"s_cmp_lt_u32 s{S_WAVE}, 2")
    o(f"s_cbranch_scc0 S_nofill")
    o(f"ds_write_b128 v3, {vr(vD2,4)} offset:{3*16384}")
    o("S_nofill:")
    o("s_waitcnt lgkmcnt(0)")
    o("s_barrier")
    o(f"s_mov_b32 s{S_PP}, 0")
    o("S_piece:")
    o(f"v_add_u32 v3, s{S_PP}, v{vG}")
    o(f"v_lshlrev_b32 v5, 2, v3")
    o(f"ds_read_b32 v4, v5 offset:{OFFL}")
    o(f"s_movk_i32 s{S_A}, {SEG}")
    o(f"v_mul_u32_u24 v{vA2}, s{S_A}, v3")
    o(f"v_mov_b32 v{vI}, 0")
    o("s_waitcnt lgkmcnt(0)")
    o(f"v_and_b32 v5, 0x7ff, v4")
    o(f"v_lshrrev_b32 v4, 11, v4")
    o(f"v_lshl_add_u32 v{vA2}, v5, 3, v{vA2}")
    o(f"s_mov_b32 s{S_A}, {REC_OFF}")
    o("S_rec:")
    o(f"v_cmpx_gt_u32 vcc, v4, v{vI}")
    o(f"s_cbranch_execz S_rec_done")
    o(f"buffer_load_dwordx2 {vr(vR2_,2)}, v{vA2}, {sr(R_WS,4)}, s{S_A} offen{SC}")
    o("s_waitcnt vmcnt(0)")
    o(f"v_bfe_u32 v5, v{vR2_}, 2, 8")
    o(f"v_and_b32 v{vR2_+1}, 0xffff0000, v{vR2_+1}")
    o(f"v_mad_u32_u16 v{vR2_}, v{vR2_}, s{S_CNT}, v{vLO} op_sel:[1,0,0,0]")
    o(f"v_mad_u32_u24 v3, v5, s{S_D}, v{vAB}")
    o(f"v_lshlrev_b32 v{vAcc}, 8, v5")
    o(f"v_lshl_add_u32 v{vAcc}, v1, 5, v{vAcc}")
    o(f"v_add_u32 v{vAcc}, {ELL}, v{vAcc}")
    o(f"buffer_load_dwordx4 {vr(vD2,4)}, v{vR2_}, {sr(R_TAB,4)}, s{S_B1} offen{SC}")
    o(f"ds_read_b64 {vr(vAU,2)}, v3")
    o("s_waitcnt vmcnt(0) lgkmcnt(0)")
    T = vT2
    o(f"v_lshlrev_b64 {vr(T,2)}, 16, {vr(vD2,2)}")
    o(f"v_lshlrev_b64 {vr(T+4,2)}, 16, {vr(vD2+2,2)}")
    o(f"v_lshlrev_b32 v{T+6}, 16, v{vAU}")
    o(f"v_lshlrev_b32 v{T+7}, 16, v{vAU+1}")
    o(f"v_and_b32 v{vAU}, 0xffff0000, v{vAU}")
    o(f"v_and_b32 v{vAU+1}, 0xffff0000, v{vAU+1}")
    o(f"v_lshrrev_b32 v5, 5, v5")
    o(f"v_lshl_add_u32 v5, v5, 1, s{S_PH}")
    o(f"v_lshrrev_b32 v5, v5, s{S_MODE}")
    o(f"v_and_b32 v5, 1, v5")
    o(f"v_cmp_eq_u32 vcc, 0, v5")
    for r in (T+6, T+7, vAU, vAU+1):
        o(f"v_log_f32 v3, v{r}")
        o("s_nop 0")
        o(f"v_cndmask_b32 v{r}, v{r}, -v3, vcc")
    o(f"v_pk_add_f32 {vr(T,2)}, {vr(T,2)}, {vr(T+6,2)}")
    o(f"v_pk_add_f32 {vr(T+2,2)}, {vr(vD2,2)}, {vr(vAU,2)}")
    o(f"v_pk_fma_f32 {vr(T,2)}, {vr(vR2_,2)}, {vr(vWX,2)}, {vr(T,2)} op_sel:[1,0,0] op_sel_hi:[1,1,1]")
    o(f"v_pk_fma_f32 {vr(T+2,2)}, {vr(vR2_,2)}, {vr(vWX+2,2)}, {vr(T+2,2)} op_sel:[1,0,0] op_sel_hi:[1,1,1]")
    for i in range(4): o(f"v_exp_f32 v{T+i}, v{T+i}")
    o("s_nop 0")
    o(f"v_pk_add_f32 {vr(T,2)}, {vr(T,2)}, 1.0 op_sel_hi:[1,0]")
    o(f"v_pk_add_f32 {vr(T+2,2)}, {vr(T+2,2)}, 1.0 op_sel_hi:[1,0]")
    for i in range(4): o(f"v_rcp_f32 v{T+i}, v{T+i}")
    o("s_nop 0")
    o(f"v_pk_mul_f32 {vr(T+4,2)}, {vr(T+4,2)}, {vr(T,2)}")
    o(f"v_pk_mul_f32 {vr(T+6,2)}, {vr(vD2+2,2)}, {vr(T+2,2)}")
    for i in range(8): o(f"ds_add_f32 v{vAcc}, v{T+i} offset:{4*i}")
    o("s_mov_b64 exec, -1")
    o(f"v_add_u32 v{vI}, 1, v{vI}")
    o(f"v_add_u32 v{vA2}, 8, v{vA2}")
    o("s_branch S_rec")
    o("S_rec_done:")
    o("s_mov_b64 exec, -1")
    o(f"s_add_u32 s{S_PP}, s{S_PP}, 128")
    o(f"s_cmp_lt_u32 s{S_PP}, 256")
    o("s_cbranch_scc1 S_piece")
    o("s_waitcnt lgkmcnt(0)")
    o("s_barrier")
    o(f"s_mov_b32 s{S_PP}, 0")
    o(f"s_movk_i32 s{S_C}, {NPB}")
    o("S_fin:")
    o(f"v_add_u32 v5, s{S_PP}, v{vG}")
    o(f"v_mad_u32_u24 v3, v5, s{S_D}, v{vAB}")
    o(f"v_lshlrev_b32 v{vAcc}, 8, v5")
    o(f"v_lshl_add_u32 v{vAcc}, v1, 5, v{vAcc}")
    o(f"v_add_u32 v{vAcc}, {ELL}, v{vAcc}")
    o(f"v_lshl_add_u32 v{vOA}, v5, 8, v{vOB}")
    o(f"v_cmpx_gt_u32 vcc, s{S_C}, v5")
    o(f"s_cbranch_execz S_fin_next")
    o(f"ds_read2_b64 {vr(vAU+2,4)}, v3 offset0:1 offset1:2")
    o(f"ds_read_b128 {vr(24,4)}, v{vAcc}")
    o(f"ds_read_b128 {vr(28,4)}, v{vAcc} offset:16")
    o("s_waitcnt lgkmcnt(0)")
    finalize(o, 24, 28, None, None, vAU+2, vAU+4, vT, vOA)
    o("S_fin_next:")
    o("s_mov_b64 exec, -1")
    o(f"s_add_u32 s{S_PP}, s{S_PP}, 128")
    o(f"s_cmp_lt_u32 s{S_PP}, 256")
    o("s_cbranch_scc1 S_fin")
    o(f"v_mov_b64 {vr(vWX,2)}, {vr(vW2,2)}")
    o(f"v_mov_b64 {vr(vWX+2,2)}, {vr(vW2+2,2)}")
    o(f"v_add_u32 v{vAB}, {AUP}, v{vAB}")
    o(f"v_add_u32 v{vOB}, 64, v{vOB}")
    o(f"s_mov_b32 s{S_B1}, {TSTRIDE}")
    o(f"s_add_u32 s{S_PH}, s{S_PH}, 1")
    o(f"s_cmp_lt_u32 s{S_PH}, 2")
    o("s_cbranch_scc1 S_half")
    o("L_end:")
    stamp(o, 12)
    stamp_flush(o, 14)
    o("L_exit:")
    o("s_endpgm")

def main():
    global XNT, ENT, SC, TLBS, PFW, PESL, WSO, PR, TSL, STAMP, PD, OUTF, GSC, MIR, SL0, SL1, PSC, ESC, RSC
    for a in sys.argv[2:]:
        if a.startswith("stamp="): STAMP = int(a[6:])
        elif a.startswith("pd="): PD = int(a[3:])
        elif a.startswith("outf="): OUTF = (" " + a[5:].replace("+", " ")).rstrip()
        elif a.startswith("gsc="): GSC = (" " + a[4:].replace("+", " ")).rstrip()
        elif a.startswith("mir="): MIR = int(a[4:])
        elif a.startswith("sl="): SL0, SL1 = map(int, a[3:].split(","))
        elif a == "psys": PSC = " sc0 sc1"
        elif a == "esys": ESC = " sc0 sc1"
        elif a == "rsys": RSC = " sc0 sc1"
        elif a.startswith("tsl="): TSL = int(a[4:])
        elif a.startswith("pr="): PR = tuple(int(c) for c in a[3:])
        elif a.startswith("wso="): WSO = int(a[4:]) << 20
        elif a.startswith("pesl="): PESL = int(a[5:])
        elif a.startswith("pfw="): PFW = int(a[4:])
        elif a.startswith("tlbs="): TLBS = int(a[5:])
        elif a == "xnt": XNT = " nt"
        elif a == "ent": ENT = " nt"
        elif a == "rnt": RSC = " sc1 nt"
        elif a == "snt": SC = " sc1 nt"
        else: OPT.add(a)
    ref = open(f"cdna_kernels/{NAME}.s.ref").read().split("\n")
    head = [l for l in ref if l.startswith(";") and "@launch" not in l]
    out = "\n".join(head) + "\n"
    out += f"; @launch grid=(256,1,1) block=(1024,1,1) lds={LDS_SIZE}\n"
    out += f'.amdgcn_target "amdgcn-amd-amdhsa--gfx950"\n.text\n.globl {NAME}_kernel\n.p2align 8\n.type {NAME}_kernel,@function\n{NAME}_kernel:\n'
    o = Asm(); kernel(o); out += o.text()
    out += f""".section .rodata,"a"
.p2align 6
.amdhsa_kernel {NAME}_kernel
  .amdhsa_next_free_vgpr 128
  .amdhsa_next_free_sgpr {102 if STAMP is not None else 90}
  .amdhsa_accum_offset 128
  .amdhsa_group_segment_fixed_size 0
  .amdhsa_kernarg_size 96
  .amdhsa_user_sgpr_count 2
  .amdhsa_user_sgpr_kernarg_segment_ptr 1
  .amdhsa_system_sgpr_workgroup_id_x 1
.end_amdhsa_kernel
"""
    path = sys.argv[1] if len(sys.argv) > 1 else f"cdna_kernels/{NAME}.s"
    open(path, "w").write(out)
    print("wrote", path, "LDS", LDS_SIZE, "ELL_ITERS", ELL_ITERS)
main()
```

```python
import sys

NAME = "standalone__edge_featured_mpnn_gatedgcn__graph"
N = 25000; E = 400000
NPB = 196; CH = 1564
TROWS = 25096; TSTRIDE = TROWS*128
DUMMY_ROW = 25088
SEG = 12544
REC_OFF = 4*TSTRIDE
OFF_OFF = REC_OFF + 256*SEG
TF_OFF = OFF_OFF + 128*2048
WS_USED = TF_OFF + 4096
LOG2E_NEG = 0xBFB8AA3B; TINY = 0x03800000; EPS = 0x358637BD
SC = " sc1"
PSC = " sc1"; ESC = " sc1"; RSC = " sc1"
OUTF = " sc1"
GSC = " sc1"
PD = 4
XNT = ''; ENT = ''
TLBS = 20
DRYW = 8
PFW = 8
VE = 72
PESL = 0
WSO = 0
PR = (3, 2, 1, 0)
TSL = 2
TEAM0 = 9
MIR = 13
SL0 = 0; SL1 = 1
NL = 5
NR = 2*NL
HISTA = 0; BASE = 512; DEG = 1024; HIST2 = 2048; FLAG = 2304; SLOT = 2432; TBL = SLOT + 1024; SNODE = TBL + 256; OFFL = SNODE + 1024 + 128
XT = OFFL + 1024; XTS = 8320
WOFF = XT + 7*XTS
RECS = WOFF + 65536
LDS_END = RECS + SEG
AUX = XT; AUS = 200; AUP = 200*AUS
ELL = AUX + 2*AUP
ELL_ITERS = 512
LDS_SIZE = LDS_END + 2048
assert ELL % 16 == 0 and XT % 128 == 0
F_STRUCT, F_RANGE, F_SOFT, F_OFFL, F_W, F_GO, F_TAG, F_TC, F_GD, F_WI = FLAG, FLAG+4, FLAG+8, FLAG+12, FLAG+16, FLAG+20, FLAG+24, FLAG+32, FLAG+64, FLAG+68

STAMP = None; OPT = set(); PFN = 181
def st_reg(i): return 90 + 2*i if i < 6 else 36 + 2*(i-6) if i < 12 else 24 + 2*(i-12)
def gstamp(o, i):
    if "gd" in OPT: stamp(o, i, True)
def stamp(o, i, force=False):
    if STAMP is None: return
    if "gd" in OPT and not force and 5 <= i <= 10: return
    if "clk" in OPT:
        if i in (1, 2): return
        if i == 11: o(f"s_memtime s[{st_reg(1)}:{st_reg(1)+1}]")
        if i == 12: o(f"s_memtime s[{st_reg(2)}:{st_reg(2)+1}]")
    o(f"s_memrealtime s[{st_reg(i)}:{st_reg(i)+1}]")
    o("s_waitcnt lgkmcnt(0)")
def stamp_flush(o, n):
    if STAMP is None: return
    o(f"s_cmp_eq_u32 s{S_WAVE}, {STAMP}")
    o(f"s_cbranch_scc0 L_stf")
    o(f"s_mov_b64 exec, 1")
    o(f"s_mov_b32 s{R_WS+2}, {64<<20}")
    o(f"s_lshl_b32 s{S_A}, s{S_WG}, 7")
    o(f"s_add_u32 s{S_A}, s{S_A}, {32<<20}")
    o(f"v_mov_b32 v0, 0")
    for i in range(n):
        o(f"v_mov_b32 v2, s{st_reg(i)}")
        o(f"v_mov_b32 v3, s{st_reg(i)+1}")
        o(f"buffer_store_dwordx2 v[2:3], v0, {sr(R_WS,4)}, s{S_A} offen offset:{8*i}")
    o(f"s_getreg_b32 s{S_B}, hwreg(HW_REG_XCC_ID)")
    o(f"s_getreg_b32 s{S_C}, hwreg(HW_REG_HW_ID)")
    o(f"v_mov_b32 v2, s{S_B}")
    o(f"v_mov_b32 v3, s{S_C}")
    o(f"buffer_store_dwordx2 v[2:3], v0, {sr(R_WS,4)}, s{S_A} offen offset:{8*14}")
    o(f"L_stf:")

DOC = """;
; GatedGCN layer, one launch, 256 workgroups x 1024 threads (one per CU, all resident).
; 1. waves 9..15 sort the workgroup's 1564 edges by destination bucket and publish them (records carry a per-launch tag);
; 3. per slice: 8 lanes per edge gather the 128-byte table row of the source, sigmoid gate, numerator/denominator sums in
;    registers, out = x + relu(x@w_u + num/(den+1e-6))
"""

class Asm:
    def __init__(self): self.lines = []
    def __call__(self, s):
        for l in s.split("\n"):
            l = l.strip()
            if l: self.lines.append(("" if l.endswith(":") else "    ") + l)
    def text(self): return "\n".join(self.lines) + "\n"

def vr(a, n): return f"v[{a}:{a+n-1}]"
def sr(a, n): return f"s[{a}:{a+n-1}]"

def srd(o, d, base, nbytes):
    o(f"s_mov_b32 s{d}, s{base}")
    o(f"s_and_b32 s{d+1}, s{base+1}, 0xffff")
    o(f"s_mov_b32 s{d+2}, {nbytes}")
    o(f"s_mov_b32 s{d+3}, 0x20000")

def scan64(o, v):
    for sh in (1, 2, 4, 8):
        o("s_nop 1")
        o(f"v_add_u32_dpp v{v}, v{v}, v{v} row_shr:{sh} row_mask:0xf bank_mask:0xf bound_ctrl:0")
    o("s_nop 1")
    o(f"v_add_u32_dpp v{v}, v{v}, v{v} row_bcast:15 row_mask:0xa bank_mask:0xf")
    o("s_nop 1")
    o(f"v_add_u32_dpp v{v}, v{v}, v{v} row_bcast:31 row_mask:0xc bank_mask:0xf")

def gemm_pair(o, vW, vX, aP, aQ, vWaddr, base_off, extra=None):
    def rd(t):
        for m in range(2):
            b = vW + (t & 1)*8 + m*4
            off = base_off + m*16384 + (t & 1)*2048
            o(f"ds_read_b64_tr_b16 {vr(b,2)}, v{vWaddr + (t >> 1)} offset:{off}")
            o(f"ds_read_b64_tr_b16 {vr(b+2,2)}, v{vWaddr + (t >> 1)} offset:{off + 512}")
    rd(0); rd(1)
    for t in range(8):
        o(f"s_waitcnt lgkmcnt({4 if t < 7 else 0})")
        for m, acc in enumerate((aP, aQ)):
            b = vW + (t & 1)*8 + m*4
            c = "0" if t == 0 else vr(acc, 16)
            o(f"v_mfma_f32_32x32x16_bf16 {vr(acc,16)}, {vr(b,4)}, {vr(vX+4*t,4)}, {c}")
        if t + 2 < 8: rd(t+2)
        if extra: extra(t)
    o("s_nop 15")

def encode4(o, a, d):
    for i in range(4):
        o(f"v_add_u32 v{a+i}, s{S_HALF}, v{a+i}")
    for i in range(1, 4):
        o(f"v_sub_u32_sdwa v{a+i}, v{a+i}, v{a+i-1} dst_sel:DWORD dst_unused:UNUSED_PAD src0_sel:DWORD src1_sel:WORD_1")
    o(f"v_perm_b32 v{d}, v{a+1}, v{a}, s{S_PERM}")
    o(f"v_perm_b32 v{d+1}, v{a+3}, v{a+2}, s{S_PERM}")

S_WG = 2; S_NK = 3
S_X, S_E, S_SRC, S_DST, S_WA, S_WB, S_WC, S_WU, S_WV, S_OUT, S_DBG, S_WS = 4, 6, 8, 10, 12, 14, 16, 18, 20, 22, 24, 26
S_MSK = 4
R_WS = 28; R_W = 32; R_T0 = 36; R_T1 = 40; R_T2 = 44; R_X = 48; R_TAB = 52; R_OUT = 56; R_DBG = 60
S_WAVE = 64; S_HALF = 65; S_PERM = 66; S_SL0 = 67
S_CT = 68; S_EX = 70; S_EPS = 72
S_A = 74; S_B = 75; S_C = 76; S_D = 77
S_BUCKET = 78; S_NODE0 = 79
S_CNT = 80; S_L1 = 81; S_L2 = 82; S_L3 = 83; S_NT = 84; S_MODE = 85; S_NH = 86; S_SPIN = 87; S_PH = 88; S_B1 = 89
S_T0 = S_CNT; S_T1 = S_NT; S_T2 = S_MODE; S_T3 = S_PH; S_RL = S_EX
S_SL = S_L1; S_TILE = S_L2; S_FB = S_L3
S_PP = S_L2
S_DRY = 1
S_SO = 4; S_TASK = 5; S_CUT = 6; S_STEP = 7
vZ = 13

def spin_bound(o, lds=False): o(f"s_mov_b32 s{S_SPIN}, {0x400000 if lds else 0x10000}")
def spin_tail(o, lab, sleep):
    if sleep: o(f"s_sleep {sleep}")
    o(f"s_sub_u32 s{S_SPIN}, s{S_SPIN}, 1")
    o(f"s_cbranch_scc0 {lab}")

def lds_wait(o, lab, vA, off, target, vT, sleep=1):
    sleep = SL1 if sleep else SL0
    spin_bound(o, True)
    o(f"{lab}:")
    o(f"ds_read_b32 v{vT}, v{vA} offset:{off}")
    o("s_waitcnt lgkmcnt(0)")
    o(f"v_readfirstlane_b32 s{S_A}, v{vT}")
    o(f"s_cmp_ge_u32 s{S_A}, {target}")
    o(f"s_cbranch_scc1 {lab}_ok")
    spin_tail(o, lab, sleep)
    o(f"{lab}_ok:")

def lds_inc(o, vA, off):
    o("s_mov_b64 exec, 1")
    o(f"ds_add_u32 v{vA}, v15 offset:{off}")
    o("s_mov_b64 exec, -1")

def soft_barrier(o, lab, target, vT):
    o("s_waitcnt lgkmcnt(0)")
    lds_inc(o, vZ, F_SOFT)
    lds_wait(o, lab, vZ, F_SOFT, target, vT, 0)

def get_tag(o, lab):
    spin_bound(o)
    o(f"{lab}:")
    o(f"buffer_load_dwordx2 v[6:7], v{vZ}, {sr(R_DBG,4)}, 0 offen{PSC}")
    o("s_waitcnt vmcnt(0)")
    o(f"v_readfirstlane_b32 s{S_NK}, v6")
    o(f"v_readfirstlane_b32 s{S_NH}, v7")
    o(f"s_cmp_lg_u32 s{S_NH}, 0")
    o(f"s_cbranch_scc1 {lab}_ok")
    spin_tail(o, lab, 4)
    o(f"{lab}_ok:")

def poll_tables(o, lab, ph, v):
    o(f"v_lshlrev_b32 v3, 4, v2")
    o(f"s_lshl_b32 s{S_C}, s{S_SL0}, 10")
    o(f"s_add_u32 s{S_C}, s{S_C}, {TF_OFF + 1024*ph}")
    spin_bound(o)
    o(f"{lab}:")
    o(f"buffer_load_dwordx4 {vr(v,4)}, v3, {sr(R_WS,4)}, s{S_C} offen{PSC}")
    o("s_waitcnt vmcnt(0)")
    o(f"v_xor_b32 v{v}, s{S_NK}, v{v}")
    o(f"v_xor_b32 v{v+1}, s{S_NH}, v{v+1}")
    o(f"v_xor_b32 v{v+2}, s{S_NK}, v{v+2}")
    o(f"v_xor_b32 v{v+3}, s{S_NH}, v{v+3}")
    o(f"v_or3_b32 v{v}, v{v}, v{v+1}, v{v+2}")
    o(f"v_or_b32 v{v}, v{v}, v{v+3}")
    o(f"v_cmp_ne_u32 vcc, 0, v{v}")
    o(f"s_cbranch_vccz {lab}_ok")
    spin_tail(o, lab, TSL)
    o(f"{lab}_ok:")

def publish_tf(o, ph):
    o(f"s_lshl_b32 s{S_B}, s{S_SL0}, 7")
    o(f"s_add_u32 s{S_B}, s{S_B}, s{S_BUCKET}")
    o(f"s_lshl_b32 s{S_B}, s{S_B}, 3")
    o(f"s_add_u32 s{S_B}, s{S_B}, {TF_OFF + 1024*ph}")
    o(f"v_mov_b32 v6, s{S_NK}")
    o(f"v_mov_b32 v7, s{S_NH}")
    o("s_mov_b64 exec, 1")
    o(f"buffer_store_dwordx2 v[6:7], v{vZ}, {sr(R_WS,4)}, s{S_B} offen sc1")
    o("s_mov_b64 exec, -1")

def finalize(o, vDen, vNum, vIX, vIY, vU, vXr, vT, vOA):
    if vIX is not None:
        o(f"v_pk_fma_f32 {vr(vDen,2)}, {vr(vDen,2)}, {vr(vIX,2)}, {sr(S_EPS,2)}")
        o(f"v_pk_fma_f32 {vr(vDen+2,2)}, {vr(vDen+2,2)}, {vr(vIY,2)}, {sr(S_EPS,2)}")
        o(f"v_pk_mul_f32 {vr(vNum,2)}, {vr(vNum,2)}, {vr(vIX,2)}")
        o(f"v_pk_mul_f32 {vr(vNum+2,2)}, {vr(vNum+2,2)}, {vr(vIY,2)}")
    else:
        o(f"v_pk_add_f32 {vr(vDen,2)}, {vr(vDen,2)}, {sr(S_EPS,2)}")
        o(f"v_pk_add_f32 {vr(vDen+2,2)}, {vr(vDen+2,2)}, {sr(S_EPS,2)}")
    o(f"v_lshlrev_b32 v{vT}, 16, v{vU}")
    o(f"v_lshlrev_b32 v{vT+1}, 16, v{vU+1}")
    o(f"v_and_b32 v{vT+2}, 0xffff0000, v{vU}")
    o(f"v_and_b32 v{vT+3}, 0xffff0000, v{vU+1}")
    for i in range(4): o(f"v_rcp_f32 v{vDen+i}, v{vDen+i}")
    o(f"v_lshlrev_b32 v{vT+4}, 16, v{vXr}")
    o(f"v_lshlrev_b32 v{vT+5}, 16, v{vXr+1}")
    o(f"v_pk_fma_f32 {vr(vT,2)}, {vr(vNum,2)}, {vr(vDen,2)}, {vr(vT,2)}")
    o(f"v_pk_fma_f32 {vr(vT+2,2)}, {vr(vNum+2,2)}, {vr(vDen+2,2)}, {vr(vT+2,2)}")
    o(f"v_and_b32 v{vT+6}, 0xffff0000, v{vXr}")
    o(f"v_and_b32 v{vT+7}, 0xffff0000, v{vXr+1}")
    for i in range(4): o(f"v_max_f32 v{vT+i}, 0, v{vT+i}")
    o(f"v_pk_add_f32 {vr(vT,2)}, {vr(vT,2)}, {vr(vT+4,2)}")
    o(f"v_pk_add_f32 {vr(vT+2,2)}, {vr(vT+2,2)}, {vr(vT+6,2)}")
    o(f"v_cvt_pk_bf16_f32 v{vT+4}, v{vT}, v{vT+2}")
    o(f"v_cvt_pk_bf16_f32 v{vT+5}, v{vT+1}, v{vT+3}")
    o(f"buffer_store_dwordx2 {vr(vT+4,2)}, v{vOA}, {sr(R_OUT,4)}, 0 offen{OUTF}")

def tag_parts(o):
    o(f"s_lshr_b32 s{S_T0}, s{S_NK}, 12")
    o(f"s_lshr_b32 s{S_T1}, s{S_NK}, 18")
    o(f"s_lshr_b32 s{S_T2}, s{S_NH}, 16")

def xsrc(o, d=12, t=3, u=4):
    o(f"v_lshrrev_b32 v{d}, 4, v2")
    o(f"v_lshlrev_b32 v{t}, 2, v{d}")
    o(f"v_and_b32 v{u}, 15, v2")
    o(f"v_xor_b32 v{t}, v{t}, v{u}")
    o(f"v_lshlrev_b32 v{t}, 4, v{t}")
    o(f"v_lshl_add_u32 v{d}, v{d}, 8, v{t}")

def kernel(o):
    vX = 16; vW = 48; aP = 64; aQ = 80; vD = 96; vREC = 104
    vWA = 120
    vWC = 124
    vSTG = 8
    NTM = 16 - TEAM0
    o(f"s_cmp_ge_u32 s{S_WG}, 256")
    o(f"s_cbranch_scc1 L_exit")
    stamp(o, 0)
    o(f"s_load_dwordx16 s[4:19], s[0:1], 0")
    o(f"s_load_dwordx8 s[20:27], s[0:1], 64")
    o("; pull the kernel's own code into L2 (one line per lane)")
    o(f"s_getpc_b64 {sr(S_EX,2)}")
    o(f"v_lshlrev_b32 v3, 6, v0")
    o(f"s_movk_i32 s{S_A}, {1 if 'nocpf' in OPT else PFN}")
    o(f"v_cmpx_gt_u32 vcc, s{S_A}, v0")
    o(f"global_load_dword v119, v3, {sr(S_EX,2)}")
    o("s_mov_b64 exec, -1")
    o(f"v_lshrrev_b32 v1, 6, v0")
    o(f"v_and_b32 v2, 63, v0")
    o(f"v_readfirstlane_b32 s{S_WAVE}, v1")
    o(f"v_lshlrev_b32 v9, 2, v0")
    o(f"v_mov_b32 v{vZ}, 0")
    o(f"s_movk_i32 s{S_A}, {SLOT//4}")
    o(f"v_cmpx_gt_u32 vcc, s{S_A}, v0")
    o(f"ds_write_b32 v9, v{vZ}")
    o("s_mov_b64 exec, -1")
    o(f"s_cmp_lt_u32 s{S_WAVE}, {TEAM0}")
    o(f"s_cbranch_scc1 L_noprio")
    o("s_setprio 3")
    o("L_noprio:")
    o(f"s_mov_b32 s{S_HALF}, 0x8000")
    o(f"s_mov_b32 s{S_PERM}, 0x07060302")
    o(f"s_mov_b32 s{S_CT}, {LOG2E_NEG:#x}")
    o(f"s_mov_b32 s{S_CT+1}, {TINY:#x}")
    o(f"s_mov_b32 s{S_EPS}, {EPS:#x}")
    o(f"s_mov_b32 s{S_EPS+1}, {EPS:#x}")
    o(f"s_bfe_u32 s{S_SL0}, s{S_WG}, 0x10002")
    o(f"s_lshl_b32 s{S_SL0}, s{S_SL0}, 1")
    o(f"s_lshr_b32 s{S_BUCKET}, s{S_WG}, 3")
    o(f"s_and_b32 s{S_A}, s{S_WG}, 3")
    o(f"s_lshl_b32 s{S_A}, s{S_A}, 5")
    o(f"s_add_u32 s{S_BUCKET}, s{S_BUCKET}, s{S_A}")
    o(f"s_mul_i32 s{S_NODE0}, s{S_BUCKET}, {NPB}")
    o(f"v_mov_b32 v15, 1")
    o(f"v_and_b32 v1, 7, v2")
    o(f"v_lshlrev_b32 v14, 3, v1")
    o(f"v_subrev_u32 v4, {TEAM0*64}, v0")
    o(f"v_lshlrev_b32 v3, 4, v4")
    o(f"v_lshlrev_b32 v5, 3, v4")
    o(f"s_mul_i32 s{S_C}, s{S_WG}, {CH*4}")
    o(f"s_mul_i32 s{S_B}, s{S_WG}, {CH*2}")
    o(f"v_lshrrev_b32 v12, 3, v2")
    o(f"v_lshrrev_b32 v6, 2, v2")
    o(f"v_and_b32 v6, 4, v6")
    o(f"v_xor_b32 v6, v6, v1")
    o(f"v_lshlrev_b32 v6, 4, v6")
    o(f"v_lshl_add_u32 v12, v12, 8, v6")
    o("s_waitcnt lgkmcnt(0)")
    if WSO:
        o(f"s_add_u32 s{S_WS}, s{S_WS}, {WSO}")
        o(f"s_addc_u32 s{S_WS+1}, s{S_WS+1}, 0")
    srd(o, R_DBG, S_DBG, 256)
    o(f"s_cmp_eq_u32 s{S_WAVE}, 8")
    o(f"s_cbranch_scc0 L_notag")
    o(f"s_cmp_eq_u32 s{S_WG}, 0")
    o(f"s_cbranch_scc0 L_notag")
    o(f"s_memrealtime {sr(S_EX,2)}")
    o("s_waitcnt lgkmcnt(0)")
    o(f"s_lshl_b32 s{S_A}, s{S_EX}, 22")
    o(f"s_lshr_b64 {sr(S_EX,2)}, {sr(S_EX,2)}, 10")
    o(f"s_or_b32 s{S_D}, s{S_EX}, 0x80000000")
    o(f"v_mov_b32 v6, s{S_A}")
    o(f"v_mov_b32 v7, s{S_D}")
    o("s_mov_b64 exec, 1")
    o(f"buffer_store_dwordx2 v[6:7], v{vZ}, {sr(R_DBG,4)}, 0 offen sc1")
    o("s_mov_b64 exec, -1")
    o("L_notag:")
    srd(o, R_T0, S_DST, E*4)
    srd(o, R_T1, S_SRC, E*4)
    srd(o, R_T2, S_E, E*2)
    vDST, vSRC, vE, vB, vR, vRec = 16, 20, 24, 28, 32, 36
    o(f"s_cmp_lt_u32 s{S_WAVE}, {TEAM0}")
    o(f"s_cbranch_scc1 L_noedge")
    o(f"buffer_load_dwordx4 {vr(vDST,4)}, v3, {sr(R_T0,4)}, s{S_C} offen{ENT}")
    o(f"buffer_load_dwordx4 {vr(vSRC,4)}, v3, {sr(R_T1,4)}, s{S_C} offen{ENT}")
    o(f"buffer_load_dwordx2 {vr(vE,2)}, v5, {sr(R_T2,4)}, s{S_B} offen{ENT}")
    o("L_noedge:")
    if "b0late" not in OPT: o("s_barrier")
    o(f"s_cmp_lt_u32 s{S_WAVE}, 8")
    o(f"s_cbranch_scc0 L_now")
    o(f"s_bitcmp1_b32 s{S_WAVE}, 2")
    o(f"s_cselect_b32 s{S_A}, s{S_WA}, s{S_WB}")
    o(f"s_cselect_b32 s{S_B}, s{S_WA+1}, s{S_WB+1}")
    o(f"s_cselect_b32 s{S_C}, s{S_WU}, s{S_WV}")
    o(f"s_cselect_b32 s{S_D}, s{S_WU+1}, s{S_WV+1}")
    o(f"s_bitcmp1_b32 s{S_WAVE}, 1")
    o(f"s_cselect_b32 s{R_W}, s{S_C}, s{S_A}")
    o(f"s_cselect_b32 s{R_W+1}, s{S_D}, s{S_B}")
    o(f"s_and_b32 s{R_W+1}, s{R_W+1}, 0xffff")
    o(f"s_mov_b32 s{R_W+2}, 32768")
    o(f"s_mov_b32 s{R_W+3}, 0x20000")
    o(f"s_and_b32 s{S_A}, s{S_WAVE}, 1")
    o(f"s_lshl_b32 s{S_A}, s{S_A}, 14")
    o(f"s_lshl_b32 s{S_B}, s{S_SL0}, 6")
    o(f"s_add_u32 s{S_A}, s{S_A}, s{S_B}")
    o(f"s_lshl_b32 s{S_C}, s{S_WAVE}, 13")
    for i in range(8):
        o(f"s_add_u32 m0, s{S_C}, {WOFF + 1024*i}")
        o(f"s_add_u32 s{S_D}, s{S_A}, {2048*i}")
        o(f"buffer_load_dwordx4 v12, {sr(R_W,4)}, s{S_D} offen lds")
    if "b0late" not in OPT: lds_inc(o, vZ, F_WI)
    o("L_now:")
    if "b0late" in OPT: o("s_barrier")
    srd(o, R_W, S_WC, 256)
    o(f"s_lshl_b32 s{S_B}, s{S_SL0}, 6")
    o(f"buffer_load_dwordx2 {vr(vWC,2)}, v14, {sr(R_W,4)}, s{S_B} offen")
    o(f"buffer_load_dwordx2 {vr(vWC+2,2)}, v14, {sr(R_W,4)}, s{S_B} offen offset:64")
    srd(o, R_X, S_X, N*256)
    srd(o, R_WS, S_WS, WS_USED)
    srd(o, R_OUT, S_OUT, N*256)
    o(f"s_mul_i32 s{S_A}, s{S_SL0}, {TSTRIDE}")
    o(f"s_add_u32 s{R_TAB}, s{S_WS}, s{S_A}")
    o(f"s_addc_u32 s{R_TAB+1}, s{S_WS+1}, 0")
    o(f"s_and_b32 s{R_TAB+1}, s{R_TAB+1}, 0xffff")
    o(f"s_mov_b32 s{R_TAB+2}, {2*TSTRIDE}")
    o(f"s_mov_b32 s{R_TAB+3}, 0x20000")
    if "dry" in OPT: o(f"s_mov_b32 s{S_DRY}, 0")
    if "tlb" in OPT:
        o(f"s_cmp_eq_u32 s{S_WAVE}, 8")
        o(f"s_cbranch_scc0 L_notlb")
        o(f"v_lshlrev_b32 v3, {TLBS}, v2")
        o(f"buffer_load_dword v118, v3, {sr(R_WS,4)}, 0 offen sc1")
        o(f"s_lshl_b32 s{S_A}, s{S_NODE0}, 8")
        o(f"buffer_load_dword v117, v{vZ}, {sr(R_OUT,4)}, s{S_A} offen sc1")
        o("L_notlb:")
    if "dry" in OPT:
        o("; one wave walks through the main loop with every lane off, so that its code is in the instruction cache later")
        o(f"s_cmp_eq_u32 s{S_WAVE}, {DRYW}")
        o(f"s_cbranch_scc0 L_dry_ret")
        for r in (3, 73, 75, 104, 106, 108, 110): o(f"v_mov_b32 v{r}, 0")
        o(f"s_mov_b32 s{S_DRY}, 1")
        o(f"s_mov_b32 s{S_PH}, 0")
        o(f"s_mov_b32 s{S_NT}, {PD}")
        o(f"s_mov_b32 s{S_CNT}, 1")
        o(f"s_mov_b32 s{S_L1}, 1")
        o(f"s_mov_b32 s{S_NK}, 0")
        o(f"s_mov_b32 s{S_NH}, 0")
        o("s_mov_b64 vcc, 0")
        o("s_mov_b64 exec, 0")
        o("s_branch M_prime")
        o("L_dry_ret:")
        o("s_mov_b64 exec, -1")
        o(f"s_mov_b32 s{S_DRY}, 0")
    o(f"s_cmp_lt_u32 s{S_WAVE}, {TEAM0}")
    o(f"s_cbranch_scc1 L_gemm")
    o("; partition team: one quad of edges per lane")
    o(f"s_cmp_eq_u32 s{S_WG}, 255")
    o(f"s_movk_i32 s{S_C}, {CH//4}")
    o(f"s_cselect_b32 s{S_C}, {(E-255*CH)//4}, s{S_C}")
    o(f"s_mov_b32 s{S_B}, 85599")
    o(f"s_movk_i32 s{S_D}, {NPB}")
    o("s_waitcnt vmcnt(2)")
    o(f"s_cmp_eq_u32 s{S_WAVE}, 15")
    o(f"s_cbranch_scc0 L_notl")
    o(f"buffer_load_dwordx2 v[48:49], v{vZ}, {sr(R_DBG,4)}, 0 offen{PSC}")
    o("L_notl:")
    stamp(o, 1)
    for r in range(4):
        o(f"v_mul_u32_u24 v{vB+r}, s{S_B}, v{vDST+r}")
        o(f"v_lshrrev_b32 v{vB+r}, 24, v{vB+r}")
        o(f"v_mul_u32_u24 v3, s{S_D}, v{vB+r}")
        o(f"v_sub_u32 v3, v{vDST+r}, v3")
        o(f"v_lshlrev_b32 v3, 2, v3")
        o(f"v_lshl_or_b32 v{vRec+2*r}, v{vSRC+r}, 16, v3")
        o(f"v_lshlrev_b32 v{vB+r}, 2, v{vB+r}")
        if r & 1: o(f"v_and_b32 v{vRec+2*r+1}, 0xffff0000, v{vE+(r>>1)}")
        else:     o(f"v_lshlrev_b32 v{vRec+2*r+1}, 16, v{vE+(r>>1)}")
    o(f"v_cmpx_gt_u32 vcc, s{S_C}, v4")
    for r in range(4):
        o(f"ds_add_rtn_u32 v{vR+r}, v{vB+r}, v15 offset:{HISTA}")
    o("s_mov_b64 exec, -1")
    o(f"v_lshlrev_b32 v8, 3, v2")
    o(f"s_cmp_eq_u32 s{S_WAVE}, 14")
    o(f"s_cbranch_scc0 L_noxd")
    xsrc(o, 46, 44, 45)
    o(f"s_add_u32 s{S_A}, s{S_NODE0}, {16*TEAM0}")
    o(f"s_lshl_b32 s{S_A}, s{S_A}, 8")
    for w in range(TEAM0, 13):
        for i in range(4 if w < 12 else 1):
            o(f"s_mov_b32 m0, {XT + (w >> 1)*XTS + (w & 1)*4160 + 16*i}")
            o("s_nop 0")
            o(f"buffer_load_dwordx4 v46, {sr(R_X,4)}, s{S_A} offen offset:{i*1024}{XNT} lds")
        if w < 12: o(f"s_add_u32 s{S_A}, s{S_A}, 4096")
    o("L_noxd:")
    soft_barrier(o, "L_sb1", NTM, 3)
    o(f"s_cmp_eq_u32 s{S_WAVE}, 15")
    o(f"s_cbranch_scc0 L_notl2")
    o(f"buffer_load_dwordx2 v[70:71], v{vZ}, {sr(R_DBG,4)}, 0 offen{PSC}")
    o("L_notl2:")
    o(f"ds_read_b64 v[6:7], v8 offset:{HISTA}")
    o("s_waitcnt lgkmcnt(0)")
    o(f"v_add_u32 v11, v6, v7")
    scan64(o, 11)
    o(f"v_sub_u32 v11, v11, v7")
    o(f"v_sub_u32 v10, v11, v6")
    o(f"ds_write_b64 v8, v[10:11] offset:{BASE}")
    for r in range(4):
        o(f"ds_read_b32 v{vDST+r}, v{vB+r} offset:{BASE}")
    o(f"v_lshl_or_b32 v10, v6, 11, v10")
    o(f"v_lshl_or_b32 v11, v7, 11, v11")
    o(f"v_mov_b32 v3, {RECS}")
    o("s_waitcnt lgkmcnt(0)")
    o(f"v_cmpx_gt_u32 vcc, s{S_C}, v4")
    for r in range(4):
        o(f"v_add_u32 v{vDST+r}, v{vDST+r}, v{vR+r}")
        o(f"v_lshl_add_u32 v{vDST+r}, v{vDST+r}, 3, v3")
        o(f"ds_write_b64 v{vDST+r}, {vr(vRec+2*r,2)}")
    o("s_mov_b64 exec, -1")
    o("s_waitcnt lgkmcnt(0)")
    lds_inc(o, vZ, F_SOFT)
    stamp(o, 2)
    o(f"s_cmp_lt_u32 s{S_WAVE}, 14")
    o(f"s_cbranch_scc1 L_gemm")
    o(f"s_cmp_eq_u32 s{S_WAVE}, 14")
    o(f"s_cbranch_scc1 L_w14")
    o("; wave 15: piece table and records of this workgroup, stamped with the launch tag")
    o("s_waitcnt vmcnt(1)")
    o(f"v_readfirstlane_b32 s{S_NK}, v48")
    o(f"v_readfirstlane_b32 s{S_NH}, v49")
    o(f"s_cmp_lg_u32 s{S_NH}, 0")
    o(f"s_cbranch_scc1 L_ga_ok")
    o("s_waitcnt vmcnt(0)")
    o(f"v_readfirstlane_b32 s{S_NK}, v70")
    o(f"v_readfirstlane_b32 s{S_NH}, v71")
    o(f"s_cmp_lg_u32 s{S_NH}, 0")
    o(f"s_cbranch_scc1 L_ga_ok")
    get_tag(o, "L_ga")
    o(f"v_or_b32 v{VE}, s{S_NK}, v10")
    o(f"v_mov_b32 v{VE+1}, s{S_NH}")
    o(f"v_or_b32 v{VE+2}, s{S_NK}, v11")
    o(f"v_mov_b32 v{VE+3}, s{S_NH}")
    o(f"v_mov_b32 v6, s{S_NK}")
    o(f"v_mov_b32 v7, s{S_NH}")
    o(f"v_lshlrev_b32 v4, 4, v2")
    if "entlast" not in OPT:
        o(f"s_lshl_b32 s{S_B}, s{S_WG}, 10")
        o(f"s_add_u32 s{S_B}, s{S_B}, {OFF_OFF}")
        o(f"buffer_store_dwordx4 {vr(VE,4)}, v4, {sr(R_WS,4)}, s{S_B} offen{SC}")
    o(f"ds_write_b64 v{vZ}, v[6:7] offset:{F_TAG}")
    stamp(o, 3)
    lds_wait(o, "L_sb2", vZ, F_SOFT, 2*NTM, 3, 0)
    o(f"v_add_u32 v12, {RECS}, v4")
    for i in range(13):
        o(f"ds_read_b128 {vr(16+4*i,4)}, v12 offset:{i*1024}")
    tag_parts(o)
    o(f"s_mul_i32 s{S_B}, s{S_WG}, {SEG}")
    o(f"s_add_u32 s{S_B}, s{S_B}, {REC_OFF}")
    o(f"v_mov_b32 v6, 0xfc00")
    o(f"v_mov_b32 v7, 0xffff")
    for i in range(13):
        if i and i % 4 == 0: o(f"s_add_u32 s{S_B}, s{S_B}, 4096")
        o(f"s_waitcnt lgkmcnt({12-i})")
        o(f"v_bfi_b32 v{16+4*i}, v6, s{S_T0}, v{16+4*i}")
        o(f"v_bfi_b32 v{17+4*i}, v7, s{S_NH}, v{17+4*i}")
        o(f"v_bfi_b32 v{18+4*i}, v6, s{S_T1}, v{18+4*i}")
        o(f"v_bfi_b32 v{19+4*i}, v7, s{S_T2}, v{19+4*i}")
        if i == 12: o("s_mov_b64 exec, 0xffff")
        o(f"buffer_store_dwordx4 {vr(16+4*i,4)}, v4, {sr(R_WS,4)}, s{S_B} offen offset:{(i&3)*1024}{SC}")
    o("s_mov_b64 exec, -1")
    if "entlast" in OPT:
        if "drain" in OPT: o("s_waitcnt vmcnt(0)")
        o(f"s_lshl_b32 s{S_B}, s{S_WG}, 10")
        o(f"s_add_u32 s{S_B}, s{S_B}, {OFF_OFF}")
        o(f"buffer_store_dwordx4 {vr(VE,4)}, v4, {sr(R_WS,4)}, s{S_B} offen{SC}")
    stamp(o, 4)
    o(f"s_cmp_eq_u32 s{S_BUCKET}, 127")
    o(f"s_cbranch_scc0 L_rec")
    o(f"v_lshrrev_b32 v3, 3, v2")
    o(f"s_mov_b32 s{S_B}, {TSTRIDE}")
    o(f"v_mul_lo_u32 v3, v3, s{S_B}")
    o(f"v_lshl_add_u32 v3, v1, 4, v3")
    o(f"s_mov_b32 s{S_B}, {DUMMY_ROW*128}")
    o(f"v_mov_b32 v20, 0x7f007f00")
    o(f"v_mov_b32 v21, 0x7f007f00")
    o(f"v_mov_b32 v22, 0")
    o(f"v_mov_b32 v23, 0")
    o("s_mov_b64 exec, 0xffff")
    o(f"buffer_store_dwordx4 {vr(20,4)}, v3, {sr(R_TAB,4)}, s{S_B} offen{SC}")
    o("s_mov_b64 exec, -1")
    o("s_branch L_rec")
    o("; wave 14: wait for every workgroup's piece entry of this bucket")
    o("L_w14:")
    def tcinc():
        o(f"v_mov_b32 v4, 2")
        o("s_mov_b64 exec, 1")
        o(f"ds_add_u32 v{vZ}, v15 offset:{F_TC+16}")
        o(f"ds_add_u32 v{vZ}, v4 offset:{F_TC+20}")
        o(f"ds_add_u32 v{vZ}, v4 offset:{F_TC+24}")
        o("s_mov_b64 exec, -1")
    def pollissue():
        for i in range(4):
            o(f"buffer_load_dwordx2 {vr(16+2*i,2)}, v3, {sr(R_WS,4)}, s{S_B} offen offset:{1024*i}{ESC}")
    o(f"v_lshlrev_b32 v3, 12, v2")
    o(f"s_lshl_b32 s{S_B}, s{S_BUCKET}, 3")
    o(f"s_add_u32 s{S_B}, s{S_B}, {OFF_OFF}")
    if "pe" in OPT:
        if PESL: o(f"s_sleep {PESL}")
        pollissue()
        o("s_waitcnt vmcnt(4)")
    else:
        o("s_waitcnt vmcnt(0)")
    tcinc()
    lds_wait(o, "L_wtag", vZ, F_TAG+4, 1, 5)
    o(f"ds_read_b32 v5, v{vZ} offset:{F_TAG}")
    o(f"s_mov_b32 s{S_NH}, s{S_A}")
    o("s_waitcnt lgkmcnt(0)")
    o(f"v_readfirstlane_b32 s{S_NK}, v5")
    spin_bound(o)
    if "pe" in OPT: o("s_branch L_pa1")
    o("L_pa:")
    pollissue()
    o("L_pa1:")
    o("s_waitcnt vmcnt(0)")
    for i in range(4):
        o(f"v_xor_b32 v{24+i}, s{S_NK}, v{16+2*i}")
        o(f"v_xor_b32 v{17+2*i}, s{S_NH}, v{17+2*i}")
    o(f"v_or3_b32 v6, v24, v25, v26")
    o(f"v_or_b32 v6, v6, v27")
    o(f"v_lshrrev_b32 v6, 22, v6")
    o(f"v_or3_b32 v6, v6, v17, v19")
    o(f"v_or3_b32 v6, v6, v21, v23")
    o(f"v_cmpx_ne_u32 vcc, 0, v6")
    o(f"s_cbranch_execz L_pa_ok")
    spin_tail(o, "L_pa", 2)
    o("L_pa_ok:")
    o("s_mov_b64 exec, -1")
    if "cpf3" in OPT:
        o(f"s_getpc_b64 {sr(S_EX,2)}")
        o(f"s_add_u32 s{S_EX}, s{S_EX}, L_rec-L_pa_ok-16")
        o(f"s_addc_u32 s{S_EX+1}, s{S_EX+1}, 0")
        o(f"v_lshlrev_b32 v3, 7, v2")
        o(f"s_mov_b32 exec_hi, 0xfff")
        o(f"global_load_dword v52, v3, {sr(S_EX,2)}")
        o("s_mov_b64 exec, -1")
    stamp(o, 3)
    o(f"v_lshlrev_b32 v3, 4, v2")
    o(f"ds_write_b128 v3, {vr(24,4)} offset:{OFFL}")
    o("s_waitcnt lgkmcnt(0)")
    o(f"ds_write_b32 v{vZ}, v15 offset:{F_OFFL}")
    o("s_branch L_rec")
    o("L_gemm:")
    if "gp" not in OPT and "gp2" not in OPT: o("s_setprio 0")
    if "gp2" in OPT:
        o(f"s_cmp_lt_u32 s{S_WAVE}, 4")
        o("s_cbranch_scc1 L_gp")
        o("s_setprio 1")
        o(f"s_cmp_lt_u32 s{S_WAVE}, 8")
        o("s_cbranch_scc1 L_gp")
        o("s_setprio 2")
        o("L_gp:")
    xsrc(o)
    if "nowi" not in OPT and "b0late" not in OPT: lds_wait(o, "L_wi", vZ, F_WI, 8, 3, 0)
    o(f"s_lshr_b32 s{S_TILE}, s{S_WAVE}, 1")
    o(f"s_and_b32 s{S_FB}, s{S_WAVE}, 1")
    o(f"s_add_u32 s{S_SL}, s{S_SL0}, s{S_FB}")
    o(f"s_lshl_b32 s{S_A}, s{S_WAVE}, 4")
    o(f"s_add_u32 s{S_A}, s{S_A}, s{S_NODE0}")
    o(f"s_lshl_b32 s{S_A}, s{S_A}, 8")
    o(f"s_mul_i32 s{S_C}, s{S_TILE}, {XTS}")
    o(f"s_add_u32 s{S_C}, s{S_C}, {XT}")
    o(f"s_mul_i32 s{S_B}, s{S_FB}, 4160")
    o(f"s_add_u32 s{S_B}, s{S_B}, s{S_C}")
    o(f"s_cmp_ge_u32 s{S_WAVE}, {TEAM0}")
    o(f"s_cbranch_scc1 L_xdone")
    for i in range(4):
        o(f"s_add_u32 m0, s{S_B}, {16*i}")
        o("s_nop 0")
        o(f"buffer_load_dwordx4 v12, {sr(R_X,4)}, s{S_A} offen offset:{i*1024}{XNT} lds")
    o("L_xdone:")
    o(f"s_cmp_lt_u32 s{S_WAVE}, 8")
    o(f"s_cbranch_scc0 L_w4")
    o("s_waitcnt vmcnt(4)")
    lds_inc(o, vZ, F_W)
    o("L_w4:")
    if STAMP is not None and STAMP < TEAM0: stamp(o, 1)
    o(f"v_and_b32 v6, 31, v2")
    o(f"v_lshrrev_b32 v7, 5, v2")
    o(f"v_lshrrev_b32 v3, 2, v6")
    o(f"s_movk_i32 s{S_A}, 1040")
    o(f"v_mul_u32_u24 v3, s{S_A}, v3")
    o(f"v_and_b32 v12, 3, v6")
    o(f"v_lshl_add_u32 v3, v12, 8, v3")
    o(f"v_lshl_add_u32 v3, v7, 4, v3")
    o(f"v_add_u32 v3, s{S_C}, v3")
    o(f"v_xor_b32 v12, s{S_SL}, v12")
    for u in range(4):
        o(f"v_xor_b32 v4, {u}, v12")
        o(f"v_lshl_add_u32 v{vD+u}, v4, 6, v3")
    o(f"v_bfe_u32 v3, v2, 2, 2")
    o(f"v_lshl_add_u32 v8, v7, 3, v3")
    o(f"v_lshlrev_b32 v8, 7, v8")
    o(f"v_lshrrev_b32 v3, 1, v3")
    o(f"v_xor_b32 v3, s{S_FB}, v3")
    o(f"v_lshl_add_u32 v8, v3, 6, v8")
    o(f"v_bfe_u32 v3, v2, 4, 1")
    o(f"v_lshl_add_u32 v8, v3, 5, v8")
    o(f"v_and_b32 v3, 3, v2")
    o(f"v_lshl_add_u32 v8, v3, 3, v8")
    for u in range(4):
        o(f"s_xor_b32 s{S_A}, s{S_SL}, {u}")
        o(f"s_lshl_b32 s{S_A}, s{S_A}, 12")
        o(f"s_add_u32 s{S_A}, s{S_A}, {WOFF}")
        o(f"v_add_u32 v{vWA+u}, s{S_A}, v8")
    o(f"s_lshl_b32 s{S_A}, s{S_TILE}, 2")
    o(f"v_mov_b32 v11, s{S_A}")
    o(f"s_lshl_b32 s{S_D}, s{S_FB}, 12")
    o(f"s_add_u32 s{S_D}, s{S_D}, s{S_C}")
    o("s_waitcnt vmcnt(0)")
    o(f"s_cmp_ge_u32 s{S_WAVE}, {TEAM0}")
    o(f"s_cbranch_scc1 L_noinc")
    lds_inc(o, 11, F_TC)
    o("L_noinc:")
    lds_wait(o, "L_wt", 11, F_TC, 2, 3, 0)
    stamp(o, 2 if STAMP is not None and STAMP < TEAM0 else 3)
    for t in range(8):
        o(f"ds_read_b128 {vr(vX+4*t,4)}, v{vD+(t>>1)} offset:{(t&1)*32}")
    o("s_waitcnt lgkmcnt(0)")
    lds_inc(o, 11, F_TC)
    lds_wait(o, "L_ww", vZ, F_W, 8, 3)
    gstamp(o, 5)
    gemm_pair(o, vW, vX, aP, aQ, vWA, 0)
    gstamp(o, 6)
    for i in range(0, 16, 2):
        o(f"v_pk_fma_f32 {vr(aP+i,2)}, {vr(aP+i,2)}, {sr(S_CT,2)}, {sr(S_CT,2)} op_sel:[0,0,1] op_sel_hi:[1,0,1]")
    for i in range(0, 16, 2):
        o(f"v_pk_add_f32 {vr(aQ+i,2)}, {vr(aQ+i,2)}, {sr(S_CT,2)} op_sel:[0,1] op_sel_hi:[1,1]")
    lds_wait(o, "L_wu", 11, F_TC, 4, 3, 0)
    gstamp(o, 7)
    o(f"v_and_b32 v3, 7, v6")
    o(f"v_xor_b32 v3, v3, v7")
    o(f"v_lshlrev_b32 v3, 4, v3")
    o(f"v_lshl_add_u32 v3, v6, 7, v3")
    o(f"v_add_u32 v3, s{S_D}, v3")
    for q in range(4):
        d = vD + (q & 1)*4
        encode4(o, aP+4*q, d); encode4(o, aQ+4*q, d+2)
        if q: o(f"v_xor_b32 v3, {32*(q ^ (q-1))}, v3")
        o(f"ds_write_b128 v3, {vr(d,4)}")
    o(f"v_lshrrev_b32 v3, 3, v2")
    o(f"v_xor_b32 v10, v1, v3")
    o(f"v_lshlrev_b32 v10, 4, v10")
    o(f"v_lshl_add_u32 v10, v3, 7, v10")
    o(f"v_add_u32 v10, s{S_D}, v10")
    o(f"s_lshl_b32 s{S_B1}, s{S_TILE}, 5")
    o(f"s_add_u32 s{S_B1}, s{S_B1}, s{S_NODE0}")
    o(f"s_lshl_b32 s{S_B1}, s{S_B1}, 7")
    def tab_read():
        for i in range(4):
            o(f"ds_read_b128 {vr(aP+4*i,4)}, v10 offset:{i*1024}")
    def tab_store(lab, counted):
        o(f"v_lshlrev_b32 v3, 4, v2")
        o(f"s_cmp_lt_u32 s{S_WAVE}, 12")
        o(f"s_cbranch_scc1 {lab}_full")
        if counted: o("s_waitcnt lgkmcnt(0)")
        o("s_mov_b32 exec_hi, 0")
        o(f"buffer_store_dwordx4 {vr(aP,4)}, v3, {sr(R_TAB,4)}, s{S_B1} offen{SC}")
        o("s_mov_b64 exec, -1")
        o(f"s_branch {lab}")
        o(f"{lab}_full:")
        for i in range(4):
            if counted: o(f"s_waitcnt lgkmcnt({3-i})")
            o(f"buffer_store_dwordx4 {vr(aP+4*i,4)}, v3, {sr(R_TAB,4)}, s{S_B1} offen offset:{i*1024}{SC}")
        o(f"{lab}:")
    o(f"s_mul_i32 s{S_A}, s{S_FB}, {TSTRIDE}")
    o(f"s_add_u32 s{S_B1}, s{S_B1}, s{S_A}")
    gstamp(o, 8)
    o("s_waitcnt lgkmcnt(0)")
    gstamp(o, 9)
    if "ist" not in OPT:
        tab_read()
        tab_store("L_st_done", True)
        gemm_pair(o, vW, vX, aP, aQ, vWA, 32768)
    else:
        for i in range(4):
            o(f"ds_read_b128 {vr(104+4*i,4)}, v10 offset:{i*1024}")
        o(f"v_lshlrev_b32 v4, 4, v2")
        o(f"s_cmp_lt_u32 s{S_WAVE}, 12")
        o(f"s_cselect_b32 s{S_T0}, -1, 0")
        def extra(t):
            if t < 4:
                o(f"s_mov_b32 exec_hi, s{S_T0}")
                if t: o(f"s_mov_b32 exec_lo, s{S_T0}")
                o(f"buffer_store_dwordx4 {vr(104+4*t,4)}, v4, {sr(R_TAB,4)}, s{S_B1} offen offset:{t*1024}{SC}")
                o("s_mov_b64 exec, -1")
        gemm_pair(o, vW, vX, aP, aQ, vWA, 32768, extra)
    gstamp(o, 10)
    for i in range(0, 16, 2):
        o(f"v_pk_mul_f32 {vr(aP+i,2)}, {vr(aP+i,2)}, {sr(S_CT,2)} op_sel_hi:[1,0]")
    for q in range(4):
        o(f"v_cvt_pk_bf16_f32 v{vW+4*q+2}, v{aQ+4*q}, v{aQ+4*q+1}")
        o(f"v_cvt_pk_bf16_f32 v{vW+4*q+3}, v{aQ+4*q+2}, v{aQ+4*q+3}")
    o(f"v_max3_f32 v3, |v{aP}|, |v{aP+1}|, |v{aP+2}|")
    for i in range(3, 15, 2):
        o(f"v_max3_f32 v3, v3, |v{aP+i}|, |v{aP+i+1}|")
    o(f"v_max_f32 v3, v3, |v{aP+15}|")
    o(f"s_mov_b32 s{S_A}, 0x42700000")
    o(f"s_cmp_ge_u32 s{S_WAVE}, 12")
    o(f"s_cselect_b32 s{S_EX}, 0xf, -1")
    o(f"v_cmp_lt_f32 vcc, s{S_A}, v3")
    o(f"s_mov_b32 s{S_EX+1}, s{S_EX}")
    o(f"s_and_b64 vcc, vcc, {sr(S_EX,2)}")
    o(f"s_cbranch_scc0 L_doexp")
    o(f"v_lshlrev_b32 v3, s{S_WAVE}, v15")
    o(f"ds_or_b32 v{vZ}, v3 offset:{F_RANGE}")
    o("s_branch L_noexp")
    o("L_doexp:")
    for i in range(16): o(f"v_exp_f32 v{aP+i}, -v{aP+i}")
    o("L_noexp:")
    for q in range(4):
        o(f"v_cvt_pk_bf16_f32 v{vW+4*q}, v{aP+4*q}, v{aP+4*q+1}")
        o(f"v_cvt_pk_bf16_f32 v{vW+4*q+1}, v{aP+4*q+2}, v{aP+4*q+3}")
    lds_inc(o, vZ, F_GD)
    def aux_write(lab):
        o(f"s_cmp_lt_u32 s{S_WAVE}, 14")
        o(f"s_cbranch_scc0 {lab}")
        o(f"s_lshr_b32 s{S_A}, s{S_WAVE}, 1")
        o(f"s_lshl_b32 s{S_A}, s{S_A}, 5")
        o(f"v_and_b32 v3, 31, v2")
        o(f"v_add_u32 v3, s{S_A}, v3")
        o(f"s_movk_i32 s{S_A}, {AUS}")
        o(f"v_cmpx_gt_u32 vcc, s{S_A}, v3")
        o(f"s_and_b32 s{S_B}, s{S_WAVE}, 1")
        o(f"s_mul_i32 s{S_B}, s{S_B}, {AUP}")
        o(f"s_add_u32 s{S_B}, s{S_B}, {AUX}")
        o(f"v_mul_u32_u24 v3, s{S_A}, v3")
        o(f"v_lshrrev_b32 v14, 5, v2")
        o(f"v_mul_u32_u24 v14, 24, v14")
        o(f"v_add3_u32 v3, v3, v14, s{S_B}")
        o(f"v_add_u32 v14, v3, v14")
        for q in range(4):
            o(f"ds_write2_b64 v3, {vr(vW+4*q,2)}, {vr(vW+4*q+2,2)} offset0:{6*q} offset1:{6*q+1}")
        o(f"ds_write2_b64 v14, {vr(vX,2)}, {vr(vX+2,2)} offset0:2 offset1:5")
        o(f"ds_write2_b64 v14, {vr(vX+4,2)}, {vr(vX+6,2)} offset0:14 offset1:17")
        o("s_mov_b64 exec, -1")
        o(f"{lab}:")
    o("L_rec:")
    if STAMP is not None and STAMP < 14: stamp(o, 4)
    vCNT, vIDX, vRA = 4, 5, 12
    o(f"v_and_b32 v{vIDX}, 3, v0")
    o(f"v_lshrrev_b32 v3, 2, v0")
    o(f"s_movk_i32 s{S_A}, {SEG}")
    o(f"v_mul_u32_u24 v{vRA}, s{S_A}, v3")
    o(f"v_lshl_add_u32 v{vRA}, v{vIDX}, 4, v{vRA}")
    o(f"v_lshlrev_b32 v{vIDX}, 1, v{vIDX}")
    o(f"v_and_b32 v14, 0xffc, v0")
    lds_wait(o, "L_wo", vZ, F_OFFL, 1, 3)
    o(f"ds_read_b32 v{vCNT}, v14 offset:{OFFL}")
    o(f"ds_read_b64 v[6:7], v{vZ} offset:{F_TAG}")
    o("s_waitcnt lgkmcnt(0)")
    o(f"v_readfirstlane_b32 s{S_NK}, v6")
    o(f"v_readfirstlane_b32 s{S_NH}, v7")
    o(f"v_and_b32 v3, 0x7fe, v{vCNT}")
    o(f"v_lshl_add_u32 v{vRA}, v3, 3, v{vRA}")
    o(f"v_and_b32 v3, 1, v{vCNT}")
    o(f"v_sub_u32 v{vIDX}, v{vIDX}, v3")
    o(f"v_lshrrev_b32 v{vCNT}, 11, v{vCNT}")
    o(f"v_cmp_le_i32 vcc, 0, v{vIDX}")
    o(f"v_sub_u32 v{vIDX}, v{vCNT}, v{vIDX}")
    for r in range(NR):
        o(f"v_cmp_lt_i32 {sr(S_MSK+2*r,2)}, {8*(r>>1) + (r&1)}, v{vIDX}")
    o(f"s_mov_b64 {sr(S_EX,2)}, {sr(S_MSK,2)}")
    o(f"s_and_b64 {sr(S_MSK,2)}, {sr(S_MSK,2)}, vcc")
    def rec_issue(lab):
        o(f"s_mov_b32 s{S_A}, {REC_OFF}")
        for k in range(NL):
            o(f"s_mov_b64 exec, {sr(S_MSK+4*k,2) if k else sr(S_EX,2)}")
            if k >= 2: o(f"s_cbranch_execz {lab}")
            o(f"buffer_load_dwordx4 {vr(vREC+4*k,4)}, v{vRA}, {sr(R_WS,4)}, s{S_A} offen offset:{k*64}{RSC}")
        o(f"{lab}:")
        o("s_mov_b64 exec, -1")
    rec_issue("L_ld_done")
    o(f"v_cmpx_lt_u32 vcc, {8*NL-1}, v{vCNT}")
    o(f"ds_write_b32 v{vZ}, v15 offset:{F_STRUCT}")
    o("s_mov_b64 exec, -1")
    o(f"s_cmp_lt_u32 s{S_WAVE}, 14")
    o(f"s_cbranch_scc0 L_noaux")
    lds_wait(o, "L_wg", vZ, F_GD, 14, 3)
    aux_write("L_noaux")
    stamp(o, 5)
    vRK = 24; vDA = 34
    tag_parts(o)
    o(f"s_and_b32 s{S_T0}, s{S_T0}, 0xfc00")
    o(f"s_and_b32 s{S_T1}, s{S_T1}, 0xfc00")
    o(f"s_lshl_b32 s{S_T1}, s{S_T1}, 16")
    o(f"s_or_b32 s{S_T0}, s{S_T0}, s{S_T1}")
    o(f"s_mov_b32 s{S_T1}, 0x05040100")
    o(f"v_mov_b32 v7, 0xfc00fc00")
    spin_bound(o)
    o("L_chk:")
    o(f"v_mov_b32 v6, 0")
    o("s_waitcnt vmcnt(0)")
    for k in range(NL):
        o(f"s_mov_b64 exec, {sr(S_MSK+4*k,2) if k else sr(S_EX,2)}")
        if k >= 2: o(f"s_cbranch_execz L_chk_done")
        o(f"v_perm_b32 v3, v{vREC+4*k+2}, v{vREC+4*k}, s{S_T1}")
        o(f"v_perm_b32 v14, v{vREC+4*k+3}, v{vREC+4*k+1}, s{S_T1}")
        o(f"v_xor_b32 v3, s{S_T0}, v3")
        o(f"v_xor_b32 v14, s{S_NH}, v14")
        o(f"v_and_or_b32 v3, v3, v7, v14")
        o(f"v_or_b32 v6, v6, v3")
    o("L_chk_done:")
    o("s_mov_b64 exec, -1")
    o(f"v_cmp_ne_u32 vcc, 0, v6")
    o(f"s_cbranch_vccz L_chk_ok")
    rec_issue("L_ld_again")
    o(f"s_sub_u32 s{S_SPIN}, s{S_SPIN}, 1")
    o(f"s_cbranch_scc0 L_chk")
    o("L_chk_ok:")
    for r in range(NR):
        o(f"s_mov_b64 exec, {sr(S_MSK+2*r,2)}")
        if r >= 3: o("s_cbranch_execz L_cnt_done")
        o(f"v_and_b32 v{vDA+r}, 0x3ff, v{vREC+2*r}")
        o(f"v_and_b32 v{vREC+2*r+1}, 0xffff0000, v{vREC+2*r+1}")
        o(f"ds_add_rtn_u32 v{vRK+r}, v{vDA+r}, v15 offset:{DEG}")
    o("L_cnt_done:")
    o("s_setprio 0")
    o("s_mov_b64 exec, -1")
    stamp(o, 6)
    o("s_waitcnt lgkmcnt(0)")
    o("s_barrier")
    stamp(o, 7)
    vN_D, vBIN, vR2, vPOS, vL, vTB = 80, 81, 82, 83, 84, 85
    vWX, vW2, vEX, vDen, vNum, vNQ, vT, vLO, vLA, vOB, vOA, vAB, vAU = 86, 124, 90, 92, 96, 100, 64, 72, 73, 74, 75, 76, 78
    o(f"s_cmp_eq_u32 s{S_WAVE}, 15")
    o(f"s_cbranch_scc0 L_nosort")
    o("s_setprio 3")
    sD, sB, sR, sP = 48, 52, 56, 60
    o(f"v_lshlrev_b32 v8, 2, v2")
    for i in range(4): o(f"ds_read_b32 v{sD+i}, v8 offset:{DEG+256*i}")
    publish_tf(o, 0)
    publish_tf(o, 1)
    o("s_waitcnt lgkmcnt(0)")
    for i in range(4):
        o(f"v_min_u32 v{sB+i}, 63, v{sD+i}")
        o(f"v_sub_u32 v{sB+i}, 63, v{sB+i}")
        o(f"v_lshlrev_b32 v{sB+i}, 2, v{sB+i}")
        if i == 3: o("s_mov_b64 exec, 0xff")
        o(f"ds_add_rtn_u32 v{sR+i}, v{sB+i}, v15 offset:{HIST2}")
    o("s_mov_b64 exec, -1")
    o(f"ds_read_b32 v6, v8 offset:{HIST2}")
    o(f"v_max3_u32 v3, v{sD}, v{sD+1}, v{sD+2}")
    o(f"v_max_u32 v3, v3, v{sD+3}")
    o(f"v_cmp_lt_u32 vcc, 63, v3")
    o(f"s_cmp_lg_u64 vcc, 0")
    o(f"s_cselect_b32 s{S_C}, 1, 0")
    o(f"v_lshrrev_b32 v10, 1, v2")
    o(f"v_sub_u32 v11, 31, v10")
    o(f"v_and_b32 v7, 1, v2")
    o(f"v_cmp_eq_u32 vcc, 1, v7")
    o(f"v_add_u32 v12, 192, v2")
    o(f"v_mov_b32 v7, 0xffff")
    o(f"v_cndmask_b32 v10, v10, v11, vcc")
    o(f"v_and_b32 v11, 32, v2")
    o(f"v_add_u32 v10, v10, v11")
    o(f"v_cmp_gt_u32 vcc, 4, v2")
    o(f"v_cmp_gt_u32 {sr(S_EX,2)}, 25, v10")
    o(f"v_lshlrev_b32 v10, 5, v10")
    o(f"v_cndmask_b32 v12, v7, v12, vcc")
    o("s_waitcnt lgkmcnt(0)")
    o(f"v_mov_b32 v14, v6")
    scan64(o, 14)
    o(f"v_sub_u32 v14, v14, v6")
    for i in range(4): o(f"ds_bpermute_b32 v{sP+i}, v{sB+i}, v14")
    o(f"v_lshl_or_b32 v{sB}, v{sD}, 16, v2")
    o(f"v_add_u32 v3, 64, v2")
    o(f"v_lshl_or_b32 v{sB+1}, v{sD+1}, 16, v3")
    o(f"v_add_u32 v3, 128, v2")
    o(f"v_lshl_or_b32 v{sB+2}, v{sD+2}, 16, v3")
    o(f"v_lshl_or_b32 v{sB+3}, v{sD+3}, 16, v12")
    o("s_waitcnt lgkmcnt(0)")
    for i in range(4):
        o(f"v_add_u32 v{sP+i}, v{sP+i}, v{sR+i}")
        o(f"v_lshlrev_b32 v3, 2, v{sP+i}")
        if i == 3: o("s_mov_b64 exec, 0xff")
        o(f"ds_write_b32 v3, v{sB+i} offset:{SNODE}")
    o("s_mov_b64 exec, -1")
    o(f"ds_read_u16 v{vL}, v10 offset:{SNODE+2}")
    for i in range(4):
        o(f"v_lshrrev_b32 v3, 3, v{sP+i}")
        o(f"v_sub_u32 v6, 31, v3")
        o(f"v_cmp_gt_u32 vcc, 16, v3")
        o(f"v_lshl_or_b32 v6, v6, 3, 4")
        o(f"v_lshlrev_b32 v3, 3, v3")
        o(f"v_cndmask_b32 v{sB+i}, v6, v3, vcc")
        o(f"v_and_b32 v{sP+i}, 7, v{sP+i}")
        o(f"v_lshlrev_b32 v{sP+i}, 3, v{sP+i}")
        o(f"v_add_u32 v{sP+i}, {ELL}, v{sP+i}")
    o("s_waitcnt lgkmcnt(0)")
    o(f"v_cndmask_b32 v{vL}, 0, v{vL}, {sr(S_EX,2)}")
    o(f"v_mov_b32 v{vTB}, v{vL}")
    scan64(o, vTB)
    o("s_nop 0")
    o(f"v_readlane_b32 s{S_A}, v{vTB}, 63")
    o(f"v_sub_u32 v{vTB}, v{vTB}, v{vL}")
    o(f"v_lshl_or_b32 v{vTB}, v{vTB}, 8, v{vL}")
    o(f"s_cmp_gt_u32 s{S_A}, {ELL_ITERS}")
    o(f"s_cselect_b32 s{S_C}, 1, s{S_C}")
    o(f"s_cmp_lg_u32 s{S_C}, 0")
    o(f"s_cbranch_scc0 L_fit")
    o(f"ds_write_b32 v{vZ}, v15 offset:{F_STRUCT}")
    o("s_branch L_sorted")
    o("L_fit:")
    for i in range(4): o(f"ds_bpermute_b32 v{sR+i}, v{sB+i}, v{vTB}")
    o(f"ds_write_b32 v8, v{vTB} offset:{TBL}")
    o("s_waitcnt lgkmcnt(1)")
    for i in range(4):
        o(f"v_lshrrev_b32 v3, 8, v{sR+i}")
        o(f"v_lshl_add_u32 v{sP+i}, v3, 6, v{sP+i}")
        o(f"v_lshl_or_b32 v{sP+i}, v{sR+i}, 24, v{sP+i}")
        o(f"ds_write_b32 v8, v{sP+i} offset:{SLOT+256*i}")
    o("s_branch L_sorted")
    o("L_nosort:")
    o(f"s_cmp_eq_u32 s{S_WAVE}, {99 if 'nopf' in OPT else 14}")
    o(f"s_cbranch_scc0 L_nopf")
    o(f"v_lshlrev_b32 v3, 7, v2")
    o(f"s_lshl_b32 s{S_B}, s{S_NODE0}, 7")
    for i in range(4):
        if i == 3: o("s_mov_b64 exec, 0xf")
        o(f"buffer_load_dword v{48+i}, v3, {sr(R_TAB,4)}, s{S_B} offen{SC}")
        if i < 3: o(f"s_add_u32 s{S_B}, s{S_B}, 8192")
    o("s_mov_b64 exec, -1")
    if "cpf2" in OPT:
        o("; bring the code of the remaining phases back into L2 (it may have been evicted since the start)")
        o(f"s_getpc_b64 {sr(S_EX,2)}")
        o(f"v_lshlrev_b32 v3, 7, v2")
        o(f"s_mov_b32 exec_lo, -1")
        o(f"s_mov_b32 exec_hi, 0")
        o(f"global_load_dword v52, v3, {sr(S_EX,2)}")
        o("s_mov_b64 exec, -1")
    o("L_nopf:")
    o("L_sorted:")
    o("s_setprio 0")
    o(f"v_lshlrev_b32 v{vLO}, 4, v1")
    o(f"v_mul_u32_u24 v{vAB}, 24, v1")
    for p, w in ((0, vWX), (2, vW2)):
        o(f"v_lshlrev_b32 v{w}, 16, v{vWC+p}")
        o(f"v_lshlrev_b32 v{w+1}, 16, v{vWC+p+1}")
        o(f"v_and_b32 v{w+2}, 0xffff0000, v{vWC+p}")
        o(f"v_and_b32 v{w+3}, 0xffff0000, v{vWC+p+1}")
        o(f"v_pk_mul_f32 {vr(w,2)}, {vr(w,2)}, {sr(S_CT,2)} op_sel_hi:[1,0]")
        o(f"v_pk_mul_f32 {vr(w+2,2)}, {vr(w+2,2)}, {sr(S_CT,2)} op_sel_hi:[1,0]")
    o(f"v_add_u32 v{vAB}, {AUX}, v{vAB}")
    o(f"s_lshl_b32 s{S_A}, s{S_NODE0}, 8")
    o(f"s_lshl_b32 s{S_B}, s{S_SL0}, 6")
    o(f"s_add_u32 s{S_A}, s{S_A}, s{S_B}")
    o(f"v_lshl_add_u32 v{vOB}, v1, 3, s{S_A}")
    o(f"v_lshlrev_b32 v8, 2, v2")
    o(f"v_lshrrev_b32 v3, 3, v2")
    o(f"v_lshlrev_b32 v6, 2, v3")
    o(f"v_lshlrev_b32 v5, 3, v3")
    o(f"s_lshl_b32 s{S_A}, s{S_WAVE}, 5")
    o(f"v_add_u32 v14, s{S_A}, v6")
    o(f"s_sub_u32 s{S_B}, {31*32}, s{S_A}")
    o(f"v_add_u32 v12, s{S_B}, v6")
    o(f"s_xor_b32 s{S_A}, s{S_A}, {MIR*32}")
    o(f"v_add_u32 v4, s{S_A}, v6")
    o(f"s_sub_u32 s{S_B}, {31*32}, s{S_A}")
    o(f"v_add_u32 v3, s{S_B}, v6")
    o("s_waitcnt lgkmcnt(0)")
    o("s_barrier")
    stamp(o, 8)
    o(f"ds_read_b64 v[6:7], v{vZ} offset:{F_STRUCT}")
    o(f"ds_read_b32 v{vTB}, v8 offset:{TBL}")
    o(f"ds_read_b32 v80, v9 offset:{SLOT}")
    o(f"ds_read_b32 v81, v9 offset:{DEG}")
    for r in range(NR):
        o(f"s_mov_b64 exec, {sr(S_MSK+2*r,2)}")
        if r >= 3: o("s_cbranch_execz L_s8a_done")
        o(f"ds_read_b32 v{vDA+r}, v{vDA+r} offset:{SLOT}")
    o("L_s8a_done:")
    o("s_mov_b64 exec, -1")
    o(f"ds_read_u16 v{vNQ}, v14 offset:{SNODE}")
    o(f"ds_read_u16 v10, v12 offset:{SNODE}")
    o(f"ds_read_u16 v{vNQ+1}, v4 offset:{SNODE}")
    o(f"ds_read_u16 v11, v3 offset:{SNODE}")
    o("s_waitcnt lgkmcnt(0)")
    o(f"v_readfirstlane_b32 s{S_B}, v6")
    o(f"v_readfirstlane_b32 s{S_MODE}, v7")
    o(f"s_lshl_b32 s{S_A}, s{S_WAVE}, 1")
    o(f"v_readlane_b32 s{S_C}, v{vTB}, s{S_A}")
    o(f"s_or_b32 s{S_B}, s{S_B}, s{S_MODE}")
    o(f"s_cbranch_scc1 L_slow")
    for r in range(NR):
        o(f"s_mov_b64 exec, {sr(S_MSK+2*r,2)}")
        if r >= 3: o("s_cbranch_execz L_s8b_done")
        o(f"v_lshl_add_u32 v{vDA+r}, v{vRK+r}, 6, v{vDA+r}")
        o(f"v_and_b32 v{vDA+r}, 0xffffff, v{vDA+r}")
        o(f"ds_write_b64 v{vDA+r}, {vr(vREC+2*r,2)}")
    o("L_s8b_done:")
    o("s_mov_b64 exec, -1")
    o(f"s_cmp_lt_u32 s{S_WAVE}, 4")
    o(f"s_cbranch_scc0 L_pad_done")
    o(f"v_lshrrev_b32 v82, 24, v80")
    o(f"v_lshl_add_u32 v80, v81, 6, v80")
    o(f"v_and_b32 v80, 0xffffff, v80")
    o(f"v_mov_b32 v6, {DUMMY_ROW << 16}")
    o(f"v_mov_b32 v7, 0")
    o(f"s_movk_i32 s{S_B}, 200")
    o(f"v_cmpx_gt_u32 vcc, s{S_B}, v0")
    o("L_pad:")
    o(f"v_cmpx_gt_u32 vcc, v82, v81")
    o(f"s_cbranch_execz L_pad_done")
    o(f"ds_write_b64 v80, v[6:7]")
    o(f"v_add_u32 v80, 64, v80")
    o(f"v_add_u32 v81, 1, v81")
    o("s_branch L_pad")
    o("L_pad_done:")
    o("s_mov_b64 exec, -1")
    o(f"s_add_u32 s{S_A}, s{S_A}, 1")
    o(f"v_readlane_b32 s{S_L1}, v{vTB}, s{S_A}")
    o(f"s_xor_b32 s{S_A}, s{S_A}, {2*MIR}")
    o(f"v_readlane_b32 s{S_L3}, v{vTB}, s{S_A}")
    o(f"s_sub_u32 s{S_A}, s{S_A}, 1")
    o(f"v_readlane_b32 s{S_B1}, v{vTB}, s{S_A}")
    o(f"s_and_b32 s{S_CNT}, s{S_C}, 0xff")
    o(f"s_lshr_b32 s{S_C}, s{S_C}, 8")
    o(f"s_and_b32 s{S_L1}, s{S_L1}, 0xff")
    o(f"s_and_b32 s{S_L3}, s{S_L3}, 0xff")
    o(f"s_and_b32 s{S_L2}, s{S_B1}, 0xff")
    o(f"s_lshr_b32 s{S_B1}, s{S_B1}, 8")
    o(f"s_lshl_b32 s{S_C}, s{S_C}, 6")
    o(f"s_add_u32 s{S_C}, s{S_C}, {ELL}")
    o(f"s_lshl_b32 s{S_B1}, s{S_B1}, 6")
    o(f"s_add_u32 s{S_B1}, s{S_B1}, {ELL}")
    o(f"v_add_u32 v{vLA}, s{S_C}, v5")
    stamp(o, 10)
    o(f"s_cmp_eq_u32 s{S_WAVE}, 14")
    o(f"s_cbranch_scc0 L_nopoll2")
    poll_tables(o, "L_pb", 0, 48)
    if "xdelay" in OPT: o("s_sleep 40")
    if "pf3" in OPT:
        o("; the other three quarters of the first slice: one bucket's rows each")
        o(f"v_lshlrev_b32 v3, 7, v2")
        for t in range(1, 4):
            o(f"s_add_u32 s{S_A}, s{S_BUCKET}, {32*t}")
            o(f"s_and_b32 s{S_A}, s{S_A}, 127")
            o(f"s_mul_i32 s{S_A}, s{S_A}, {NPB*128}")
            for i in range(4):
                if i == 3: o("s_mov_b64 exec, 0xf")
                o(f"buffer_load_dword v{48+4*(t-1)+i}, v3, {sr(R_TAB,4)}, s{S_A} offen{SC}")
                if i < 3: o(f"s_add_u32 s{S_A}, s{S_A}, 8192")
            o("s_mov_b64 exec, -1")
    o("L_nopoll2:")
    o(f"s_cmp_ge_u32 s{S_WAVE}, 7")
    o(f"s_cselect_b32 s{S_NT}, 2, 1")
    o(f"s_mov_b32 s{S_PH}, 0")
    o(f"s_movk_i32 s{S_D}, 128")
    o("s_waitcnt lgkmcnt(0)")
    o(f"v_lshl_or_b32 v{vNQ}, v10, 16, v{vNQ}")
    o(f"v_lshl_or_b32 v{vNQ+1}, v11, 16, v{vNQ+1}")
    o("s_barrier")
    stamp(o, 11)
    o(f"s_movk_i32 s{S_A}, {AUS}")
    o(f"s_movk_i32 s{S_B}, 256")
    o(f"s_setprio {PR[0]}")
    vDK = 16; vRKk = 104
    assert vDK + 4*PD <= 64 and vRKk + 2*PD <= 124
    def gaddr(R): o(f"v_mad_u32_u16 v{R}, v{R}, s{S_D}, v{vLO} op_sel:[1,0,0,0]")
    o("M_prime:")
    for k in range(PD):
        o(f"ds_read_b64 {vr(vRKk+2*k,2)}, v{vLA} offset:{k*64}")
    for k in range(PD):
        o(f"s_waitcnt lgkmcnt({PD-1-k})")
        gaddr(vRKk+2*k)
        o(f"buffer_load_dwordx4 {vr(vDK+4*k,4)}, v{vRKk+2*k}, {sr(R_TAB,4)}, s{S_PH} offen{GSC}")
    def promote():
        o(f"v_mad_u32_u16 v3, v{vNQ}, s{S_A}, v{vAB}")
        o(f"v_mad_u32_u16 v{vOA}, v{vNQ}, s{S_B}, v{vOB}")
        o(f"ds_read2_b64 {vr(vAU,4)}, v3 offset0:0 offset1:1")
        o(f"ds_read_b64 {vr(vAU+4,2)}, v3 offset:16")
        o(f"v_lshrrev_b32 v{vNQ}, 16, v{vNQ}")
        for i in range(0, 8, 2): o(f"v_mov_b64 {vr(vDen+i,2)}, 0")
        o("s_waitcnt lgkmcnt(0)")
        o(f"v_lshlrev_b32 v{vEX}, 16, v{vAU}")
        o(f"v_lshlrev_b32 v{vEX+1}, 16, v{vAU+1}")
        o(f"v_and_b32 v{vAU}, 0xffff0000, v{vAU}")
        o(f"v_and_b32 v{vAU+1}, 0xffff0000, v{vAU+1}")
    promote()
    if "cut" not in OPT:
        o(f"s_sub_u32 s{S_CNT}, s{S_CNT}, 1")
    else:
        o(f"s_mov_b32 s{S_TASK}, s{S_CNT}")
        o(f"s_add_u32 s{S_CUT}, s{S_CNT}, s{S_L1}")
        o(f"s_cmp_gt_u32 s{S_CUT}, {PD}")
        o(f"s_cselect_b32 s{S_SO}, s{S_PH}, 0x7f000000")
        o(f"s_cselect_b32 s{S_CUT}, s{S_CUT}, 0x7f000000")
        o(f"s_sub_u32 s{S_CUT}, s{S_CUT}, {PD}")
        o(f"s_min_u32 s{S_STEP}, s{S_TASK}, s{S_CUT}")
        o(f"s_sub_u32 s{S_CNT}, s{S_STEP}, 1")
    o(f"s_cbranch_scc1 M_sw{PD-1}")
    o("M_loop:")
    for k in range(PD):
        D = vDK + 4*k; R = vRKk + 2*k
        o(f"M_it{k}:")
        o(f"s_waitcnt vmcnt({PD-1})")
        o(f"v_lshlrev_b64 {vr(vT,2)}, 16, {vr(D,2)}")
        o(f"v_pk_fma_f32 {vr(vT+2,2)}, {vr(R,2)}, {vr(vWX+2,2)}, {vr(D,2)} op_sel:[1,0,0] op_sel_hi:[1,1,1]")
        o(f"v_pk_fma_f32 {vr(vT,2)}, {vr(R,2)}, {vr(vWX,2)}, {vr(vT,2)} op_sel:[1,0,0] op_sel_hi:[1,1,1]")
        o(f"ds_read_b64 {vr(R,2)}, v{vLA} offset:{(k+PD)*64}")
        o(f"v_exp_f32 v{vT+2}, v{vT+2}")
        o(f"v_exp_f32 v{vT+3}, v{vT+3}")
        o(f"v_exp_f32 v{vT}, v{vT}")
        o(f"v_exp_f32 v{vT+1}, v{vT+1}")
        o(f"v_lshlrev_b64 {vr(vT+4,2)}, 16, {vr(D+2,2)}")
        o(f"v_pk_add_f32 {vr(vT+2,2)}, {vr(vT+2,2)}, {vr(vAU,2)}")
        o(f"v_pk_add_f32 {vr(vT,2)}, {vr(vT,2)}, {vr(vEX,2)}")
        if k == PD-1:
            o(f"v_add_u32 v{vLA}, {PD*64}, v{vLA}")
        o(f"v_rcp_f32 v{vT+2}, v{vT+2}")
        o(f"v_rcp_f32 v{vT+3}, v{vT+3}")
        o(f"v_rcp_f32 v{vT}, v{vT}")
        o(f"v_rcp_f32 v{vT+1}, v{vT+1}")
        o(f"v_pk_add_f32 {vr(vDen+2,2)}, {vr(vDen+2,2)}, {vr(vT+2,2)}")
        o(f"v_pk_fma_f32 {vr(vNum+2,2)}, {vr(vT+2,2)}, {vr(D+2,2)}, {vr(vNum+2,2)}")
        o(f"v_pk_add_f32 {vr(vDen,2)}, {vr(vDen,2)}, {vr(vT,2)}")
        o(f"v_pk_fma_f32 {vr(vNum,2)}, {vr(vT,2)}, {vr(vT+4,2)}, {vr(vNum,2)}")
        o("s_waitcnt lgkmcnt(0)")
        gaddr(R)
        o(f"s_sub_u32 s{S_CNT}, s{S_CNT}, 1")
        o(f"buffer_load_dwordx4 {vr(D,4)}, v{R}, {sr(R_TAB,4)}, s{S_PH if 'cut' not in OPT else S_SO} offen{GSC}")
        o(f"s_cbranch_scc1 M_sw{k}")
    o("s_branch M_loop")
    for k in range(PD):
        o(f"M_sw{k}:")
        if "cut" in OPT:
            o(f"s_sub_u32 s{S_TASK}, s{S_TASK}, s{S_STEP}")
            o(f"s_sub_u32 s{S_CUT}, s{S_CUT}, s{S_STEP}")
            o(f"s_cmp_eq_u32 s{S_CUT}, 0")
            o(f"s_cselect_b32 s{S_SO}, 0x7f000000, s{S_SO}")
            o(f"s_cselect_b32 s{S_CUT}, 0x7f000000, s{S_CUT}")
            o(f"s_cmp_lg_u32 s{S_TASK}, 0")
            o(f"s_cbranch_scc1 M_n{k}")
        finalize(o, vDen, vNum, vEX, vAU, vAU+2, vAU+4, vT, vOA)
        o(f"s_sub_u32 s{S_NT}, s{S_NT}, 1")
        o(f"s_cmp_eq_u32 s{S_NT}, 0")
        o(f"s_cbranch_scc1 M_phase")
        o(f"s_cmp_eq_u32 s{S_PH}, 0")
        o(f"s_cbranch_scc1 M_p{k}")
        o(f"s_setprio {PR[3]}")
        o(f"s_branch M_q{k}")
        o(f"M_p{k}:")
        o(f"s_setprio {PR[1]}")
        o(f"M_q{k}:")
        promote()
        if "cut" not in OPT:
            o(f"s_sub_u32 s{S_CNT}, s{S_L1}, 1")
        else:
            o(f"s_mov_b32 s{S_TASK}, s{S_L1}")
            o(f"M_n{k}:")
            o(f"s_min_u32 s{S_STEP}, s{S_TASK}, s{S_CUT}")
            o(f"s_sub_u32 s{S_CNT}, s{S_STEP}, 1")
        o(f"s_cbranch_scc1 M_sw{k}")
        o(f"s_branch M_it{(k+1)%PD}")
    o("M_phase:")
    o(f"s_cmp_eq_u32 s{S_PH}, 0")
    o(f"s_cbranch_scc0 L_end")
    o(f"s_setprio {PR[2]}")
    stamp(o, 13)
    poll_tables(o, "L_pd", 1, vT)
    if "pf4" in OPT:
        o(f"s_cmp_eq_u32 s{S_WAVE}, {PFW}")
        o(f"s_cbranch_scc0 L_nopf4")
        o(f"v_lshlrev_b32 v3, 7, v2")
        for t in range(0, 4):
            o(f"s_add_u32 s{S_C}, s{S_BUCKET}, {32*t}")
            o(f"s_and_b32 s{S_C}, s{S_C}, 127")
            o(f"s_mul_i32 s{S_C}, s{S_C}, {NPB*128}")
            o(f"s_add_u32 s{S_C}, s{S_C}, {TSTRIDE}")
            for i in range(4):
                if i == 3: o("s_mov_b64 exec, 0xf")
                o(f"buffer_load_dword v{48+4*t+i}, v3, {sr(R_TAB,4)}, s{S_C} offen{SC}")
                if i < 3: o(f"s_add_u32 s{S_C}, s{S_C}, 8192")
            o("s_mov_b64 exec, -1")
        o("L_nopf4:")
    o(f"s_mov_b32 s{S_PH}, {TSTRIDE}")
    o(f"v_mov_b64 {vr(vWX,2)}, {vr(vW2,2)}")
    o(f"v_mov_b64 {vr(vWX+2,2)}, {vr(vW2+2,2)}")
    o(f"v_add_u32 v{vAB}, {AUP}, v{vAB}")
    o(f"v_add_u32 v{vOB}, 64, v{vOB}")
    o(f"v_add_u32 v{vLA}, s{S_B1}, v5")
    o(f"v_mov_b32 v{vNQ}, v{vNQ+1}")
    o(f"s_mov_b32 s{S_CNT}, s{S_L2}")
    o(f"s_mov_b32 s{S_L1}, s{S_L3}")
    o(f"s_xor_b32 s{S_NT}, s{S_WAVE}, {MIR}")
    o(f"s_cmp_ge_u32 s{S_NT}, 7")
    o(f"s_cselect_b32 s{S_NT}, 2, 1")
    if "dry" in OPT:
        o(f"s_cmp_lg_u32 s{S_DRY}, 0")
        o(f"s_cbranch_scc1 L_dry_ret")
    o("s_branch M_prime")
    o("; generic path (any degree distribution, any gate range)")
    o("L_slow:")
    vG, vI, vA2, vR2_, vD2, vT2, vAcc = 16, 17, 18, 20, 24, 32, 19
    o(f"s_xor_b32 s{S_SL0}, s{S_SL0}, 2")
    poll_tables(o, "S_pc", 0, 24)
    o(f"s_xor_b32 s{S_SL0}, s{S_SL0}, 2")
    poll_tables(o, "S_pa", 0, 24)
    poll_tables(o, "S_pb", 1, 24)
    o(f"v_lshrrev_b32 v{vG}, 3, v0")
    o(f"s_mov_b32 s{S_PH}, 0")
    o(f"s_movk_i32 s{S_D}, {AUS}")
    o(f"s_movk_i32 s{S_CNT}, 128")
    o(f"s_mov_b32 s{S_B1}, 0")
    o("S_half:")
    o("s_barrier")
    for i in range(4): o(f"v_mov_b32 v{vD2+i}, 0")
    o(f"v_lshlrev_b32 v3, 4, v0")
    o(f"v_add_u32 v3, {ELL}, v3")
    for i in range(3): o(f"ds_write_b128 v3, {vr(vD2,4)} offset:{i*16384}")
    o(f"s_cmp_lt_u32 s{S_WAVE}, 2")
    o(f"s_cbranch_scc0 S_nofill")
    o(f"ds_write_b128 v3, {vr(vD2,4)} offset:{3*16384}")
    o("S_nofill:")
    o("s_waitcnt lgkmcnt(0)")
    o("s_barrier")
    o(f"s_mov_b32 s{S_PP}, 0")
    o("S_piece:")
    o(f"v_add_u32 v3, s{S_PP}, v{vG}")
    o(f"v_lshlrev_b32 v5, 2, v3")
    o(f"ds_read_b32 v4, v5 offset:{OFFL}")
    o(f"s_movk_i32 s{S_A}, {SEG}")
    o(f"v_mul_u32_u24 v{vA2}, s{S_A}, v3")
    o(f"v_mov_b32 v{vI}, 0")
    o("s_waitcnt lgkmcnt(0)")
    o(f"v_and_b32 v5, 0x7ff, v4")
    o(f"v_lshrrev_b32 v4, 11, v4")
    o(f"v_lshl_add_u32 v{vA2}, v5, 3, v{vA2}")
    o(f"s_mov_b32 s{S_A}, {REC_OFF}")
    o("S_rec:")
    o(f"v_cmpx_gt_u32 vcc, v4, v{vI}")
    o(f"s_cbranch_execz S_rec_done")
    o(f"buffer_load_dwordx2 {vr(vR2_,2)}, v{vA2}, {sr(R_WS,4)}, s{S_A} offen{SC}")
    o("s_waitcnt vmcnt(0)")
    o(f"v_bfe_u32 v5, v{vR2_}, 2, 8")
    o(f"v_and_b32 v{vR2_+1}, 0xffff0000, v{vR2_+1}")
    o(f"v_mad_u32_u16 v{vR2_}, v{vR2_}, s{S_CNT}, v{vLO} op_sel:[1,0,0,0]")
    o(f"v_mad_u32_u24 v3, v5, s{S_D}, v{vAB}")
    o(f"v_lshlrev_b32 v{vAcc}, 8, v5")
    o(f"v_lshl_add_u32 v{vAcc}, v1, 5, v{vAcc}")
    o(f"v_add_u32 v{vAcc}, {ELL}, v{vAcc}")
    o(f"buffer_load_dwordx4 {vr(vD2,4)}, v{vR2_}, {sr(R_TAB,4)}, s{S_B1} offen{SC}")
    o(f"ds_read_b64 {vr(vAU,2)}, v3")
    o("s_waitcnt vmcnt(0) lgkmcnt(0)")
    T = vT2
    o(f"v_lshlrev_b64 {vr(T,2)}, 16, {vr(vD2,2)}")
    o(f"v_lshlrev_b64 {vr(T+4,2)}, 16, {vr(vD2+2,2)}")
    o(f"v_lshlrev_b32 v{T+6}, 16, v{vAU}")
    o(f"v_lshlrev_b32 v{T+7}, 16, v{vAU+1}")
    o(f"v_and_b32 v{vAU}, 0xffff0000, v{vAU}")
    o(f"v_and_b32 v{vAU+1}, 0xffff0000, v{vAU+1}")
    o(f"v_lshrrev_b32 v5, 5, v5")
    o(f"v_lshl_add_u32 v5, v5, 1, s{S_PH}")
    o(f"v_lshrrev_b32 v5, v5, s{S_MODE}")
    o(f"v_and_b32 v5, 1, v5")
    o(f"v_cmp_eq_u32 vcc, 0, v5")
    for r in (T+6, T+7, vAU, vAU+1):
        o(f"v_log_f32 v3, v{r}")
        o("s_nop 0")
        o(f"v_cndmask_b32 v{r}, v{r}, -v3, vcc")
    o(f"v_pk_add_f32 {vr(T,2)}, {vr(T,2)}, {vr(T+6,2)}")
    o(f"v_pk_add_f32 {vr(T+2,2)}, {vr(vD2,2)}, {vr(vAU,2)}")
    o(f"v_pk_fma_f32 {vr(T,2)}, {vr(vR2_,2)}, {vr(vWX,2)}, {vr(T,2)} op_sel:[1,0,0] op_sel_hi:[1,1,1]")
    o(f"v_pk_fma_f32 {vr(T+2,2)}, {vr(vR2_,2)}, {vr(vWX+2,2)}, {vr(T+2,2)} op_sel:[1,0,0] op_sel_hi:[1,1,1]")
    for i in range(4): o(f"v_exp_f32 v{T+i}, v{T+i}")
    o("s_nop 0")
    o(f"v_pk_add_f32 {vr(T,2)}, {vr(T,2)}, 1.0 op_sel_hi:[1,0]")
    o(f"v_pk_add_f32 {vr(T+2,2)}, {vr(T+2,2)}, 1.0 op_sel_hi:[1,0]")
    for i in range(4): o(f"v_rcp_f32 v{T+i}, v{T+i}")
    o("s_nop 0")
    o(f"v_pk_mul_f32 {vr(T+4,2)}, {vr(T+4,2)}, {vr(T,2)}")
    o(f"v_pk_mul_f32 {vr(T+6,2)}, {vr(vD2+2,2)}, {vr(T+2,2)}")
    for i in range(8): o(f"ds_add_f32 v{vAcc}, v{T+i} offset:{4*i}")
    o("s_mov_b64 exec, -1")
    o(f"v_add_u32 v{vI}, 1, v{vI}")
    o(f"v_add_u32 v{vA2}, 8, v{vA2}")
    o("s_branch S_rec")
    o("S_rec_done:")
    o("s_mov_b64 exec, -1")
    o(f"s_add_u32 s{S_PP}, s{S_PP}, 128")
    o(f"s_cmp_lt_u32 s{S_PP}, 256")
    o("s_cbranch_scc1 S_piece")
    o("s_waitcnt lgkmcnt(0)")
    o("s_barrier")
    o(f"s_mov_b32 s{S_PP}, 0")
    o(f"s_movk_i32 s{S_C}, {NPB}")
    o("S_fin:")
    o(f"v_add_u32 v5, s{S_PP}, v{vG}")
    o(f"v_mad_u32_u24 v3, v5, s{S_D}, v{vAB}")
    o(f"v_lshlrev_b32 v{vAcc}, 8, v5")
    o(f"v_lshl_add_u32 v{vAcc}, v1, 5, v{vAcc}")
    o(f"v_add_u32 v{vAcc}, {ELL}, v{vAcc}")
    o(f"v_lshl_add_u32 v{vOA}, v5, 8, v{vOB}")
    o(f"v_cmpx_gt_u32 vcc, s{S_C}, v5")
    o(f"s_cbranch_execz S_fin_next")
    o(f"ds_read2_b64 {vr(vAU+2,4)}, v3 offset0:1 offset1:2")
    o(f"ds_read_b128 {vr(24,4)}, v{vAcc}")
    o(f"ds_read_b128 {vr(28,4)}, v{vAcc} offset:16")
    o("s_waitcnt lgkmcnt(0)")
    finalize(o, 24, 28, None, None, vAU+2, vAU+4, vT, vOA)
    o("S_fin_next:")
    o("s_mov_b64 exec, -1")
    o(f"s_add_u32 s{S_PP}, s{S_PP}, 128")
    o(f"s_cmp_lt_u32 s{S_PP}, 256")
    o("s_cbranch_scc1 S_fin")
    o(f"v_mov_b64 {vr(vWX,2)}, {vr(vW2,2)}")
    o(f"v_mov_b64 {vr(vWX+2,2)}, {vr(vW2+2,2)}")
    o(f"v_add_u32 v{vAB}, {AUP}, v{vAB}")
    o(f"v_add_u32 v{vOB}, 64, v{vOB}")
    o(f"s_mov_b32 s{S_B1}, {TSTRIDE}")
    o(f"s_add_u32 s{S_PH}, s{S_PH}, 1")
    o(f"s_cmp_lt_u32 s{S_PH}, 2")
    o("s_cbranch_scc1 S_half")
    o("L_end:")
    stamp(o, 12)
    stamp_flush(o, 14)
    o("L_exit:")
    o("s_endpgm")

def main():
    global XNT, ENT, SC, TLBS, PFW, PESL, WSO, PR, TSL, STAMP, PD, OUTF, GSC, MIR, SL0, SL1, PSC, ESC, RSC
    for a in sys.argv[2:]:
        if a.startswith("stamp="): STAMP = int(a[6:])
        elif a.startswith("pd="): PD = int(a[3:])
        elif a.startswith("outf="): OUTF = (" " + a[5:].replace("+", " ")).rstrip()
        elif a.startswith("gsc="): GSC = (" " + a[4:].replace("+", " ")).rstrip()
        elif a.startswith("mir="): MIR = int(a[4:])
        elif a.startswith("sl="): SL0, SL1 = map(int, a[3:].split(","))
        elif a == "psys": PSC = " sc0 sc1"
        elif a == "esys": ESC = " sc0 sc1"
        elif a == "rsys": RSC = " sc0 sc1"
        elif a.startswith("tsl="): TSL = int(a[4:])
        elif a.startswith("pr="): PR = tuple(int(c) for c in a[3:])
        elif a.startswith("wso="): WSO = int(a[4:]) << 20
        elif a.startswith("pesl="): PESL = int(a[5:])
        elif a.startswith("pfw="): PFW = int(a[4:])
        elif a.startswith("tlbs="): TLBS = int(a[5:])
        elif a == "xnt": XNT = " nt"
        elif a == "ent": ENT = " nt"
        elif a == "rnt": RSC = " sc1 nt"
        elif a == "snt": SC = " sc1 nt"
        else: OPT.add(a)
    ref = open(f"cdna_kernels/{NAME}.s.ref").read().split("\n")
    head = [l for l in ref if l.startswith(";") and "@launch" not in l]
    out = "\n".join(head) + "\n"
    out += f"; @launch grid=(256,1,1) block=(1024,1,1) lds={LDS_SIZE}\n"
    out += DOC
    out += f'.amdgcn_target "amdgcn-amd-amdhsa--gfx950"\n.text\n.globl {NAME}_kernel\n.p2align 8\n.type {NAME}_kernel,@function\n{NAME}_kernel:\n'
    o = Asm(); kernel(o); out += o.text()
    out += f""".section .rodata,"a"
.p2align 6
.amdhsa_kernel {NAME}_kernel
  .amdhsa_next_free_vgpr 128
  .amdhsa_next_free_sgpr {102 if STAMP is not None else 90}
  .amdhsa_accum_offset 128
  .amdhsa_group_segment_fixed_size 0
  .amdhsa_kernarg_size 96
  .amdhsa_user_sgpr_count 2
  .amdhsa_user_sgpr_kernarg_segment_ptr 1
  .amdhsa_system_sgpr_workgroup_id_x 1
.end_amdhsa_kernel
"""
    path = sys.argv[1] if len(sys.argv) > 1 else f"cdna_kernels/{NAME}.s"
    open(path, "w").write(out)
    print("wrote", path, "LDS", LDS_SIZE, "ELL_ITERS", ELL_ITERS)
main()
```

```python
import sys

NAME = "standalone__edge_featured_mpnn_gatedgcn__graph"
N = 25000; E = 400000
NPB = 196; CH = 1564
TROWS = 25096; TSTRIDE = TROWS*128
DUMMY_ROW = 25088
SEG = 12544
REC_OFF = 4*TSTRIDE
OFF_OFF = REC_OFF + 256*SEG
TF_OFF = OFF_OFF + 128*2048
WS_USED = TF_OFF + 4096
LOG2E_NEG = 0xBFB8AA3B; TINY = 0x03800000; EPS = 0x358637BD
SC = " sc1"
PSC = " sc1"; ESC = " sc1"; RSC = " sc1"
OUTF = " sc1"
GSC = " sc1"
PD = 4
TLBS = 20
DRYW = 8
PFW = 8
VE = 72
PESL = 0
WSO = 0
PR = (3, 2, 1, 0)
TSL = 2
TEAM0 = 9
MIR = 13
SL0 = 0; SL1 = 1
NL = 5
NR = 2*NL
HISTA = 0; BASE = 512; DEG = 1024; HIST2 = 2048; FLAG = 2304; SLOT = 2432; TBL = SLOT + 1024; SNODE = TBL + 256; OFFL = SNODE + 1024 + 128
XT = OFFL + 1024; XTS = 8320
WOFF = XT + 7*XTS
RECS = WOFF + 65536
LDS_END = RECS + SEG
AUX = XT; AUS = 200; AUP = 200*AUS
ELL = AUX + 2*AUP
ELL_ITERS = 512
LDS_SIZE = LDS_END + 2048
assert ELL % 16 == 0 and XT % 128 == 0
F_STRUCT, F_RANGE, F_SOFT, F_OFFL, F_W, F_GO, F_TAG, F_TC, F_GD, F_WI = FLAG, FLAG+4, FLAG+8, FLAG+12, FLAG+16, FLAG+20, FLAG+24, FLAG+32, FLAG+64, FLAG+68

STAMP = None; OPT = set(); PFN = 181
def st_reg(i): return 90 + 2*i if i < 6 else 36 + 2*(i-6) if i < 12 else 24 + 2*(i-12)
def gstamp(o, i):
    if "gd" in OPT: stamp(o, i, True)
def stamp(o, i, force=False):
    if STAMP is None: return
    if "gd" in OPT and not force and 5 <= i <= 10: return
    if "clk" in OPT:
        if i in (1, 2): return
        if i == 11: o(f"s_memtime s[{st_reg(1)}:{st_reg(1)+1}]")
        if i == 12: o(f"s_memtime s[{st_reg(2)}:{st_reg(2)+1}]")
    o(f"s_memrealtime s[{st_reg(i)}:{st_reg(i)+1}]")
    o("s_waitcnt lgkmcnt(0)")
def stamp_flush(o, n):
    if STAMP is None: return
    o(f"s_cmp_eq_u32 s{S_WAVE}, {STAMP}")
    o(f"s_cbranch_scc0 L_stf")
    o(f"s_mov_b64 exec, 1")
    o(f"s_mov_b32 s{R_WS+2}, {64<<20}")
    o(f"s_lshl_b32 s{S_A}, s{S_WG}, 7")
    o(f"s_add_u32 s{S_A}, s{S_A}, {32<<20}")
    o(f"v_mov_b32 v0, 0")
    for i in range(n):
        o(f"v_mov_b32 v2, s{st_reg(i)}")
        o(f"v_mov_b32 v3, s{st_reg(i)+1}")
        o(f"buffer_store_dwordx2 v[2:3], v0, {sr(R_WS,4)}, s{S_A} offen offset:{8*i}")
    o(f"s_getreg_b32 s{S_B}, hwreg(HW_REG_XCC_ID)")
    o(f"s_getreg_b32 s{S_C}, hwreg(HW_REG_HW_ID)")
    o(f"v_mov_b32 v2, s{S_B}")
    o(f"v_mov_b32 v3, s{S_C}")
    o(f"buffer_store_dwordx2 v[2:3], v0, {sr(R_WS,4)}, s{S_A} offen offset:{8*14}")
    o(f"L_stf:")

class Asm:
    def __init__(self): self.lines = []
    def __call__(self, s):
        for l in s.split("\n"):
            l = l.strip()
            if l: self.lines.append(("" if l.endswith(":") else "    ") + l)
    def text(self): return "\n".join(self.lines) + "\n"

def vr(a, n): return f"v[{a}:{a+n-1}]"
def sr(a, n): return f"s[{a}:{a+n-1}]"

def srd(o, d, base, nbytes):
    o(f"s_mov_b32 s{d}, s{base}")
    o(f"s_and_b32 s{d+1}, s{base+1}, 0xffff")
    o(f"s_mov_b32 s{d+2}, {nbytes}")
    o(f"s_mov_b32 s{d+3}, 0x20000")

def scan64(o, v):
    for sh in (1, 2, 4, 8):
        o("s_nop 1")
        o(f"v_add_u32_dpp v{v}, v{v}, v{v} row_shr:{sh} row_mask:0xf bank_mask:0xf bound_ctrl:0")
    o("s_nop 1")
    o(f"v_add_u32_dpp v{v}, v{v}, v{v} row_bcast:15 row_mask:0xa bank_mask:0xf")
    o("s_nop 1")
    o(f"v_add_u32_dpp v{v}, v{v}, v{v} row_bcast:31 row_mask:0xc bank_mask:0xf")

def gemm_pair(o, vW, vX, aP, aQ, vWaddr, base_off, extra=None):
    def rd(t):
        for m in range(2):
            b = vW + (t & 1)*8 + m*4
            off = base_off + m*16384 + (t & 1)*2048
            o(f"ds_read_b64_tr_b16 {vr(b,2)}, v{vWaddr + (t >> 1)} offset:{off}")
            o(f"ds_read_b64_tr_b16 {vr(b+2,2)}, v{vWaddr + (t >> 1)} offset:{off + 512}")
    rd(0); rd(1)
    for t in range(8):
        o(f"s_waitcnt lgkmcnt({4 if t < 7 else 0})")
        for m, acc in enumerate((aP, aQ)):
            b = vW + (t & 1)*8 + m*4
            c = "0" if t == 0 else vr(acc, 16)
            o(f"v_mfma_f32_32x32x16_bf16 {vr(acc,16)}, {vr(b,4)}, {vr(vX+4*t,4)}, {c}")
        if t + 2 < 8: rd(t+2)
        if extra: extra(t)
    o("s_nop 15")

def encode4(o, a, d):
    for i in range(4):
        o(f"v_add_u32 v{a+i}, s{S_HALF}, v{a+i}")
    for i in range(1, 4):
        o(f"v_sub_u32_sdwa v{a+i}, v{a+i}, v{a+i-1} dst_sel:DWORD dst_unused:UNUSED_PAD src0_sel:DWORD src1_sel:WORD_1")
    o(f"v_perm_b32 v{d}, v{a+1}, v{a}, s{S_PERM}")
    o(f"v_perm_b32 v{d+1}, v{a+3}, v{a+2}, s{S_PERM}")

S_WG = 2; S_NK = 3
S_X, S_E, S_SRC, S_DST, S_WA, S_WB, S_WC, S_WU, S_WV, S_OUT, S_DBG, S_WS = 4, 6, 8, 10, 12, 14, 16, 18, 20, 22, 24, 26
S_MSK = 4
R_WS = 28; R_W = 32; R_T0 = 36; R_T1 = 40; R_T2 = 44; R_X = 48; R_TAB = 52; R_OUT = 56; R_DBG = 60
S_WAVE = 64; S_HALF = 65; S_PERM = 66; S_SL0 = 67
S_CT = 68; S_EX = 70; S_EPS = 72
S_A = 74; S_B = 75; S_C = 76; S_D = 77
S_BUCKET = 78; S_NODE0 = 79
S_CNT = 80; S_L1 = 81; S_L2 = 82; S_L3 = 83; S_NT = 84; S_MODE = 85; S_NH = 86; S_SPIN = 87; S_PH = 88; S_B1 = 89
S_T0 = S_CNT; S_T1 = S_NT; S_T2 = S_MODE; S_T3 = S_PH; S_RL = S_EX
S_SL = S_L1; S_TILE = S_L2; S_FB = S_L3
S_PP = S_L2
S_DRY = 1
S_SO = 4; S_TASK = 5; S_CUT = 6; S_STEP = 7
vZ = 13

def spin_bound(o, lds=False): o(f"s_mov_b32 s{S_SPIN}, {0x400000 if lds else 0x10000}")
def spin_tail(o, lab, sleep):
    if sleep: o(f"s_sleep {sleep}")
    o(f"s_sub_u32 s{S_SPIN}, s{S_SPIN}, 1")
    o(f"s_cbranch_scc0 {lab}")

def lds_wait(o, lab, vA, off, target, vT, sleep=1):
    sleep = SL1 if sleep else SL0
    spin_bound(o, True)
    o(f"{lab}:")
    o(f"ds_read_b32 v{vT}, v{vA} offset:{off}")
    o("s_waitcnt lgkmcnt(0)")
    o(f"v_readfirstlane_b32 s{S_A}, v{vT}")
    o(f"s_cmp_ge_u32 s{S_A}, {target}")
    o(f"s_cbranch_scc1 {lab}_ok")
    spin_tail(o, lab, sleep)
    o(f"{lab}_ok:")

def lds_inc(o, vA, off):
    o("s_mov_b64 exec, 1")
    o(f"ds_add_u32 v{vA}, v15 offset:{off}")
    o("s_mov_b64 exec, -1")

def soft_barrier(o, lab, target, vT):
    o("s_waitcnt lgkmcnt(0)")
    lds_inc(o, vZ, F_SOFT)
    lds_wait(o, lab, vZ, F_SOFT, target, vT, 0)

def get_tag(o, lab):
    spin_bound(o)
    o(f"{lab}:")
    o(f"buffer_load_dwordx2 v[6:7], v{vZ}, {sr(R_DBG,4)}, 0 offen{PSC}")
    o("s_waitcnt vmcnt(0)")
    o(f"v_readfirstlane_b32 s{S_NK}, v6")
    o(f"v_readfirstlane_b32 s{S_NH}, v7")
    o(f"s_cmp_lg_u32 s{S_NH}, 0")
    o(f"s_cbranch_scc1 {lab}_ok")
    spin_tail(o, lab, 4)
    o(f"{lab}_ok:")

def poll_tables(o, lab, ph, v):
    o(f"v_lshlrev_b32 v3, 4, v2")
    o(f"s_lshl_b32 s{S_C}, s{S_SL0}, 10")
    o(f"s_add_u32 s{S_C}, s{S_C}, {TF_OFF + 1024*ph}")
    spin_bound(o)
    o(f"{lab}:")
    o(f"buffer_load_dwordx4 {vr(v,4)}, v3, {sr(R_WS,4)}, s{S_C} offen{PSC}")
    o("s_waitcnt vmcnt(0)")
    o(f"v_xor_b32 v{v}, s{S_NK}, v{v}")
    o(f"v_xor_b32 v{v+1}, s{S_NH}, v{v+1}")
    o(f"v_xor_b32 v{v+2}, s{S_NK}, v{v+2}")
    o(f"v_xor_b32 v{v+3}, s{S_NH}, v{v+3}")
    o(f"v_or3_b32 v{v}, v{v}, v{v+1}, v{v+2}")
    o(f"v_or_b32 v{v}, v{v}, v{v+3}")
    o(f"v_cmp_ne_u32 vcc, 0, v{v}")
    o(f"s_cbranch_vccz {lab}_ok")
    spin_tail(o, lab, TSL)
    o(f"{lab}_ok:")

def publish_tf(o, ph):
    o(f"s_lshl_b32 s{S_B}, s{S_SL0}, 7")
    o(f"s_add_u32 s{S_B}, s{S_B}, s{S_BUCKET}")
    o(f"s_lshl_b32 s{S_B}, s{S_B}, 3")
    o(f"s_add_u32 s{S_B}, s{S_B}, {TF_OFF + 1024*ph}")
    o(f"v_mov_b32 v6, s{S_NK}")
    o(f"v_mov_b32 v7, s{S_NH}")
    o("s_mov_b64 exec, 1")
    o(f"buffer_store_dwordx2 v[6:7], v{vZ}, {sr(R_WS,4)}, s{S_B} offen sc1")
    o("s_mov_b64 exec, -1")

def finalize(o, vDen, vNum, vIX, vIY, vU, vXr, vT, vOA):
    if vIX is not None:
        o(f"v_pk_fma_f32 {vr(vDen,2)}, {vr(vDen,2)}, {vr(vIX,2)}, {sr(S_EPS,2)}")
        o(f"v_pk_fma_f32 {vr(vDen+2,2)}, {vr(vDen+2,2)}, {vr(vIY,2)}, {sr(S_EPS,2)}")
        o(f"v_pk_mul_f32 {vr(vNum,2)}, {vr(vNum,2)}, {vr(vIX,2)}")
        o(f"v_pk_mul_f32 {vr(vNum+2,2)}, {vr(vNum+2,2)}, {vr(vIY,2)}")
    else:
        o(f"v_pk_add_f32 {vr(vDen,2)}, {vr(vDen,2)}, {sr(S_EPS,2)}")
        o(f"v_pk_add_f32 {vr(vDen+2,2)}, {vr(vDen+2,2)}, {sr(S_EPS,2)}")
    o(f"v_lshlrev_b32 v{vT}, 16, v{vU}")
    o(f"v_lshlrev_b32 v{vT+1}, 16, v{vU+1}")
    o(f"v_and_b32 v{vT+2}, 0xffff0000, v{vU}")
    o(f"v_and_b32 v{vT+3}, 0xffff0000, v{vU+1}")
    for i in range(4): o(f"v_rcp_f32 v{vDen+i}, v{vDen+i}")
    o(f"v_lshlrev_b32 v{vT+4}, 16, v{vXr}")
    o(f"v_lshlrev_b32 v{vT+5}, 16, v{vXr+1}")
    o(f"v_pk_fma_f32 {vr(vT,2)}, {vr(vNum,2)}, {vr(vDen,2)}, {vr(vT,2)}")
    o(f"v_pk_fma_f32 {vr(vT+2,2)}, {vr(vNum+2,2)}, {vr(vDen+2,2)}, {vr(vT+2,2)}")
    o(f"v_and_b32 v{vT+6}, 0xffff0000, v{vXr}")
    o(f"v_and_b32 v{vT+7}, 0xffff0000, v{vXr+1}")
    for i in range(4): o(f"v_max_f32 v{vT+i}, 0, v{vT+i}")
    o(f"v_pk_add_f32 {vr(vT,2)}, {vr(vT,2)}, {vr(vT+4,2)}")
    o(f"v_pk_add_f32 {vr(vT+2,2)}, {vr(vT+2,2)}, {vr(vT+6,2)}")
    o(f"v_cvt_pk_bf16_f32 v{vT+4}, v{vT}, v{vT+2}")
    o(f"v_cvt_pk_bf16_f32 v{vT+5}, v{vT+1}, v{vT+3}")
    o(f"buffer_store_dwordx2 {vr(vT+4,2)}, v{vOA}, {sr(R_OUT,4)}, 0 offen{OUTF}")

def tag_parts(o):
    o(f"s_lshr_b32 s{S_T0}, s{S_NK}, 12")
    o(f"s_lshr_b32 s{S_T1}, s{S_NK}, 18")
    o(f"s_lshr_b32 s{S_T2}, s{S_NH}, 16")

def xsrc(o, d=12, t=3, u=4):
    o(f"v_lshrrev_b32 v{d}, 4, v2")
    o(f"v_lshlrev_b32 v{t}, 2, v{d}")
    o(f"v_and_b32 v{u}, 15, v2")
    o(f"v_xor_b32 v{t}, v{t}, v{u}")
    o(f"v_lshlrev_b32 v{t}, 4, v{t}")
    o(f"v_lshl_add_u32 v{d}, v{d}, 8, v{t}")

def kernel(o):
    vX = 16; vW = 48; aP = 64; aQ = 80; vD = 96; vREC = 104
    vWA = 120
    vWC = 124
    vSTG = 8
    NTM = 16 - TEAM0
    o(f"s_cmp_ge_u32 s{S_WG}, 256")
    o(f"s_cbranch_scc1 L_exit")
    stamp(o, 0)
    o(f"s_load_dwordx16 s[4:19], s[0:1], 0")
    o(f"s_load_dwordx8 s[20:27], s[0:1], 64")
    o(f"s_getpc_b64 {sr(S_EX,2)}")
    o(f"v_lshlrev_b32 v3, 6, v0")
    o(f"s_movk_i32 s{S_A}, {1 if 'nocpf' in OPT else PFN}")
    o(f"v_cmpx_gt_u32 vcc, s{S_A}, v0")
    o(f"global_load_dword v119, v3, {sr(S_EX,2)}")
    o("s_mov_b64 exec, -1")
    o(f"v_lshrrev_b32 v1, 6, v0")
    o(f"v_and_b32 v2, 63, v0")
    o(f"v_readfirstlane_b32 s{S_WAVE}, v1")
    o(f"v_lshlrev_b32 v9, 2, v0")
    o(f"v_mov_b32 v{vZ}, 0")
    o(f"s_movk_i32 s{S_A}, {SLOT//4}")
    o(f"v_cmpx_gt_u32 vcc, s{S_A}, v0")
    o(f"ds_write_b32 v9, v{vZ}")
    o("s_mov_b64 exec, -1")
    o(f"s_cmp_lt_u32 s{S_WAVE}, {TEAM0}")
    o(f"s_cbranch_scc1 L_noprio")
    o("s_setprio 3")
    o("L_noprio:")
    o(f"s_mov_b32 s{S_HALF}, 0x8000")
    o(f"s_mov_b32 s{S_PERM}, 0x07060302")
    o(f"s_mov_b32 s{S_CT}, {LOG2E_NEG:#x}")
    o(f"s_mov_b32 s{S_CT+1}, {TINY:#x}")
    o(f"s_mov_b32 s{S_EPS}, {EPS:#x}")
    o(f"s_mov_b32 s{S_EPS+1}, {EPS:#x}")
    o(f"s_bfe_u32 s{S_SL0}, s{S_WG}, 0x10002")
    o(f"s_lshl_b32 s{S_SL0}, s{S_SL0}, 1")
    o(f"s_lshr_b32 s{S_BUCKET}, s{S_WG}, 3")
    o(f"s_and_b32 s{S_A}, s{S_WG}, 3")
    o(f"s_lshl_b32 s{S_A}, s{S_A}, 5")
    o(f"s_add_u32 s{S_BUCKET}, s{S_BUCKET}, s{S_A}")
    o(f"s_mul_i32 s{S_NODE0}, s{S_BUCKET}, {NPB}")
    o(f"v_mov_b32 v15, 1")
    o(f"v_and_b32 v1, 7, v2")
    o(f"v_lshlrev_b32 v14, 3, v1")
    o(f"v_subrev_u32 v4, {TEAM0*64}, v0")
    o(f"v_lshlrev_b32 v3, 4, v4")
    o(f"v_lshlrev_b32 v5, 3, v4")
    o(f"s_mul_i32 s{S_C}, s{S_WG}, {CH*4}")
    o(f"s_mul_i32 s{S_B}, s{S_WG}, {CH*2}")
    o(f"v_lshrrev_b32 v12, 3, v2")
    o(f"v_lshrrev_b32 v6, 2, v2")
    o(f"v_and_b32 v6, 4, v6")
    o(f"v_xor_b32 v6, v6, v1")
    o(f"v_lshlrev_b32 v6, 4, v6")
    o(f"v_lshl_add_u32 v12, v12, 8, v6")
    o("s_waitcnt lgkmcnt(0)")
    if WSO:
        o(f"s_add_u32 s{S_WS}, s{S_WS}, {WSO}")
        o(f"s_addc_u32 s{S_WS+1}, s{S_WS+1}, 0")
    srd(o, R_DBG, S_DBG, 256)
    o(f"s_cmp_eq_u32 s{S_WAVE}, 8")
    o(f"s_cbranch_scc0 L_notag")
    o(f"s_cmp_eq_u32 s{S_WG}, 0")
    o(f"s_cbranch_scc0 L_notag")
    o(f"s_memrealtime {sr(S_EX,2)}")
    o("s_waitcnt lgkmcnt(0)")
    o(f"s_lshl_b32 s{S_A}, s{S_EX}, 22")
    o(f"s_lshr_b64 {sr(S_EX,2)}, {sr(S_EX,2)}, 10")
    o(f"s_or_b32 s{S_D}, s{S_EX}, 0x80000000")
    o(f"v_mov_b32 v6, s{S_A}")
    o(f"v_mov_b32 v7, s{S_D}")
    o("s_mov_b64 exec, 1")
    o(f"buffer_store_dwordx2 v[6:7], v{vZ}, {sr(R_DBG,4)}, 0 offen sc1")
    o("s_mov_b64 exec, -1")
    o("L_notag:")
    srd(o, R_T0, S_DST, E*4)
    srd(o, R_T1, S_SRC, E*4)
    srd(o, R_T2, S_E, E*2)
    vDST, vSRC, vE, vB, vR, vRec = 16, 20, 24, 28, 32, 36
    o(f"s_cmp_lt_u32 s{S_WAVE}, {TEAM0}")
    o(f"s_cbranch_scc1 L_noedge")
    o(f"buffer_load_dwordx4 {vr(vDST,4)}, v3, {sr(R_T0,4)}, s{S_C} offen")
    o(f"buffer_load_dwordx4 {vr(vSRC,4)}, v3, {sr(R_T1,4)}, s{S_C} offen")
    o(f"buffer_load_dwordx2 {vr(vE,2)}, v5, {sr(R_T2,4)}, s{S_B} offen")
    o("L_noedge:")
    if "b0late" not in OPT: o("s_barrier")
    o(f"s_cmp_lt_u32 s{S_WAVE}, 8")
    o(f"s_cbranch_scc0 L_now")
    o(f"s_bitcmp1_b32 s{S_WAVE}, 2")
    o(f"s_cselect_b32 s{S_A}, s{S_WA}, s{S_WB}")
    o(f"s_cselect_b32 s{S_B}, s{S_WA+1}, s{S_WB+1}")
    o(f"s_cselect_b32 s{S_C}, s{S_WU}, s{S_WV}")
    o(f"s_cselect_b32 s{S_D}, s{S_WU+1}, s{S_WV+1}")
    o(f"s_bitcmp1_b32 s{S_WAVE}, 1")
    o(f"s_cselect_b32 s{R_W}, s{S_C}, s{S_A}")
    o(f"s_cselect_b32 s{R_W+1}, s{S_D}, s{S_B}")
    o(f"s_and_b32 s{R_W+1}, s{R_W+1}, 0xffff")
    o(f"s_mov_b32 s{R_W+2}, 32768")
    o(f"s_mov_b32 s{R_W+3}, 0x20000")
    o(f"s_and_b32 s{S_A}, s{S_WAVE}, 1")
    o(f"s_lshl_b32 s{S_A}, s{S_A}, 14")
    o(f"s_lshl_b32 s{S_B}, s{S_SL0}, 6")
    o(f"s_add_u32 s{S_A}, s{S_A}, s{S_B}")
    o(f"s_lshl_b32 s{S_C}, s{S_WAVE}, 13")
    for i in range(8):
        o(f"s_add_u32 m0, s{S_C}, {WOFF + 1024*i}")
        o(f"s_add_u32 s{S_D}, s{S_A}, {2048*i}")
        o(f"buffer_load_dwordx4 v12, {sr(R_W,4)}, s{S_D} offen lds")
    if "b0late" not in OPT: lds_inc(o, vZ, F_WI)
    o("L_now:")
    if "b0late" in OPT: o("s_barrier")
    srd(o, R_W, S_WC, 256)
    o(f"s_lshl_b32 s{S_B}, s{S_SL0}, 6")
    o(f"buffer_load_dwordx2 {vr(vWC,2)}, v14, {sr(R_W,4)}, s{S_B} offen")
    o(f"buffer_load_dwordx2 {vr(vWC+2,2)}, v14, {sr(R_W,4)}, s{S_B} offen offset:64")
    srd(o, R_X, S_X, N*256)
    srd(o, R_WS, S_WS, WS_USED)
    srd(o, R_OUT, S_OUT, N*256)
    o(f"s_mul_i32 s{S_A}, s{S_SL0}, {TSTRIDE}")
    o(f"s_add_u32 s{R_TAB}, s{S_WS}, s{S_A}")
    o(f"s_addc_u32 s{R_TAB+1}, s{S_WS+1}, 0")
    o(f"s_and_b32 s{R_TAB+1}, s{R_TAB+1}, 0xffff")
    o(f"s_mov_b32 s{R_TAB+2}, {2*TSTRIDE}")
    o(f"s_mov_b32 s{R_TAB+3}, 0x20000")
    if "dry" in OPT: o(f"s_mov_b32 s{S_DRY}, 0")
    if "tlb" in OPT:
        o(f"s_cmp_eq_u32 s{S_WAVE}, 8")
        o(f"s_cbranch_scc0 L_notlb")
        o(f"v_lshlrev_b32 v3, {TLBS}, v2")
        o(f"buffer_load_dword v118, v3, {sr(R_WS,4)}, 0 offen sc1")
        o(f"s_lshl_b32 s{S_A}, s{S_NODE0}, 8")
        o(f"buffer_load_dword v117, v{vZ}, {sr(R_OUT,4)}, s{S_A} offen sc1")
        o("L_notlb:")
    if "dry" in OPT:
        o(f"s_cmp_eq_u32 s{S_WAVE}, {DRYW}")
        o(f"s_cbranch_scc0 L_dry_ret")
        for r in (3, 73, 75, 104, 106, 108, 110): o(f"v_mov_b32 v{r}, 0")
        o(f"s_mov_b32 s{S_DRY}, 1")
        o(f"s_mov_b32 s{S_PH}, 0")
        o(f"s_mov_b32 s{S_NT}, {PD}")
        o(f"s_mov_b32 s{S_CNT}, 1")
        o(f"s_mov_b32 s{S_L1}, 1")
        o(f"s_mov_b32 s{S_NK}, 0")
        o(f"s_mov_b32 s{S_NH}, 0")
        o("s_mov_b64 vcc, 0")
        o("s_mov_b64 exec, 0")
        o("s_branch M_prime")
        o("L_dry_ret:")
        o("s_mov_b64 exec, -1")
        o(f"s_mov_b32 s{S_DRY}, 0")
    o(f"s_cmp_lt_u32 s{S_WAVE}, {TEAM0}")
    o(f"s_cbranch_scc1 L_gemm")
    o(f"s_cmp_eq_u32 s{S_WG}, 255")
    o(f"s_movk_i32 s{S_C}, {CH//4}")
    o(f"s_cselect_b32 s{S_C}, {(E-255*CH)//4}, s{S_C}")
    o(f"s_mov_b32 s{S_B}, 85599")
    o(f"s_movk_i32 s{S_D}, {NPB}")
    o("s_waitcnt vmcnt(2)")
    o(f"s_cmp_eq_u32 s{S_WAVE}, 15")
    o(f"s_cbranch_scc0 L_notl")
    o(f"buffer_load_dwordx2 v[48:49], v{vZ}, {sr(R_DBG,4)}, 0 offen{PSC}")
    o("L_notl:")
    stamp(o, 1)
    for r in range(4):
        o(f"v_mul_u32_u24 v{vB+r}, s{S_B}, v{vDST+r}")
        o(f"v_lshrrev_b32 v{vB+r}, 24, v{vB+r}")
        o(f"v_mul_u32_u24 v3, s{S_D}, v{vB+r}")
        o(f"v_sub_u32 v3, v{vDST+r}, v3")
        o(f"v_lshlrev_b32 v3, 2, v3")
        o(f"v_lshl_or_b32 v{vRec+2*r}, v{vSRC+r}, 16, v3")
        o(f"v_lshlrev_b32 v{vB+r}, 2, v{vB+r}")
        if r & 1: o(f"v_and_b32 v{vRec+2*r+1}, 0xffff0000, v{vE+(r>>1)}")
        else:     o(f"v_lshlrev_b32 v{vRec+2*r+1}, 16, v{vE+(r>>1)}")
    o(f"v_cmpx_gt_u32 vcc, s{S_C}, v4")
    for r in range(4):
        o(f"ds_add_rtn_u32 v{vR+r}, v{vB+r}, v15 offset:{HISTA}")
    o("s_mov_b64 exec, -1")
    o(f"v_lshlrev_b32 v8, 3, v2")
    o(f"s_cmp_eq_u32 s{S_WAVE}, 14")
    o(f"s_cbranch_scc0 L_noxd")
    xsrc(o, 46, 44, 45)
    o(f"s_add_u32 s{S_A}, s{S_NODE0}, {16*TEAM0}")
    o(f"s_lshl_b32 s{S_A}, s{S_A}, 8")
    for w in range(TEAM0, 13):
        for i in range(4 if w < 12 else 1):
            o(f"s_mov_b32 m0, {XT + (w >> 1)*XTS + (w & 1)*4160 + 16*i}")
            o("s_nop 0")
            o(f"buffer_load_dwordx4 v46, {sr(R_X,4)}, s{S_A} offen offset:{i*1024} lds")
        if w < 12: o(f"s_add_u32 s{S_A}, s{S_A}, 4096")
    o("L_noxd:")
    soft_barrier(o, "L_sb1", NTM, 3)
    o(f"s_cmp_eq_u32 s{S_WAVE}, 15")
    o(f"s_cbranch_scc0 L_notl2")
    o(f"buffer_load_dwordx2 v[70:71], v{vZ}, {sr(R_DBG,4)}, 0 offen{PSC}")
    o("L_notl2:")
    o(f"ds_read_b64 v[6:7], v8 offset:{HISTA}")
    o("s_waitcnt lgkmcnt(0)")
    o(f"v_add_u32 v11, v6, v7")
    scan64(o, 11)
    o(f"v_sub_u32 v11, v11, v7")
    o(f"v_sub_u32 v10, v11, v6")
    o(f"ds_write_b64 v8, v[10:11] offset:{BASE}")
    for r in range(4):
        o(f"ds_read_b32 v{vDST+r}, v{vB+r} offset:{BASE}")
    o(f"v_lshl_or_b32 v10, v6, 11, v10")
    o(f"v_lshl_or_b32 v11, v7, 11, v11")
    o(f"v_mov_b32 v3, {RECS}")
    o("s_waitcnt lgkmcnt(0)")
    o(f"v_cmpx_gt_u32 vcc, s{S_C}, v4")
    for r in range(4):
        o(f"v_add_u32 v{vDST+r}, v{vDST+r}, v{vR+r}")
        o(f"v_lshl_add_u32 v{vDST+r}, v{vDST+r}, 3, v3")
        o(f"ds_write_b64 v{vDST+r}, {vr(vRec+2*r,2)}")
    o("s_mov_b64 exec, -1")
    o("s_waitcnt lgkmcnt(0)")
    lds_inc(o, vZ, F_SOFT)
    stamp(o, 2)
    o(f"s_cmp_lt_u32 s{S_WAVE}, 14")
    o(f"s_cbranch_scc1 L_gemm")
    o(f"s_cmp_eq_u32 s{S_WAVE}, 14")
    o(f"s_cbranch_scc1 L_w14")
    o("s_waitcnt vmcnt(1)")
    o(f"v_readfirstlane_b32 s{S_NK}, v48")
    o(f"v_readfirstlane_b32 s{S_NH}, v49")
    o(f"s_cmp_lg_u32 s{S_NH}, 0")
    o(f"s_cbranch_scc1 L_ga_ok")
    o("s_waitcnt vmcnt(0)")
    o(f"v_readfirstlane_b32 s{S_NK}, v70")
    o(f"v_readfirstlane_b32 s{S_NH}, v71")
    o(f"s_cmp_lg_u32 s{S_NH}, 0")
    o(f"s_cbranch_scc1 L_ga_ok")
    get_tag(o, "L_ga")
    o(f"v_or_b32 v{VE}, s{S_NK}, v10")
    o(f"v_mov_b32 v{VE+1}, s{S_NH}")
    o(f"v_or_b32 v{VE+2}, s{S_NK}, v11")
    o(f"v_mov_b32 v{VE+3}, s{S_NH}")
    o(f"v_mov_b32 v6, s{S_NK}")
    o(f"v_mov_b32 v7, s{S_NH}")
    o(f"v_lshlrev_b32 v4, 4, v2")
    if "entlast" not in OPT:
        o(f"s_lshl_b32 s{S_B}, s{S_WG}, 10")
        o(f"s_add_u32 s{S_B}, s{S_B}, {OFF_OFF}")
        o(f"buffer_store_dwordx4 {vr(VE,4)}, v4, {sr(R_WS,4)}, s{S_B} offen{SC}")
    o(f"ds_write_b64 v{vZ}, v[6:7] offset:{F_TAG}")
    stamp(o, 3)
    lds_wait(o, "L_sb2", vZ, F_SOFT, 2*NTM, 3, 0)
    o(f"v_add_u32 v12, {RECS}, v4")
    for i in range(13):
        o(f"ds_read_b128 {vr(16+4*i,4)}, v12 offset:{i*1024}")
    tag_parts(o)
    o(f"s_mul_i32 s{S_B}, s{S_WG}, {SEG}")
    o(f"s_add_u32 s{S_B}, s{S_B}, {REC_OFF}")
    o(f"v_mov_b32 v6, 0xfc00")
    o(f"v_mov_b32 v7, 0xffff")
    for i in range(13):
        if i and i % 4 == 0: o(f"s_add_u32 s{S_B}, s{S_B}, 4096")
        o(f"s_waitcnt lgkmcnt({12-i})")
        o(f"v_bfi_b32 v{16+4*i}, v6, s{S_T0}, v{16+4*i}")
        o(f"v_bfi_b32 v{17+4*i}, v7, s{S_NH}, v{17+4*i}")
        o(f"v_bfi_b32 v{18+4*i}, v6, s{S_T1}, v{18+4*i}")
        o(f"v_bfi_b32 v{19+4*i}, v7, s{S_T2}, v{19+4*i}")
        if i == 12: o("s_mov_b64 exec, 0xffff")
        o(f"buffer_store_dwordx4 {vr(16+4*i,4)}, v4, {sr(R_WS,4)}, s{S_B} offen offset:{(i&3)*1024}{SC}")
    o("s_mov_b64 exec, -1")
    if "entlast" in OPT:
        if "drain" in OPT: o("s_waitcnt vmcnt(0)")
        o(f"s_lshl_b32 s{S_B}, s{S_WG}, 10")
        o(f"s_add_u32 s{S_B}, s{S_B}, {OFF_OFF}")
        o(f"buffer_store_dwordx4 {vr(VE,4)}, v4, {sr(R_WS,4)}, s{S_B} offen{SC}")
    stamp(o, 4)
    o(f"s_cmp_eq_u32 s{S_BUCKET}, 127")
    o(f"s_cbranch_scc0 L_rec")
    o(f"v_lshrrev_b32 v3, 3, v2")
    o(f"s_mov_b32 s{S_B}, {TSTRIDE}")
    o(f"v_mul_lo_u32 v3, v3, s{S_B}")
    o(f"v_lshl_add_u32 v3, v1, 4, v3")
    o(f"s_mov_b32 s{S_B}, {DUMMY_ROW*128}")
    o(f"v_mov_b32 v20, 0x7f007f00")
    o(f"v_mov_b32 v21, 0x7f007f00")
    o(f"v_mov_b32 v22, 0")
    o(f"v_mov_b32 v23, 0")
    o("s_mov_b64 exec, 0xffff")
    o(f"buffer_store_dwordx4 {vr(20,4)}, v3, {sr(R_TAB,4)}, s{S_B} offen{SC}")
    o("s_mov_b64 exec, -1")
    o("s_branch L_rec")
    o("L_w14:")
    def tcinc():
        o(f"v_mov_b32 v4, 2")
        o("s_mov_b64 exec, 1")
        o(f"ds_add_u32 v{vZ}, v15 offset:{F_TC+16}")
        o(f"ds_add_u32 v{vZ}, v4 offset:{F_TC+20}")
        o(f"ds_add_u32 v{vZ}, v4 offset:{F_TC+24}")
        o("s_mov_b64 exec, -1")
    def pollissue():
        for i in range(4):
            o(f"buffer_load_dwordx2 {vr(16+2*i,2)}, v3, {sr(R_WS,4)}, s{S_B} offen offset:{1024*i}{ESC}")
    o(f"v_lshlrev_b32 v3, 12, v2")
    o(f"s_lshl_b32 s{S_B}, s{S_BUCKET}, 3")
    o(f"s_add_u32 s{S_B}, s{S_B}, {OFF_OFF}")
    if "pe" in OPT:
        if PESL: o(f"s_sleep {PESL}")
        pollissue()
        o("s_waitcnt vmcnt(4)")
    else:
        o("s_waitcnt vmcnt(0)")
    tcinc()
    lds_wait(o, "L_wtag", vZ, F_TAG+4, 1, 5)
    o(f"ds_read_b32 v5, v{vZ} offset:{F_TAG}")
    o(f"s_mov_b32 s{S_NH}, s{S_A}")
    o("s_waitcnt lgkmcnt(0)")
    o(f"v_readfirstlane_b32 s{S_NK}, v5")
    spin_bound(o)
    if "pe" in OPT: o("s_branch L_pa1")
    o("L_pa:")
    pollissue()
    o("L_pa1:")
    o("s_waitcnt vmcnt(0)")
    for i in range(4):
        o(f"v_xor_b32 v{24+i}, s{S_NK}, v{16+2*i}")
        o(f"v_xor_b32 v{17+2*i}, s{S_NH}, v{17+2*i}")
    o(f"v_or3_b32 v6, v24, v25, v26")
    o(f"v_or_b32 v6, v6, v27")
    o(f"v_lshrrev_b32 v6, 22, v6")
    o(f"v_or3_b32 v6, v6, v17, v19")
    o(f"v_or3_b32 v6, v6, v21, v23")
    o(f"v_cmpx_ne_u32 vcc, 0, v6")
    o(f"s_cbranch_execz L_pa_ok")
    spin_tail(o, "L_pa", 2)
    o("L_pa_ok:")
    o("s_mov_b64 exec, -1")
    if "cpf3" in OPT:
        o(f"s_getpc_b64 {sr(S_EX,2)}")
        o(f"s_add_u32 s{S_EX}, s{S_EX}, L_rec-L_pa_ok-16")
        o(f"s_addc_u32 s{S_EX+1}, s{S_EX+1}, 0")
        o(f"v_lshlrev_b32 v3, 7, v2")
        o(f"s_mov_b32 exec_hi, 0xfff")
        o(f"global_load_dword v52, v3, {sr(S_EX,2)}")
        o("s_mov_b64 exec, -1")
    stamp(o, 3)
    o(f"v_lshlrev_b32 v3, 4, v2")
    o(f"ds_write_b128 v3, {vr(24,4)} offset:{OFFL}")
    o("s_waitcnt lgkmcnt(0)")
    o(f"ds_write_b32 v{vZ}, v15 offset:{F_OFFL}")
    o("s_branch L_rec")
    o("L_gemm:")
    if "gp" not in OPT and "gp2" not in OPT: o("s_setprio 0")
    if "gp2" in OPT:
        o(f"s_cmp_lt_u32 s{S_WAVE}, 4")
        o("s_cbranch_scc1 L_gp")
        o("s_setprio 1")
        o(f"s_cmp_lt_u32 s{S_WAVE}, 8")
        o("s_cbranch_scc1 L_gp")
        o("s_setprio 2")
        o("L_gp:")
    xsrc(o)
    if "nowi" not in OPT and "b0late" not in OPT: lds_wait(o, "L_wi", vZ, F_WI, 8, 3, 0)
    o(f"s_lshr_b32 s{S_TILE}, s{S_WAVE}, 1")
    o(f"s_and_b32 s{S_FB}, s{S_WAVE}, 1")
    o(f"s_add_u32 s{S_SL}, s{S_SL0}, s{S_FB}")
    o(f"s_lshl_b32 s{S_A}, s{S_WAVE}, 4")
    o(f"s_add_u32 s{S_A}, s{S_A}, s{S_NODE0}")
    o(f"s_lshl_b32 s{S_A}, s{S_A}, 8")
    o(f"s_mul_i32 s{S_C}, s{S_TILE}, {XTS}")
    o(f"s_add_u32 s{S_C}, s{S_C}, {XT}")
    o(f"s_mul_i32 s{S_B}, s{S_FB}, 4160")
    o(f"s_add_u32 s{S_B}, s{S_B}, s{S_C}")
    o(f"s_cmp_ge_u32 s{S_WAVE}, {TEAM0}")
    o(f"s_cbranch_scc1 L_xdone")
    for i in range(4):
        o(f"s_add_u32 m0, s{S_B}, {16*i}")
        o("s_nop 0")
        o(f"buffer_load_dwordx4 v12, {sr(R_X,4)}, s{S_A} offen offset:{i*1024} lds")
    o("L_xdone:")
    o(f"s_cmp_lt_u32 s{S_WAVE}, 8")
    o(f"s_cbranch_scc0 L_w4")
    o("s_waitcnt vmcnt(4)")
    lds_inc(o, vZ, F_W)
    o("L_w4:")
    if STAMP is not None and STAMP < TEAM0: stamp(o, 1)
    o(f"v_and_b32 v6, 31, v2")
    o(f"v_lshrrev_b32 v7, 5, v2")
    o(f"v_lshrrev_b32 v3, 2, v6")
    o(f"s_movk_i32 s{S_A}, 1040")
    o(f"v_mul_u32_u24 v3, s{S_A}, v3")
    o(f"v_and_b32 v12, 3, v6")
    o(f"v_lshl_add_u32 v3, v12, 8, v3")
    o(f"v_lshl_add_u32 v3, v7, 4, v3")
    o(f"v_add_u32 v3, s{S_C}, v3")
    o(f"v_xor_b32 v12, s{S_SL}, v12")
    for u in range(4):
        o(f"v_xor_b32 v4, {u}, v12")
        o(f"v_lshl_add_u32 v{vD+u}, v4, 6, v3")
    o(f"v_bfe_u32 v3, v2, 2, 2")
    o(f"v_lshl_add_u32 v8, v7, 3, v3")
    o(f"v_lshlrev_b32 v8, 7, v8")
    o(f"v_lshrrev_b32 v3, 1, v3")
    o(f"v_xor_b32 v3, s{S_FB}, v3")
    o(f"v_lshl_add_u32 v8, v3, 6, v8")
    o(f"v_bfe_u32 v3, v2, 4, 1")
    o(f"v_lshl_add_u32 v8, v3, 5, v8")
    o(f"v_and_b32 v3, 3, v2")
    o(f"v_lshl_add_u32 v8, v3, 3, v8")
    for u in range(4):
        o(f"s_xor_b32 s{S_A}, s{S_SL}, {u}")
        o(f"s_lshl_b32 s{S_A}, s{S_A}, 12")
        o(f"s_add_u32 s{S_A}, s{S_A}, {WOFF}")
        o(f"v_add_u32 v{vWA+u}, s{S_A}, v8")
    o(f"s_lshl_b32 s{S_A}, s{S_TILE}, 2")
    o(f"v_mov_b32 v11, s{S_A}")
    o(f"s_lshl_b32 s{S_D}, s{S_FB}, 12")
    o(f"s_add_u32 s{S_D}, s{S_D}, s{S_C}")
    o("s_waitcnt vmcnt(0)")
    o(f"s_cmp_ge_u32 s{S_WAVE}, {TEAM0}")
    o(f"s_cbranch_scc1 L_noinc")
    lds_inc(o, 11, F_TC)
    o("L_noinc:")
    lds_wait(o, "L_wt", 11, F_TC, 2, 3, 0)
    stamp(o, 2 if STAMP is not None and STAMP < TEAM0 else 3)
    for t in range(8):
        o(f"ds_read_b128 {vr(vX+4*t,4)}, v{vD+(t>>1)} offset:{(t&1)*32}")
    o("s_waitcnt lgkmcnt(0)")
    lds_inc(o, 11, F_TC)
    lds_wait(o, "L_ww", vZ, F_W, 8, 3)
    gstamp(o, 5)
    gemm_pair(o, vW, vX, aP, aQ, vWA, 0)
    gstamp(o, 6)
    for i in range(0, 16, 2):
        o(f"v_pk_fma_f32 {vr(aP+i,2)}, {vr(aP+i,2)}, {sr(S_CT,2)}, {sr(S_CT,2)} op_sel:[0,0,1] op_sel_hi:[1,0,1]")
    for i in range(0, 16, 2):
        o(f"v_pk_add_f32 {vr(aQ+i,2)}, {vr(aQ+i,2)}, {sr(S_CT,2)} op_sel:[0,1] op_sel_hi:[1,1]")
    lds_wait(o, "L_wu", 11, F_TC, 4, 3, 0)
    gstamp(o, 7)
    o(f"v_and_b32 v3, 7, v6")
    o(f"v_xor_b32 v3, v3, v7")
    o(f"v_lshlrev_b32 v3, 4, v3")
    o(f"v_lshl_add_u32 v3, v6, 7, v3")
    o(f"v_add_u32 v3, s{S_D}, v3")
    for q in range(4):
        d = vD + (q & 1)*4
        encode4(o, aP+4*q, d); encode4(o, aQ+4*q, d+2)
        if q: o(f"v_xor_b32 v3, {32*(q ^ (q-1))}, v3")
        o(f"ds_write_b128 v3, {vr(d,4)}")
    o(f"v_lshrrev_b32 v3, 3, v2")
    o(f"v_xor_b32 v10, v1, v3")
    o(f"v_lshlrev_b32 v10, 4, v10")
    o(f"v_lshl_add_u32 v10, v3, 7, v10")
    o(f"v_add_u32 v10, s{S_D}, v10")
    o(f"s_lshl_b32 s{S_B1}, s{S_TILE}, 5")
    o(f"s_add_u32 s{S_B1}, s{S_B1}, s{S_NODE0}")
    o(f"s_lshl_b32 s{S_B1}, s{S_B1}, 7")
    def tab_read():
        for i in range(4):
            o(f"ds_read_b128 {vr(aP+4*i,4)}, v10 offset:{i*1024}")
    def tab_store(lab, counted):
        o(f"v_lshlrev_b32 v3, 4, v2")
        o(f"s_cmp_lt_u32 s{S_WAVE}, 12")
        o(f"s_cbranch_scc1 {lab}_full")
        if counted: o("s_waitcnt lgkmcnt(0)")
        o("s_mov_b32 exec_hi, 0")
        o(f"buffer_store_dwordx4 {vr(aP,4)}, v3, {sr(R_TAB,4)}, s{S_B1} offen{SC}")
        o("s_mov_b64 exec, -1")
        o(f"s_branch {lab}")
        o(f"{lab}_full:")
        for i in range(4):
            if counted: o(f"s_waitcnt lgkmcnt({3-i})")
            o(f"buffer_store_dwordx4 {vr(aP+4*i,4)}, v3, {sr(R_TAB,4)}, s{S_B1} offen offset:{i*1024}{SC}")
        o(f"{lab}:")
    o(f"s_mul_i32 s{S_A}, s{S_FB}, {TSTRIDE}")
    o(f"s_add_u32 s{S_B1}, s{S_B1}, s{S_A}")
    gstamp(o, 8)
    o("s_waitcnt lgkmcnt(0)")
    gstamp(o, 9)
    if "ist" not in OPT:
        tab_read()
        tab_store("L_st_done", True)
        gemm_pair(o, vW, vX, aP, aQ, vWA, 32768)
    else:
        for i in range(4):
            o(f"ds_read_b128 {vr(104+4*i,4)}, v10 offset:{i*1024}")
        o(f"v_lshlrev_b32 v4, 4, v2")
        o(f"s_cmp_lt_u32 s{S_WAVE}, 12")
        o(f"s_cselect_b32 s{S_T0}, -1, 0")
        def extra(t):
            if t < 4:
                o(f"s_mov_b32 exec_hi, s{S_T0}")
                if t: o(f"s_mov_b32 exec_lo, s{S_T0}")
                o(f"buffer_store_dwordx4 {vr(104+4*t,4)}, v4, {sr(R_TAB,4)}, s{S_B1} offen offset:{t*1024}{SC}")
                o("s_mov_b64 exec, -1")
        gemm_pair(o, vW, vX, aP, aQ, vWA, 32768, extra)
    gstamp(o, 10)
    for i in range(0, 16, 2):
        o(f"v_pk_mul_f32 {vr(aP+i,2)}, {vr(aP+i,2)}, {sr(S_CT,2)} op_sel_hi:[1,0]")
    for q in range(4):
        o(f"v_cvt_pk_bf16_f32 v{vW+4*q+2}, v{aQ+4*q}, v{aQ+4*q+1}")
        o(f"v_cvt_pk_bf16_f32 v{vW+4*q+3}, v{aQ+4*q+2}, v{aQ+4*q+3}")
    o(f"v_max3_f32 v3, |v{aP}|, |v{aP+1}|, |v{aP+2}|")
    for i in range(3, 15, 2):
        o(f"v_max3_f32 v3, v3, |v{aP+i}|, |v{aP+i+1}|")
    o(f"v_max_f32 v3, v3, |v{aP+15}|")
    o(f"s_mov_b32 s{S_A}, 0x42700000")
    o(f"s_cmp_ge_u32 s{S_WAVE}, 12")
    o(f"s_cselect_b32 s{S_EX}, 0xf, -1")
    o(f"v_cmp_lt_f32 vcc, s{S_A}, v3")
    o(f"s_mov_b32 s{S_EX+1}, s{S_EX}")
    o(f"s_and_b64 vcc, vcc, {sr(S_EX,2)}")
    o(f"s_cbranch_scc0 L_doexp")
    o(f"v_lshlrev_b32 v3, s{S_WAVE}, v15")
    o(f"ds_or_b32 v{vZ}, v3 offset:{F_RANGE}")
    o("s_branch L_noexp")
    o("L_doexp:")
    for i in range(16): o(f"v_exp_f32 v{aP+i}, -v{aP+i}")
    o("L_noexp:")
    for q in range(4):
        o(f"v_cvt_pk_bf16_f32 v{vW+4*q}, v{aP+4*q}, v{aP+4*q+1}")
        o(f"v_cvt_pk_bf16_f32 v{vW+4*q+1}, v{aP+4*q+2}, v{aP+4*q+3}")
    lds_inc(o, vZ, F_GD)
    def aux_write(lab):
        o(f"s_cmp_lt_u32 s{S_WAVE}, 14")
        o(f"s_cbranch_scc0 {lab}")
        o(f"s_lshr_b32 s{S_A}, s{S_WAVE}, 1")
        o(f"s_lshl_b32 s{S_A}, s{S_A}, 5")
        o(f"v_and_b32 v3, 31, v2")
        o(f"v_add_u32 v3, s{S_A}, v3")
        o(f"s_movk_i32 s{S_A}, {AUS}")
        o(f"v_cmpx_gt_u32 vcc, s{S_A}, v3")
        o(f"s_and_b32 s{S_B}, s{S_WAVE}, 1")
        o(f"s_mul_i32 s{S_B}, s{S_B}, {AUP}")
        o(f"s_add_u32 s{S_B}, s{S_B}, {AUX}")
        o(f"v_mul_u32_u24 v3, s{S_A}, v3")
        o(f"v_lshrrev_b32 v14, 5, v2")
        o(f"v_mul_u32_u24 v14, 24, v14")
        o(f"v_add3_u32 v3, v3, v14, s{S_B}")
        o(f"v_add_u32 v14, v3, v14")
        for q in range(4):
            o(f"ds_write2_b64 v3, {vr(vW+4*q,2)}, {vr(vW+4*q+2,2)} offset0:{6*q} offset1:{6*q+1}")
        o(f"ds_write2_b64 v14, {vr(vX,2)}, {vr(vX+2,2)} offset0:2 offset1:5")
        o(f"ds_write2_b64 v14, {vr(vX+4,2)}, {vr(vX+6,2)} offset0:14 offset1:17")
        o("s_mov_b64 exec, -1")
        o(f"{lab}:")
    o("L_rec:")
    if STAMP is not None and STAMP < 14: stamp(o, 4)
    vCNT, vIDX, vRA = 4, 5, 12
    o(f"v_and_b32 v{vIDX}, 3, v0")
    o(f"v_lshrrev_b32 v3, 2, v0")
    o(f"s_movk_i32 s{S_A}, {SEG}")
    o(f"v_mul_u32_u24 v{vRA}, s{S_A}, v3")
    o(f"v_lshl_add_u32 v{vRA}, v{vIDX}, 4, v{vRA}")
    o(f"v_lshlrev_b32 v{vIDX}, 1, v{vIDX}")
    o(f"v_and_b32 v14, 0xffc, v0")
    lds_wait(o, "L_wo", vZ, F_OFFL, 1, 3)
    o(f"ds_read_b32 v{vCNT}, v14 offset:{OFFL}")
    o(f"ds_read_b64 v[6:7], v{vZ} offset:{F_TAG}")
    o("s_waitcnt lgkmcnt(0)")
    o(f"v_readfirstlane_b32 s{S_NK}, v6")
    o(f"v_readfirstlane_b32 s{S_NH}, v7")
    o(f"v_and_b32 v3, 0x7fe, v{vCNT}")
    o(f"v_lshl_add_u32 v{vRA}, v3, 3, v{vRA}")
    o(f"v_and_b32 v3, 1, v{vCNT}")
    o(f"v_sub_u32 v{vIDX}, v{vIDX}, v3")
    o(f"v_lshrrev_b32 v{vCNT}, 11, v{vCNT}")
    o(f"v_cmp_le_i32 vcc, 0, v{vIDX}")
    o(f"v_sub_u32 v{vIDX}, v{vCNT}, v{vIDX}")
    for r in range(NR):
        o(f"v_cmp_lt_i32 {sr(S_MSK+2*r,2)}, {8*(r>>1) + (r&1)}, v{vIDX}")
    o(f"s_mov_b64 {sr(S_EX,2)}, {sr(S_MSK,2)}")
    o(f"s_and_b64 {sr(S_MSK,2)}, {sr(S_MSK,2)}, vcc")
    def rec_issue(lab):
        o(f"s_mov_b32 s{S_A}, {REC_OFF}")
        for k in range(NL):
            o(f"s_mov_b64 exec, {sr(S_MSK+4*k,2) if k else sr(S_EX,2)}")
            if k >= 2: o(f"s_cbranch_execz {lab}")
            o(f"buffer_load_dwordx4 {vr(vREC+4*k,4)}, v{vRA}, {sr(R_WS,4)}, s{S_A} offen offset:{k*64}{RSC}")
        o(f"{lab}:")
        o("s_mov_b64 exec, -1")
    rec_issue("L_ld_done")
    o(f"v_cmpx_lt_u32 vcc, {8*NL-1}, v{vCNT}")
    o(f"ds_write_b32 v{vZ}, v15 offset:{F_STRUCT}")
    o("s_mov_b64 exec, -1")
    o(f"s_cmp_lt_u32 s{S_WAVE}, 14")
    o(f"s_cbranch_scc0 L_noaux")
    lds_wait(o, "L_wg", vZ, F_GD, 14, 3)
    aux_write("L_noaux")
    stamp(o, 5)
    vRK = 24; vDA = 34
    tag_parts(o)
    o(f"s_and_b32 s{S_T0}, s{S_T0}, 0xfc00")
    o(f"s_and_b32 s{S_T1}, s{S_T1}, 0xfc00")
    o(f"s_lshl_b32 s{S_T1}, s{S_T1}, 16")
    o(f"s_or_b32 s{S_T0}, s{S_T0}, s{S_T1}")
    o(f"s_mov_b32 s{S_T1}, 0x05040100")
    o(f"v_mov_b32 v7, 0xfc00fc00")
    spin_bound(o)
    o("L_chk:")
    o(f"v_mov_b32 v6, 0")
    o("s_waitcnt vmcnt(0)")
    for k in range(NL):
        o(f"s_mov_b64 exec, {sr(S_MSK+4*k,2) if k else sr(S_EX,2)}")
        if k >= 2: o(f"s_cbranch_execz L_chk_done")
        o(f"v_perm_b32 v3, v{vREC+4*k+2}, v{vREC+4*k}, s{S_T1}")
        o(f"v_perm_b32 v14, v{vREC+4*k+3}, v{vREC+4*k+1}, s{S_T1}")
        o(f"v_xor_b32 v3, s{S_T0}, v3")
        o(f"v_xor_b32 v14, s{S_NH}, v14")
        o(f"v_and_or_b32 v3, v3, v7, v14")
        o(f"v_or_b32 v6, v6, v3")
    o("L_chk_done:")
    o("s_mov_b64 exec, -1")
    o(f"v_cmp_ne_u32 vcc, 0, v6")
    o(f"s_cbranch_vccz L_chk_ok")
    rec_issue("L_ld_again")
    o(f"s_sub_u32 s{S_SPIN}, s{S_SPIN}, 1")
    o(f"s_cbranch_scc0 L_chk")
    o("L_chk_ok:")
    for r in range(NR):
        o(f"s_mov_b64 exec, {sr(S_MSK+2*r,2)}")
        if r >= 3: o("s_cbranch_execz L_cnt_done")
        o(f"v_and_b32 v{vDA+r}, 0x3ff, v{vREC+2*r}")
        o(f"v_and_b32 v{vREC+2*r+1}, 0xffff0000, v{vREC+2*r+1}")
        o(f"ds_add_rtn_u32 v{vRK+r}, v{vDA+r}, v15 offset:{DEG}")
    o("L_cnt_done:")
    o("s_setprio 0")
    o("s_mov_b64 exec, -1")
    stamp(o, 6)
    o("s_waitcnt lgkmcnt(0)")
    o("s_barrier")
    stamp(o, 7)
    vN_D, vBIN, vR2, vPOS, vL, vTB = 80, 81, 82, 83, 84, 85
    vWX, vW2, vEX, vDen, vNum, vNQ, vT, vLO, vLA, vOB, vOA, vAB, vAU = 86, 124, 90, 92, 96, 100, 64, 72, 73, 74, 75, 76, 78
    o(f"s_cmp_eq_u32 s{S_WAVE}, 15")
    o(f"s_cbranch_scc0 L_nosort")
    o("s_setprio 3")
    sD, sB, sR, sP = 48, 52, 56, 60
    o(f"v_lshlrev_b32 v8, 2, v2")
    for i in range(4): o(f"ds_read_b32 v{sD+i}, v8 offset:{DEG+256*i}")
    publish_tf(o, 0)
    publish_tf(o, 1)
    o("s_waitcnt lgkmcnt(0)")
    for i in range(4):
        o(f"v_min_u32 v{sB+i}, 63, v{sD+i}")
        o(f"v_sub_u32 v{sB+i}, 63, v{sB+i}")
        o(f"v_lshlrev_b32 v{sB+i}, 2, v{sB+i}")
        if i == 3: o("s_mov_b64 exec, 0xff")
        o(f"ds_add_rtn_u32 v{sR+i}, v{sB+i}, v15 offset:{HIST2}")
    o("s_mov_b64 exec, -1")
    o(f"ds_read_b32 v6, v8 offset:{HIST2}")
    o(f"v_max3_u32 v3, v{sD}, v{sD+1}, v{sD+2}")
    o(f"v_max_u32 v3, v3, v{sD+3}")
    o(f"v_cmp_lt_u32 vcc, 63, v3")
    o(f"s_cmp_lg_u64 vcc, 0")
    o(f"s_cselect_b32 s{S_C}, 1, 0")
    o(f"v_lshrrev_b32 v10, 1, v2")
    o(f"v_sub_u32 v11, 31, v10")
    o(f"v_and_b32 v7, 1, v2")
    o(f"v_cmp_eq_u32 vcc, 1, v7")
    o(f"v_add_u32 v12, 192, v2")
    o(f"v_mov_b32 v7, 0xffff")
    o(f"v_cndmask_b32 v10, v10, v11, vcc")
    o(f"v_and_b32 v11, 32, v2")
    o(f"v_add_u32 v10, v10, v11")
    o(f"v_cmp_gt_u32 vcc, 4, v2")
    o(f"v_cmp_gt_u32 {sr(S_EX,2)}, 25, v10")
    o(f"v_lshlrev_b32 v10, 5, v10")
    o(f"v_cndmask_b32 v12, v7, v12, vcc")
    o("s_waitcnt lgkmcnt(0)")
    o(f"v_mov_b32 v14, v6")
    scan64(o, 14)
    o(f"v_sub_u32 v14, v14, v6")
    for i in range(4): o(f"ds_bpermute_b32 v{sP+i}, v{sB+i}, v14")
    o(f"v_lshl_or_b32 v{sB}, v{sD}, 16, v2")
    o(f"v_add_u32 v3, 64, v2")
    o(f"v_lshl_or_b32 v{sB+1}, v{sD+1}, 16, v3")
    o(f"v_add_u32 v3, 128, v2")
    o(f"v_lshl_or_b32 v{sB+2}, v{sD+2}, 16, v3")
    o(f"v_lshl_or_b32 v{sB+3}, v{sD+3}, 16, v12")
    o("s_waitcnt lgkmcnt(0)")
    for i in range(4):
        o(f"v_add_u32 v{sP+i}, v{sP+i}, v{sR+i}")
        o(f"v_lshlrev_b32 v3, 2, v{sP+i}")
        if i == 3: o("s_mov_b64 exec, 0xff")
        o(f"ds_write_b32 v3, v{sB+i} offset:{SNODE}")
    o("s_mov_b64 exec, -1")
    o(f"ds_read_u16 v{vL}, v10 offset:{SNODE+2}")
    for i in range(4):
        o(f"v_lshrrev_b32 v3, 3, v{sP+i}")
        o(f"v_sub_u32 v6, 31, v3")
        o(f"v_cmp_gt_u32 vcc, 16, v3")
        o(f"v_lshl_or_b32 v6, v6, 3, 4")
        o(f"v_lshlrev_b32 v3, 3, v3")
        o(f"v_cndmask_b32 v{sB+i}, v6, v3, vcc")
        o(f"v_and_b32 v{sP+i}, 7, v{sP+i}")
        o(f"v_lshlrev_b32 v{sP+i}, 3, v{sP+i}")
        o(f"v_add_u32 v{sP+i}, {ELL}, v{sP+i}")
    o("s_waitcnt lgkmcnt(0)")
    o(f"v_cndmask_b32 v{vL}, 0, v{vL}, {sr(S_EX,2)}")
    o(f"v_mov_b32 v{vTB}, v{vL}")
    scan64(o, vTB)
    o("s_nop 0")
    o(f"v_readlane_b32 s{S_A}, v{vTB}, 63")
    o(f"v_sub_u32 v{vTB}, v{vTB}, v{vL}")
    o(f"v_lshl_or_b32 v{vTB}, v{vTB}, 8, v{vL}")
    o(f"s_cmp_gt_u32 s{S_A}, {ELL_ITERS}")
    o(f"s_cselect_b32 s{S_C}, 1, s{S_C}")
    o(f"s_cmp_lg_u32 s{S_C}, 0")
    o(f"s_cbranch_scc0 L_fit")
    o(f"ds_write_b32 v{vZ}, v15 offset:{F_STRUCT}")
    o("s_branch L_sorted")
    o("L_fit:")
    for i in range(4): o(f"ds_bpermute_b32 v{sR+i}, v{sB+i}, v{vTB}")
    o(f"ds_write_b32 v8, v{vTB} offset:{TBL}")
    o("s_waitcnt lgkmcnt(1)")
    for i in range(4):
        o(f"v_lshrrev_b32 v3, 8, v{sR+i}")
        o(f"v_lshl_add_u32 v{sP+i}, v3, 6, v{sP+i}")
        o(f"v_lshl_or_b32 v{sP+i}, v{sR+i}, 24, v{sP+i}")
        o(f"ds_write_b32 v8, v{sP+i} offset:{SLOT+256*i}")
    o("s_branch L_sorted")
    o("L_nosort:")
    o(f"s_cmp_eq_u32 s{S_WAVE}, {99 if 'nopf' in OPT else 14}")
    o(f"s_cbranch_scc0 L_nopf")
    o(f"v_lshlrev_b32 v3, 7, v2")
    o(f"s_lshl_b32 s{S_B}, s{S_NODE0}, 7")
    for i in range(4):
        if i == 3: o("s_mov_b64 exec, 0xf")
        o(f"buffer_load_dword v{48+i}, v3, {sr(R_TAB,4)}, s{S_B} offen{SC}")
        if i < 3: o(f"s_add_u32 s{S_B}, s{S_B}, 8192")
    o("s_mov_b64 exec, -1")
    if "cpf2" in OPT:
        o(f"s_getpc_b64 {sr(S_EX,2)}")
        o(f"v_lshlrev_b32 v3, 7, v2")
        o(f"s_mov_b32 exec_lo, -1")
        o(f"s_mov_b32 exec_hi, 0")
        o(f"global_load_dword v52, v3, {sr(S_EX,2)}")
        o("s_mov_b64 exec, -1")
    o("L_nopf:")
    o("L_sorted:")
    o("s_setprio 0")
    o(f"v_lshlrev_b32 v{vLO}, 4, v1")
    o(f"v_mul_u32_u24 v{vAB}, 24, v1")
    for p, w in ((0, vWX), (2, vW2)):
        o(f"v_lshlrev_b32 v{w}, 16, v{vWC+p}")
        o(f"v_lshlrev_b32 v{w+1}, 16, v{vWC+p+1}")
        o(f"v_and_b32 v{w+2}, 0xffff0000, v{vWC+p}")
        o(f"v_and_b32 v{w+3}, 0xffff0000, v{vWC+p+1}")
        o(f"v_pk_mul_f32 {vr(w,2)}, {vr(w,2)}, {sr(S_CT,2)} op_sel_hi:[1,0]")
        o(f"v_pk_mul_f32 {vr(w+2,2)}, {vr(w+2,2)}, {sr(S_CT,2)} op_sel_hi:[1,0]")
    o(f"v_add_u32 v{vAB}, {AUX}, v{vAB}")
    o(f"s_lshl_b32 s{S_A}, s{S_NODE0}, 8")
    o(f"s_lshl_b32 s{S_B}, s{S_SL0}, 6")
    o(f"s_add_u32 s{S_A}, s{S_A}, s{S_B}")
    o(f"v_lshl_add_u32 v{vOB}, v1, 3, s{S_A}")
    o(f"v_lshlrev_b32 v8, 2, v2")
    o(f"v_lshrrev_b32 v3, 3, v2")
    o(f"v_lshlrev_b32 v6, 2, v3")
    o(f"v_lshlrev_b32 v5, 3, v3")
    o(f"s_lshl_b32 s{S_A}, s{S_WAVE}, 5")
    o(f"v_add_u32 v14, s{S_A}, v6")
    o(f"s_sub_u32 s{S_B}, {31*32}, s{S_A}")
    o(f"v_add_u32 v12, s{S_B}, v6")
    o(f"s_xor_b32 s{S_A}, s{S_A}, {MIR*32}")
    o(f"v_add_u32 v4, s{S_A}, v6")
    o(f"s_sub_u32 s{S_B}, {31*32}, s{S_A}")
    o(f"v_add_u32 v3, s{S_B}, v6")
    o("s_waitcnt lgkmcnt(0)")
    o("s_barrier")
    stamp(o, 8)
    o(f"ds_read_b64 v[6:7], v{vZ} offset:{F_STRUCT}")
    o(f"ds_read_b32 v{vTB}, v8 offset:{TBL}")
    o(f"ds_read_b32 v80, v9 offset:{SLOT}")
    o(f"ds_read_b32 v81, v9 offset:{DEG}")
    for r in range(NR):
        o(f"s_mov_b64 exec, {sr(S_MSK+2*r,2)}")
        if r >= 3: o("s_cbranch_execz L_s8a_done")
        o(f"ds_read_b32 v{vDA+r}, v{vDA+r} offset:{SLOT}")
    o("L_s8a_done:")
    o("s_mov_b64 exec, -1")
    o(f"ds_read_u16 v{vNQ}, v14 offset:{SNODE}")
    o(f"ds_read_u16 v10, v12 offset:{SNODE}")
    o(f"ds_read_u16 v{vNQ+1}, v4 offset:{SNODE}")
    o(f"ds_read_u16 v11, v3 offset:{SNODE}")
    o("s_waitcnt lgkmcnt(0)")
    o(f"v_readfirstlane_b32 s{S_B}, v6")
    o(f"v_readfirstlane_b32 s{S_MODE}, v7")
    o(f"s_lshl_b32 s{S_A}, s{S_WAVE}, 1")
    o(f"v_readlane_b32 s{S_C}, v{vTB}, s{S_A}")
    o(f"s_or_b32 s{S_B}, s{S_B}, s{S_MODE}")
    o(f"s_cbranch_scc1 L_slow")
    for r in range(NR):
        o(f"s_mov_b64 exec, {sr(S_MSK+2*r,2)}")
        if r >= 3: o("s_cbranch_execz L_s8b_done")
        o(f"v_lshl_add_u32 v{vDA+r}, v{vRK+r}, 6, v{vDA+r}")
        o(f"v_and_b32 v{vDA+r}, 0xffffff, v{vDA+r}")
        o(f"ds_write_b64 v{vDA+r}, {vr(vREC+2*r,2)}")
    o("L_s8b_done:")
    o("s_mov_b64 exec, -1")
    o(f"s_cmp_lt_u32 s{S_WAVE}, 4")
    o(f"s_cbranch_scc0 L_pad_done")
    o(f"v_lshrrev_b32 v82, 24, v80")
    o(f"v_lshl_add_u32 v80, v81, 6, v80")
    o(f"v_and_b32 v80, 0xffffff, v80")
    o(f"v_mov_b32 v6, {DUMMY_ROW << 16}")
    o(f"v_mov_b32 v7, 0")
    o(f"s_movk_i32 s{S_B}, 200")
    o(f"v_cmpx_gt_u32 vcc, s{S_B}, v0")
    o("L_pad:")
    o(f"v_cmpx_gt_u32 vcc, v82, v81")
    o(f"s_cbranch_execz L_pad_done")
    o(f"ds_write_b64 v80, v[6:7]")
    o(f"v_add_u32 v80, 64, v80")
    o(f"v_add_u32 v81, 1, v81")
    o("s_branch L_pad")
    o("L_pad_done:")
    o("s_mov_b64 exec, -1")
    o(f"s_add_u32 s{S_A}, s{S_A}, 1")
    o(f"v_readlane_b32 s{S_L1}, v{vTB}, s{S_A}")
    o(f"s_xor_b32 s{S_A}, s{S_A}, {2*MIR}")
    o(f"v_readlane_b32 s{S_L3}, v{vTB}, s{S_A}")
    o(f"s_sub_u32 s{S_A}, s{S_A}, 1")
    o(f"v_readlane_b32 s{S_B1}, v{vTB}, s{S_A}")
    o(f"s_and_b32 s{S_CNT}, s{S_C}, 0xff")
    o(f"s_lshr_b32 s{S_C}, s{S_C}, 8")
    o(f"s_and_b32 s{S_L1}, s{S_L1}, 0xff")
    o(f"s_and_b32 s{S_L3}, s{S_L3}, 0xff")
    o(f"s_and_b32 s{S_L2}, s{S_B1}, 0xff")
    o(f"s_lshr_b32 s{S_B1}, s{S_B1}, 8")
    o(f"s_lshl_b32 s{S_C}, s{S_C}, 6")
    o(f"s_add_u32 s{S_C}, s{S_C}, {ELL}")
    o(f"s_lshl_b32 s{S_B1}, s{S_B1}, 6")
    o(f"s_add_u32 s{S_B1}, s{S_B1}, {ELL}")
    o(f"v_add_u32 v{vLA}, s{S_C}, v5")
    stamp(o, 10)
    o(f"s_cmp_eq_u32 s{S_WAVE}, 14")
    o(f"s_cbranch_scc0 L_nopoll2")
    poll_tables(o, "L_pb", 0, 48)
    if "pf3" in OPT:
        o(f"v_lshlrev_b32 v3, 7, v2")
        for t in range(1, 4):
            o(f"s_add_u32 s{S_A}, s{S_BUCKET}, {32*t}")
            o(f"s_and_b32 s{S_A}, s{S_A}, 127")
            o(f"s_mul_i32 s{S_A}, s{S_A}, {NPB*128}")
            for i in range(4):
                if i == 3: o("s_mov_b64 exec, 0xf")
                o(f"buffer_load_dword v{48+4*(t-1)+i}, v3, {sr(R_TAB,4)}, s{S_A} offen{SC}")
                if i < 3: o(f"s_add_u32 s{S_A}, s{S_A}, 8192")
            o("s_mov_b64 exec, -1")
    o("L_nopoll2:")
    o(f"s_cmp_ge_u32 s{S_WAVE}, 7")
    o(f"s_cselect_b32 s{S_NT}, 2, 1")
    o(f"s_mov_b32 s{S_PH}, 0")
    o(f"s_movk_i32 s{S_D}, 128")
    o("s_waitcnt lgkmcnt(0)")
    o(f"v_lshl_or_b32 v{vNQ}, v10, 16, v{vNQ}")
    o(f"v_lshl_or_b32 v{vNQ+1}, v11, 16, v{vNQ+1}")
    o("s_barrier")
    stamp(o, 11)
    o(f"s_movk_i32 s{S_A}, {AUS}")
    o(f"s_movk_i32 s{S_B}, 256")
    o(f"s_setprio {PR[0]}")
    vDK = 16; vRKk = 104
    assert vDK + 4*PD <= 64 and vRKk + 2*PD <= 124
    def gaddr(R): o(f"v_mad_u32_u16 v{R}, v{R}, s{S_D}, v{vLO} op_sel:[1,0,0,0]")
    o("M_prime:")
    for k in range(PD):
        o(f"ds_read_b64 {vr(vRKk+2*k,2)}, v{vLA} offset:{k*64}")
    for k in range(PD):
        o(f"s_waitcnt lgkmcnt({PD-1-k})")
        gaddr(vRKk+2*k)
        o(f"buffer_load_dwordx4 {vr(vDK+4*k,4)}, v{vRKk+2*k}, {sr(R_TAB,4)}, s{S_PH} offen{GSC}")
    def promote():
        o(f"v_mad_u32_u16 v3, v{vNQ}, s{S_A}, v{vAB}")
        o(f"v_mad_u32_u16 v{vOA}, v{vNQ}, s{S_B}, v{vOB}")
        o(f"ds_read2_b64 {vr(vAU,4)}, v3 offset0:0 offset1:1")
        o(f"ds_read_b64 {vr(vAU+4,2)}, v3 offset:16")
        o(f"v_lshrrev_b32 v{vNQ}, 16, v{vNQ}")
        for i in range(0, 8, 2): o(f"v_mov_b64 {vr(vDen+i,2)}, 0")
        o("s_waitcnt lgkmcnt(0)")
        o(f"v_lshlrev_b32 v{vEX}, 16, v{vAU}")
        o(f"v_lshlrev_b32 v{vEX+1}, 16, v{vAU+1}")
        o(f"v_and_b32 v{vAU}, 0xffff0000, v{vAU}")
        o(f"v_and_b32 v{vAU+1}, 0xffff0000, v{vAU+1}")
    promote()
    if "cut" not in OPT:
        o(f"s_sub_u32 s{S_CNT}, s{S_CNT}, 1")
    else:
        o(f"s_mov_b32 s{S_TASK}, s{S_CNT}")
        o(f"s_add_u32 s{S_CUT}, s{S_CNT}, s{S_L1}")
        o(f"s_cmp_gt_u32 s{S_CUT}, {PD}")
        o(f"s_cselect_b32 s{S_SO}, s{S_PH}, 0x7f000000")
        o(f"s_cselect_b32 s{S_CUT}, s{S_CUT}, 0x7f000000")
        o(f"s_sub_u32 s{S_CUT}, s{S_CUT}, {PD}")
        o(f"s_min_u32 s{S_STEP}, s{S_TASK}, s{S_CUT}")
        o(f"s_sub_u32 s{S_CNT}, s{S_STEP}, 1")
    o(f"s_cbranch_scc1 M_sw{PD-1}")
    o("M_loop:")
    for k in range(PD):
        D = vDK + 4*k; R = vRKk + 2*k
        o(f"M_it{k}:")
        o(f"s_waitcnt vmcnt({PD-1})")
        o(f"v_lshlrev_b64 {vr(vT,2)}, 16, {vr(D,2)}")
        o(f"v_pk_fma_f32 {vr(vT+2,2)}, {vr(R,2)}, {vr(vWX+2,2)}, {vr(D,2)} op_sel:[1,0,0] op_sel_hi:[1,1,1]")
        o(f"v_pk_fma_f32 {vr(vT,2)}, {vr(R,2)}, {vr(vWX,2)}, {vr(vT,2)} op_sel:[1,0,0] op_sel_hi:[1,1,1]")
        o(f"ds_read_b64 {vr(R,2)}, v{vLA} offset:{(k+PD)*64}")
        o(f"v_exp_f32 v{vT+2}, v{vT+2}")
        o(f"v_exp_f32 v{vT+3}, v{vT+3}")
        o(f"v_exp_f32 v{vT}, v{vT}")
        o(f"v_exp_f32 v{vT+1}, v{vT+1}")
        o(f"v_lshlrev_b64 {vr(vT+4,2)}, 16, {vr(D+2,2)}")
        o(f"v_pk_add_f32 {vr(vT+2,2)}, {vr(vT+2,2)}, {vr(vAU,2)}")
        o(f"v_pk_add_f32 {vr(vT,2)}, {vr(vT,2)}, {vr(vEX,2)}")
        if k == PD-1:
            o(f"v_add_u32 v{vLA}, {PD*64}, v{vLA}")
        o(f"v_rcp_f32 v{vT+2}, v{vT+2}")
        o(f"v_rcp_f32 v{vT+3}, v{vT+3}")
        o(f"v_rcp_f32 v{vT}, v{vT}")
        o(f"v_rcp_f32 v{vT+1}, v{vT+1}")
        o(f"v_pk_add_f32 {vr(vDen+2,2)}, {vr(vDen+2,2)}, {vr(vT+2,2)}")
        o(f"v_pk_fma_f32 {vr(vNum+2,2)}, {vr(vT+2,2)}, {vr(D+2,2)}, {vr(vNum+2,2)}")
        o(f"v_pk_add_f32 {vr(vDen,2)}, {vr(vDen,2)}, {vr(vT,2)}")
        o(f"v_pk_fma_f32 {vr(vNum,2)}, {vr(vT,2)}, {vr(vT+4,2)}, {vr(vNum,2)}")
        o("s_waitcnt lgkmcnt(0)")
        gaddr(R)
        o(f"s_sub_u32 s{S_CNT}, s{S_CNT}, 1")
        o(f"buffer_load_dwordx4 {vr(D,4)}, v{R}, {sr(R_TAB,4)}, s{S_PH if 'cut' not in OPT else S_SO} offen{GSC}")
        o(f"s_cbranch_scc1 M_sw{k}")
    o("s_branch M_loop")
    for k in range(PD):
        o(f"M_sw{k}:")
        if "cut" in OPT:
            o(f"s_sub_u32 s{S_TASK}, s{S_TASK}, s{S_STEP}")
            o(f"s_sub_u32 s{S_CUT}, s{S_CUT}, s{S_STEP}")
            o(f"s_cmp_eq_u32 s{S_CUT}, 0")
            o(f"s_cselect_b32 s{S_SO}, 0x7f000000, s{S_SO}")
            o(f"s_cselect_b32 s{S_CUT}, 0x7f000000, s{S_CUT}")
            o(f"s_cmp_lg_u32 s{S_TASK}, 0")
            o(f"s_cbranch_scc1 M_n{k}")
        finalize(o, vDen, vNum, vEX, vAU, vAU+2, vAU+4, vT, vOA)
        o(f"s_sub_u32 s{S_NT}, s{S_NT}, 1")
        o(f"s_cmp_eq_u32 s{S_NT}, 0")
        o(f"s_cbranch_scc1 M_phase")
        o(f"s_cmp_eq_u32 s{S_PH}, 0")
        o(f"s_cbranch_scc1 M_p{k}")
        o(f"s_setprio {PR[3]}")
        o(f"s_branch M_q{k}")
        o(f"M_p{k}:")
        o(f"s_setprio {PR[1]}")
        o(f"M_q{k}:")
        promote()
        if "cut" not in OPT:
            o(f"s_sub_u32 s{S_CNT}, s{S_L1}, 1")
        else:
            o(f"s_mov_b32 s{S_TASK}, s{S_L1}")
            o(f"M_n{k}:")
            o(f"s_min_u32 s{S_STEP}, s{S_TASK}, s{S_CUT}")
            o(f"s_sub_u32 s{S_CNT}, s{S_STEP}, 1")
        o(f"s_cbranch_scc1 M_sw{k}")
        o(f"s_branch M_it{(k+1)%PD}")
    o("M_phase:")
    o(f"s_cmp_eq_u32 s{S_PH}, 0")
    o(f"s_cbranch_scc0 L_end")
    o(f"s_setprio {PR[2]}")
    stamp(o, 13)
    poll_tables(o, "L_pd", 1, vT)
    if "pf4" in OPT:
        o(f"s_cmp_eq_u32 s{S_WAVE}, {PFW}")
        o(f"s_cbranch_scc0 L_nopf4")
        o(f"v_lshlrev_b32 v3, 7, v2")
        for t in range(0, 4):
            o(f"s_add_u32 s{S_C}, s{S_BUCKET}, {32*t}")
            o(f"s_and_b32 s{S_C}, s{S_C}, 127")
            o(f"s_mul_i32 s{S_C}, s{S_C}, {NPB*128}")
            o(f"s_add_u32 s{S_C}, s{S_C}, {TSTRIDE}")
            for i in range(4):
                if i == 3: o("s_mov_b64 exec, 0xf")
                o(f"buffer_load_dword v{48+4*t+i}, v3, {sr(R_TAB,4)}, s{S_C} offen{SC}")
                if i < 3: o(f"s_add_u32 s{S_C}, s{S_C}, 8192")
            o("s_mov_b64 exec, -1")
        o("L_nopf4:")
    o(f"s_mov_b32 s{S_PH}, {TSTRIDE}")
    o(f"v_mov_b64 {vr(vWX,2)}, {vr(vW2,2)}")
    o(f"v_mov_b64 {vr(vWX+2,2)}, {vr(vW2+2,2)}")
    o(f"v_add_u32 v{vAB}, {AUP}, v{vAB}")
    o(f"v_add_u32 v{vOB}, 64, v{vOB}")
    o(f"v_add_u32 v{vLA}, s{S_B1}, v5")
    o(f"v_mov_b32 v{vNQ}, v{vNQ+1}")
    o(f"s_mov_b32 s{S_CNT}, s{S_L2}")
    o(f"s_mov_b32 s{S_L1}, s{S_L3}")
    o(f"s_xor_b32 s{S_NT}, s{S_WAVE}, {MIR}")
    o(f"s_cmp_ge_u32 s{S_NT}, 7")
    o(f"s_cselect_b32 s{S_NT}, 2, 1")
    if "dry" in OPT:
        o(f"s_cmp_lg_u32 s{S_DRY}, 0")
        o(f"s_cbranch_scc1 L_dry_ret")
    o("s_branch M_prime")
    o("L_slow:")
    vG, vI, vA2, vR2_, vD2, vT2, vAcc = 16, 17, 18, 20, 24, 32, 19
    o(f"s_xor_b32 s{S_SL0}, s{S_SL0}, 2")
    poll_tables(o, "S_pc", 0, 24)
    o(f"s_xor_b32 s{S_SL0}, s{S_SL0}, 2")
    poll_tables(o, "S_pa", 0, 24)
    poll_tables(o, "S_pb", 1, 24)
    o(f"v_lshrrev_b32 v{vG}, 3, v0")
    o(f"s_mov_b32 s{S_PH}, 0")
    o(f"s_movk_i32 s{S_D}, {AUS}")
    o(f"s_movk_i32 s{S_CNT}, 128")
    o(f"s_mov_b32 s{S_B1}, 0")
    o("S_half:")
    o("s_barrier")
    for i in range(4): o(f"v_mov_b32 v{vD2+i}, 0")
    o(f"v_lshlrev_b32 v3, 4, v0")
    o(f"v_add_u32 v3, {ELL}, v3")
    for i in range(3): o(f"ds_write_b128 v3, {vr(vD2,4)} offset:{i*16384}")
    o(f"s_cmp_lt_u32 s{S_WAVE}, 2")
    o(f"s_cbranch_scc0 S_nofill")
    o(f"ds_write_b128 v3, {vr(vD2,4)} offset:{3*16384}")
    o("S_nofill:")
    o("s_waitcnt lgkmcnt(0)")
    o("s_barrier")
    o(f"s_mov_b32 s{S_PP}, 0")
    o("S_piece:")
    o(f"v_add_u32 v3, s{S_PP}, v{vG}")
    o(f"v_lshlrev_b32 v5, 2, v3")
    o(f"ds_read_b32 v4, v5 offset:{OFFL}")
    o(f"s_movk_i32 s{S_A}, {SEG}")
    o(f"v_mul_u32_u24 v{vA2}, s{S_A}, v3")
    o(f"v_mov_b32 v{vI}, 0")
    o("s_waitcnt lgkmcnt(0)")
    o(f"v_and_b32 v5, 0x7ff, v4")
    o(f"v_lshrrev_b32 v4, 11, v4")
    o(f"v_lshl_add_u32 v{vA2}, v5, 3, v{vA2}")
    o(f"s_mov_b32 s{S_A}, {REC_OFF}")
    o("S_rec:")
    o(f"v_cmpx_gt_u32 vcc, v4, v{vI}")
    o(f"s_cbranch_execz S_rec_done")
    o(f"buffer_load_dwordx2 {vr(vR2_,2)}, v{vA2}, {sr(R_WS,4)}, s{S_A} offen{SC}")
    o("s_waitcnt vmcnt(0)")
    o(f"v_bfe_u32 v5, v{vR2_}, 2, 8")
    o(f"v_and_b32 v{vR2_+1}, 0xffff0000, v{vR2_+1}")
    o(f"v_mad_u32_u16 v{vR2_}, v{vR2_}, s{S_CNT}, v{vLO} op_sel:[1,0,0,0]")
    o(f"v_mad_u32_u24 v3, v5, s{S_D}, v{vAB}")
    o(f"v_lshlrev_b32 v{vAcc}, 8, v5")
    o(f"v_lshl_add_u32 v{vAcc}, v1, 5, v{vAcc}")
    o(f"v_add_u32 v{vAcc}, {ELL}, v{vAcc}")
    o(f"buffer_load_dwordx4 {vr(vD2,4)}, v{vR2_}, {sr(R_TAB,4)}, s{S_B1} offen{SC}")
    o(f"ds_read_b64 {vr(vAU,2)}, v3")
    o("s_waitcnt vmcnt(0) lgkmcnt(0)")
    T = vT2
    o(f"v_lshlrev_b64 {vr(T,2)}, 16, {vr(vD2,2)}")
    o(f"v_lshlrev_b64 {vr(T+4,2)}, 16, {vr(vD2+2,2)}")
    o(f"v_lshlrev_b32 v{T+6}, 16, v{vAU}")
    o(f"v_lshlrev_b32 v{T+7}, 16, v{vAU+1}")
    o(f"v_and_b32 v{vAU}, 0xffff0000, v{vAU}")
    o(f"v_and_b32 v{vAU+1}, 0xffff0000, v{vAU+1}")
    o(f"v_lshrrev_b32 v5, 5, v5")
    o(f"v_lshl_add_u32 v5, v5, 1, s{S_PH}")
    o(f"v_lshrrev_b32 v5, v5, s{S_MODE}")
    o(f"v_and_b32 v5, 1, v5")
    o(f"v_cmp_eq_u32 vcc, 0, v5")
    for r in (T+6, T+7, vAU, vAU+1):
        o(f"v_log_f32 v3, v{r}")
        o("s_nop 0")
        o(f"v_cndmask_b32 v{r}, v{r}, -v3, vcc")
    o(f"v_pk_add_f32 {vr(T,2)}, {vr(T,2)}, {vr(T+6,2)}")
    o(f"v_pk_add_f32 {vr(T+2,2)}, {vr(vD2,2)}, {vr(vAU,2)}")
    o(f"v_pk_fma_f32 {vr(T,2)}, {vr(vR2_,2)}, {vr(vWX,2)}, {vr(T,2)} op_sel:[1,0,0] op_sel_hi:[1,1,1]")
    o(f"v_pk_fma_f32 {vr(T+2,2)}, {vr(vR2_,2)}, {vr(vWX+2,2)}, {vr(T+2,2)} op_sel:[1,0,0] op_sel_hi:[1,1,1]")
    for i in range(4): o(f"v_exp_f32 v{T+i}, v{T+i}")
    o("s_nop 0")
    o(f"v_pk_add_f32 {vr(T,2)}, {vr(T,2)}, 1.0 op_sel_hi:[1,0]")
    o(f"v_pk_add_f32 {vr(T+2,2)}, {vr(T+2,2)}, 1.0 op_sel_hi:[1,0]")
    for i in range(4): o(f"v_rcp_f32 v{T+i}, v{T+i}")
    o("s_nop 0")
    o(f"v_pk_mul_f32 {vr(T+4,2)}, {vr(T+4,2)}, {vr(T,2)}")
    o(f"v_pk_mul_f32 {vr(T+6,2)}, {vr(vD2+2,2)}, {vr(T+2,2)}")
    for i in range(8): o(f"ds_add_f32 v{vAcc}, v{T+i} offset:{4*i}")
    o("s_mov_b64 exec, -1")
    o(f"v_add_u32 v{vI}, 1, v{vI}")
    o(f"v_add_u32 v{vA2}, 8, v{vA2}")
    o("s_branch S_rec")
    o("S_rec_done:")
    o("s_mov_b64 exec, -1")
    o(f"s_add_u32 s{S_PP}, s{S_PP}, 128")
    o(f"s_cmp_lt_u32 s{S_PP}, 256")
    o("s_cbranch_scc1 S_piece")
    o("s_waitcnt lgkmcnt(0)")
    o("s_barrier")
    o(f"s_mov_b32 s{S_PP}, 0")
    o(f"s_movk_i32 s{S_C}, {NPB}")
    o("S_fin:")
    o(f"v_add_u32 v5, s{S_PP}, v{vG}")
    o(f"v_mad_u32_u24 v3, v5, s{S_D}, v{vAB}")
    o(f"v_lshlrev_b32 v{vAcc}, 8, v5")
    o(f"v_lshl_add_u32 v{vAcc}, v1, 5, v{vAcc}")
    o(f"v_add_u32 v{vAcc}, {ELL}, v{vAcc}")
    o(f"v_lshl_add_u32 v{vOA}, v5, 8, v{vOB}")
    o(f"v_cmpx_gt_u32 vcc, s{S_C}, v5")
    o(f"s_cbranch_execz S_fin_next")
    o(f"ds_read2_b64 {vr(vAU+2,4)}, v3 offset0:1 offset1:2")
    o(f"ds_read_b128 {vr(24,4)}, v{vAcc}")
    o(f"ds_read_b128 {vr(28,4)}, v{vAcc} offset:16")
    o("s_waitcnt lgkmcnt(0)")
    finalize(o, 24, 28, None, None, vAU+2, vAU+4, vT, vOA)
    o("S_fin_next:")
    o("s_mov_b64 exec, -1")
    o(f"s_add_u32 s{S_PP}, s{S_PP}, 128")
    o(f"s_cmp_lt_u32 s{S_PP}, 256")
    o("s_cbranch_scc1 S_fin")
    o(f"v_mov_b64 {vr(vWX,2)}, {vr(vW2,2)}")
    o(f"v_mov_b64 {vr(vWX+2,2)}, {vr(vW2+2,2)}")
    o(f"v_add_u32 v{vAB}, {AUP}, v{vAB}")
    o(f"v_add_u32 v{vOB}, 64, v{vOB}")
    o(f"s_mov_b32 s{S_B1}, {TSTRIDE}")
    o(f"s_add_u32 s{S_PH}, s{S_PH}, 1")
    o(f"s_cmp_lt_u32 s{S_PH}, 2")
    o("s_cbranch_scc1 S_half")
    o("L_end:")
    stamp(o, 12)
    stamp_flush(o, 14)
    o("L_exit:")
    o("s_endpgm")

def main():
    global TLBS, PFW, PESL, WSO, PR, TSL, STAMP, PD, OUTF, GSC, MIR, SL0, SL1, PSC, ESC, RSC
    for a in sys.argv[2:]:
        if a.startswith("stamp="): STAMP = int(a[6:])
        elif a.startswith("pd="): PD = int(a[3:])
        elif a.startswith("outf="): OUTF = " " + a[5:].replace("+", " ")
        elif a.startswith("gsc="): GSC = (" " + a[4:].replace("+", " ")).rstrip()
        elif a.startswith("mir="): MIR = int(a[4:])
        elif a.startswith("sl="): SL0, SL1 = map(int, a[3:].split(","))
        elif a == "psys": PSC = " sc0 sc1"
        elif a == "esys": ESC = " sc0 sc1"
        elif a == "rsys": RSC = " sc0 sc1"
        elif a.startswith("tsl="): TSL = int(a[4:])
        elif a.startswith("pr="): PR = tuple(int(c) for c in a[3:])
        elif a.startswith("wso="): WSO = int(a[4:]) << 20
        elif a.startswith("pesl="): PESL = int(a[5:])
        elif a.startswith("pfw="): PFW = int(a[4:])
        elif a.startswith("tlbs="): TLBS = int(a[5:])
        else: OPT.add(a)
    ref = open(f"cdna_kernels/{NAME}.s.ref").read().split("\n")
    head = [l for l in ref if l.startswith(";") and "@launch" not in l]
    out = "\n".join(head) + "\n"
    out += f"; @launch grid=(256,1,1) block=(1024,1,1) lds={LDS_SIZE}\n"
    out += f'.amdgcn_target "amdgcn-amd-amdhsa--gfx950"\n.text\n.globl {NAME}_kernel\n.p2align 8\n.type {NAME}_kernel,@function\n{NAME}_kernel:\n'
    o = Asm(); kernel(o); out += o.text()
    out += f""".section .rodata,"a"
.p2align 6
.amdhsa_kernel {NAME}_kernel
  .amdhsa_next_free_vgpr 128
  .amdhsa_next_free_sgpr {102 if STAMP is not None else 90}
  .amdhsa_accum_offset 128
  .amdhsa_group_segment_fixed_size 0
  .amdhsa_kernarg_size 96
  .amdhsa_user_sgpr_count 2
  .amdhsa_user_sgpr_kernarg_segment_ptr 1
  .amdhsa_system_sgpr_workgroup_id_x 1
.end_amdhsa_kernel
"""
    path = sys.argv[1] if len(sys.argv) > 1 else f"cdna_kernels/{NAME}.s"
    open(path, "w").write(out)
    print("wrote", path, "LDS", LDS_SIZE, "ELL_ITERS", ELL_ITERS)
main()
```
